```python
import torch

def _softmax(x, axis=-1):
    return torch.softmax(x, dim=axis)
def _gelu(x):
    return torch.nn.functional.gelu(x, approximate="tanh")
def _silu(x):
    return torch.nn.functional.silu(x)
def _sigmoid(x):
    return torch.sigmoid(x)
def _layernorm(x, axis=-1, eps=1e-5):
    m = x.mean(dim=axis, keepdim=True)
    v = x.var(dim=axis, keepdim=True, unbiased=False)
    return (x - m) / torch.sqrt(v + eps)
def _scatter_add(tgt, idx, src, axis=0):
    return tgt.clone().index_add_(axis, idx, src)
def _segment_sum(src, seg, n):
    out = torch.zeros((n,) + src.shape[1:], dtype=src.dtype)
    return out.index_add_(0, seg, src)
def _pad(x, pw):
    flat = tuple(v for pair in reversed(pw) for v in pair)
    return torch.nn.functional.pad(x, flat)

kernel_name = 'gather_scatter__kernel_systems_refs_featgraph__graph'

def setup_inputs():

    _w = (lambda a: (lambda t: t.to(torch.bfloat16) if t.is_floating_point() else t)(torch.as_tensor(a)))
    N, deg, D = 50000, 16, 64
    E = N * deg
    scale = D ** -0.5
    src = (lambda lo, hi, *s: torch.randint(lo, hi, s))(0, N, E).to(torch.int64)
    dst = (lambda lo, hi, *s: torch.randint(lo, hi, s))(0, N, E).to(torch.int64)
    return {
        "x": _w((lambda *s: torch.randn(*s, dtype=torch.bfloat16) * 0.8)(N, D)),
        "src": _w(src),
        "dst": _w(dst),
        "w_q": _w((lambda *s: torch.randn(*s, dtype=torch.bfloat16) * 0.8)(D, D) * scale),
        "w_v": _w((lambda *s: torch.randn(*s, dtype=torch.bfloat16) * 0.05)(D, D) * scale),
    }

def reference(x, src, dst, w_q, w_v):
    N, D = x.shape
    xs = x[src]
    xd = x[dst]
    q = xd @ w_q
    logits = torch.einsum('ed,ed->e', xs, q) * (float(D) ** -0.5)
    alpha = _sigmoid(logits)
    msg = alpha[:, None] * (xs @ w_v)
    return _segment_sum(msg, dst, N)
```

```python
import sys
N=50000; E=800000
G1=250; CH=3200
GS=13
NB=241
SLOTB=G1*128
SLOT_BYTES=NB*SLOTB
OC_OFF=0x800000
OV_OFF=0x810000
L_LIST=131072; CAP=5760
L_HIST=L_LIST+CAP*4; L_BASE=L_HIST+512; L_T=L_BASE+512; L_WV=L_T+512
assert L_HIST%512==0 and L_T%128==0 and L_WV+8192==163840
out=[]
def e(s): out.append(s)
def srd(d, lo, size, off=0):
    if off:
        e(f"s_add_u32 s{d}, s{lo}, {off}")
        e(f"s_addc_u32 s{d+1}, s{lo+1}, 0")
    else:
        e(f"s_mov_b32 s{d}, s{lo}")
        e(f"s_mov_b32 s{d+1}, s{lo+1}")
    e(f"s_mov_b32 s{d+2}, {size}")
    e(f"s_mov_b32 s{d+3}, 0x00020000")
def entry(dst, src, ent, gg, t1, t2, sSIGN):
    e(f"v_mul_u32_u24 {gg}, 40330, {dst}")
    e(f"v_lshrrev_b32 {gg}, 19, {gg}")
    e(f"v_mad_i32_i24 {t1}, {gg}, -13, {dst}")
    e(f"v_lshl_or_b32 {ent}, {src}, 7, {sSIGN}")
    e(f"v_lshl_or_b32 {ent}, {t1}, 3, {ent}")
    e(f"v_lshrrev_b32 {t1}, 13, {src}")
    e(f"v_and_b32 {t2}, 15, {gg}")
    e(f"v_lshl_or_b32 {t1}, {t2}, 3, {t1}")
    e(f"v_lshl_or_b32 {ent}, {t1}, 24, {ent}")

hdr = open('gather_scatter__kernel_systems_refs_featgraph__graph.s.ref').read().split('\n')
for l in hdr:
    if l.startswith('; @launch') or l.startswith('; Override') or l.startswith('; grid='): continue
    if l.startswith(';'): e(l)
    else: break
e(f"; @launch kernel=part_kernel grid=({G1},1,1) block=(1024,1,1) lds=33792")
e(f"; @launch kernel=gath_kernel grid=({NB},1,1) block=(1024,1,1) lds=163840")
e('.amdgcn_target "amdgcn-amd-amdhsa--gfx950"')
e(".text")
e(".globl part_kernel\n.p2align 8\n.type part_kernel,@function\npart_kernel:")
e(f"s_cmp_ge_u32 s2, {G1}")
e("s_cbranch_scc1 P_end")
e("s_load_dwordx16 s[4:19], s[0:1], 0")
e("v_lshlrev_b32 v1, 4, v0")
e("v_mov_b32 v20, 0\nv_mov_b32 v21, 0\nv_mov_b32 v22, 0\nv_mov_b32 v23, 0")
e(f"s_mul_i32 s40, s2, {CH*4}")
e("s_mov_b32 s41, 0x80000000")
e("s_waitcnt lgkmcnt(0)")
srd(20, 6, E*4); srd(24, 8, E*4)
e(f"v_cmp_gt_u32 s[42:43], {CH//4}, v0" if CH//4<=64 else f"s_movk_i32 s44, {CH//4}\nv_cmp_gt_u32 s[42:43], s44, v0")
e("s_mov_b64 exec, s[42:43]")
e("s_cbranch_execz P_noload")
e("buffer_load_dwordx4 v[4:7], v1, s[24:27], s40 offen")
e("buffer_load_dwordx4 v[8:11], v1, s[20:23], s40 offen")
e("P_noload:")
e("s_mov_b64 exec, -1")
e("ds_write_b128 v1, v[20:23]")
e("ds_write_b128 v1, v[20:23] offset:16384")
e("v_cmp_gt_u32 vcc, 64, v0")
e("s_and_saveexec_b64 s[46:47], vcc")
e("ds_write_b128 v1, v[20:23] offset:32768")
e("s_mov_b64 exec, -1")
srd(28, 18, SLOT_BYTES); srd(32, 18, G1*CH*4, OV_OFF); srd(36, 18, G1*4, OC_OFF)
e("v_mov_b32 v2, 1")
e("s_waitcnt lgkmcnt(0)")
e("s_barrier")
e("s_mov_b64 exec, s[42:43]")
e("s_cbranch_execz P_copy")
e("s_waitcnt vmcnt(0)")
for k in range(4):
    entry(f"v{4+k}", f"v{8+k}", f"v{12+k}", f"v{16+k}", "v24", "v25", "s41")
    e(f"v_lshrrev_b32 v{16+k}, 4, v{16+k}")
    e(f"v_lshlrev_b32 v24, 2, v{16+k}")
    e(f"ds_add_rtn_u32 v{20+k}, v24, v2 offset:32768")
for k in range(4):
    e(f"s_waitcnt lgkmcnt({3-k})")
    e(f"v_add_u32 v24, v{20+k}, v{16+k}")
    e(f"v_and_b32 v24, 31, v24")
    e(f"v_lshlrev_b32 v24, 2, v24")
    e(f"v_lshl_or_b32 v24, v{16+k}, 7, v24")
    e(f"v_cmp_gt_u32 vcc, 32, v{20+k}")
    e(f"s_and_saveexec_b64 s[46:47], vcc")
    e(f"ds_write_b32 v24, v{12+k}")
    e(f"s_mov_b64 exec, s[46:47]")
e("v_max3_u32 v24, v20, v21, v22")
e("v_max_u32 v24, v24, v23")
e("v_cmp_lt_u32 vcc, 31, v24")
e("s_cbranch_vccz P_copy")
e("v_mov_b32 v26, 33788")
for k in range(4):
    e(f"v_cmp_lt_u32 vcc, 31, v{20+k}")
    e(f"s_and_saveexec_b64 s[46:47], vcc")
    e(f"s_cbranch_execz P_ov{k}")
    e(f"ds_add_rtn_u32 v24, v26, v2")
    e(f"v_lshl_or_b32 v25, v{4+k}, 16, v{8+k}")
    e(f"s_waitcnt lgkmcnt(0)")
    e(f"v_lshlrev_b32 v24, 2, v24")
    e(f"buffer_store_dword v25, v24, s[32:35], s40 offen")
    e(f"s_waitcnt vmcnt(0)")
    e(f"P_ov{k}:")
    e(f"s_mov_b64 exec, s[46:47]")
e("P_copy:")
e("s_mov_b64 exec, -1")
e("v_lshrrev_b32 v24, 3, v0")
e(f"v_mul_u32_u24 v24, {SLOTB}, v24")
e("v_and_b32 v25, 7, v0")
e("v_lshl_add_u32 v24, v25, 4, v24")
e("s_lshl_b32 s48, s2, 7")
e("v_add_u32 v24, s48, v24")
e(f"v_add_u32 v25, {128*SLOTB}, v24")
e("v_mov_b32 v26, 33788")
e("s_waitcnt lgkmcnt(0)")
e("s_barrier")
e("ds_read_b128 v[4:7], v1")
e("ds_read_b128 v[8:11], v1 offset:16384")
e("ds_read_b32 v12, v26")
e("s_waitcnt lgkmcnt(2)")
e("buffer_store_dwordx4 v[4:7], v24, s[28:31], 0 offen")
e("s_waitcnt lgkmcnt(1)")
e("buffer_store_dwordx4 v[8:11], v25, s[28:31], 0 offen")
e("v_cmp_eq_u32 vcc, 0, v0")
e("s_and_saveexec_b64 s[46:47], vcc")
e("s_cbranch_execz P_end")
e("s_lshl_b32 s48, s2, 2")
e("v_mov_b32 v13, s48")
e("s_waitcnt lgkmcnt(0)")
e("buffer_store_dword v12, v13, s[36:39], 0 offen")
e("P_end:")
e("s_endpgm")
ACC=4; QB=20; MB=28; AT=30; AA=34; VLO=36; VQT=37; VEN=38; VED=39
XA=40; XT=56; OH=72; LG=76; P=84; EN=88; ED=92; TM=94; SV=100
Ee=40; Rr=48; Bb=56; Aa=64
sW=68; sST=69; sCNT=70; sREM=71; sSTATE=72; sMSRC=73; sM78=74; sC=75; sT0=76; sT1=77; sBUFB=78; sSIGN=79; sM1FC=80; sNODE=81; sOW=82
def v(i,n=1): return f"v{i}" if n==1 else f"v[{i}:{i+n-1}]"
e(".globl gath_kernel\n.p2align 8\n.type gath_kernel,@function\ngath_kernel:")
e(f"s_cmp_ge_u32 s2, {NB}")
e("s_cbranch_scc1 G_end")
e("s_load_dwordx16 s[4:19], s[0:1], 0")
e("v_lshrrev_b32 v2, 6, v0")
e("v_and_b32 v1, 63, v0")
e(f"v_readfirstlane_b32 s{sW}, v2")
e(f"s_mov_b32 s{sMSRC}, 0x7fff80")
e(f"s_movk_i32 s{sM78}, 0x78")
e(f"s_mov_b32 s{sC}, 0xbe38aa3b")
e(f"s_mov_b32 s{sSIGN}, 0x80000000")
e(f"s_movk_i32 s{sM1FC}, 0x1fc")
e(f"s_mov_b32 s{sSTATE}, 0")
e(f"v_lshlrev_b32 v2, 4, v1")
e(f"v_lshlrev_b32 v3, 4, v0")
e("s_waitcnt lgkmcnt(0)")
e(f"s_cmp_ge_u32 s{sW}, 8")
e("s_cselect_b32 s28, s12, s10")
e("s_cselect_b32 s29, s13, s11")
e("s_mov_b32 s30, 8192\ns_mov_b32 s31, 0x00020000")
e(f"s_cselect_b32 s{sT0}, {L_WV}, 0")
e(f"s_and_b32 s{sT1}, s{sW}, 7")
e(f"s_lshl_b32 s{sT1}, s{sT1}, 10")
e(f"s_add_u32 m0, s{sT0}, s{sT1}")
srd(24, 18, SLOT_BYTES)
e(f"buffer_load_dwordx4 v2, s[28:31], s{sT1} offen lds")
e(f"s_mul_i32 s{sT0}, s2, {SLOTB}")
e(f"buffer_load_dwordx4 {v(Ee,4)}, v3, s[24:27], s{sT0} offen")
for k in range(4): e(f"v_mov_b32 v{Ee+4+k}, 0")
e(f"s_movk_i32 s{sT1}, {SLOTB//16-1024}")
e(f"v_cmp_gt_u32 vcc, s{sT1}, v0")
e(f"s_add_u32 s{sT0}, s{sT0}, 16384")
e("s_and_saveexec_b64 s[46:47], vcc")
e("s_cbranch_execz G_l2")
e(f"buffer_load_dwordx4 {v(Ee+4,4)}, v3, s[24:27], s{sT0} offen")
e("G_l2:")
e("s_mov_b64 exec, -1")
srd(20, 4, N*128)
e(f"s_lshl_b32 s{sNODE}, s2, 4")
e(f"s_add_u32 s{sNODE}, s{sNODE}, s{sW}")
e(f"s_mul_i32 s{sNODE}, s{sNODE}, {GS*128}")
e(f"v_and_b32 v{TM}, 15, v1")
e(f"v_lshrrev_b32 v{TM+1}, 4, v1")
e(f"v_lshlrev_b32 v{TM+2}, 7, v{TM}")
e(f"v_lshl_add_u32 v{TM+2}, v{TM+1}, 4, v{TM+2}")
e(f"buffer_load_dwordx4 {v(72,4)}, v{TM+2}, s[20:23], s{sNODE} offen")
e(f"buffer_load_dwordx4 {v(76,4)}, v{TM+2}, s[20:23], s{sNODE} offen offset:64")
srd(36, 18, G1*4, OC_OFF)
e(f"buffer_load_dwordx4 {v(SV,4)}, v2, s[36:39], 0 offen")
srd(32, 14, N*128); srd(40, 18, G1*CH*4, OV_OFF)
e(f"v_lshlrev_b32 v{TM+3}, 3, v1")
e(f"s_cmp_eq_u32 s{sW}, 0")
e("s_cbranch_scc0 G_i1")
e(f"v_mov_b32 v{P}, 0\nv_mov_b32 v{P+1}, 0")
e(f"v_add_u32 v{TM+4}, {L_HIST}, v{TM+3}")
e(f"ds_write_b64 v{TM+4}, {v(P,2)}")
e("G_i1:")
e(f"v_lshlrev_b32 v{TM+4}, 2, v{TM+1}")
e(f"v_sub_u32 v{TM+4}, v{TM}, v{TM+4}")
e(f"v_mov_b32 v{P+2}, 0x3f80\nv_mov_b32 v{P+3}, 0x3f800000")
for r,(d0,d1) in enumerate([(0,1),(2,3)]):
    e(f"v_cmp_eq_u32 vcc, {d0}, v{TM+4}")
    e(f"v_cmp_eq_u32 s[46:47], {d1}, v{TM+4}")
    e("s_nop 1")
    e(f"v_cndmask_b32 v{P+r}, 0, v{P+2}, vcc")
    e(f"v_cndmask_b32 v{P+r}, v{P+r}, v{P+3}, s[46:47]")
    e(f"v_mov_b32 v{MB+r}, 0xf000f000")
    e(f"v_mov_b32 v{TM+5}, 0xf0000000")
    e(f"v_cndmask_b32 v{MB+r}, v{MB+r}, v{TM+5}, vcc")
    e(f"v_mov_b32 v{TM+5}, 0x0000f000")
    e(f"v_cndmask_b32 v{MB+r}, v{MB+r}, v{TM+5}, s[46:47]")
e(f"s_cmp_eq_u32 s{sW}, 1")
e("s_cbranch_scc0 G_i2")
e(f"v_add_u32 v{TM+4}, {L_T}, v{TM+3}")
e(f"ds_write_b64 v{TM+4}, {v(P,2)}")
e("G_i2:")
e(f"s_lshl_b32 s{sBUFB}, s{sW}, 13")
e(f"v_lshlrev_b32 v{VQT}, 7, v{TM+1}")
e(f"v_add_u32 v{VQT}, {L_T}, v{VQT}")
e(f"v_and_b32 v{TM+4}, 7, v1")
e(f"v_lshlrev_b32 v{TM+5}, 1, v{TM+1}")
e(f"v_xor_b32 v{VLO}, v{TM+4}, v{TM+5}")
e(f"v_lshlrev_b32 v{VLO}, 4, v{VLO}")
e(f"v_and_b32 v{TM+4}, 6, v{TM}")
e(f"v_xor_b32 v{TM+4}, v{TM+4}, v{TM+1}")
e(f"v_lshlrev_b32 v{TM+4}, 4, v{TM+4}")
e(f"v_lshl_add_u32 v{AA}, v{TM}, 7, v{TM+4}")
e(f"v_add_u32 v{AA}, s{sBUFB}, v{AA}")
e(f"v_xor_b32 v{AA+1}, 64, v{AA}")
e(f"v_lshrrev_b32 v{TM+4}, 2, v1")
e(f"v_lshlrev_b32 v{TM+4}, 7, v{TM+4}")
e(f"v_and_b32 v{TM+5}, 3, v1")
e(f"v_lshl_add_u32 v{TM+4}, v{TM+5}, 3, v{TM+4}")
e(f"v_bfe_u32 v{TM+5}, v1, 3, 2")
e(f"v_lshl_add_u32 v{AT}, v{TM+5}, 5, v{TM+4}")
e(f"v_add_u32 v{AT}, s{sBUFB}, v{AT}")
for t in range(1,4): e(f"v_xor_b32 v{AT+t}, {t*32}, v{AT}")
e(f"v_mov_b32 v2, 1")
e(f"v_mov_b32 v3, {L_HIST}")
e("s_waitcnt vmcnt(5) lgkmcnt(0)")
e("s_barrier")
e(f"v_bfe_u32 v{TM+4}, v1, 2, 2")
e(f"v_lshl_add_u32 v{TM+4}, v{TM+1}, 3, v{TM+4}")
e(f"v_lshlrev_b32 v{TM+4}, 7, v{TM+4}")
e(f"v_and_b32 v{TM+5}, 3, v1")
e(f"v_lshl_add_u32 v{TM+4}, v{TM+5}, 4, v{TM+4}")
WF=[84,64]
def qreads(mt, base):
    for s in range(2):
        for h in range(2):
            e(f"ds_read_b64_tr_b16 {v(base+s*4+h*2,2)}, v{TM+4} offset:{s*4096+h*512+(mt//2)*64+(mt%2)*8}")
qreads(0,WF[0]); qreads(1,WF[1])
e("s_waitcnt vmcnt(1)")
for mt in range(4):
    b=WF[mt%2]
    e("s_waitcnt lgkmcnt(4)" if mt<3 else "s_waitcnt lgkmcnt(0)")
    e(f"v_mfma_f32_16x16x32_bf16 {v(ACC+mt*4,4)}, {v(b,4)}, {v(72,4)}, 0")
    e(f"v_mfma_f32_16x16x32_bf16 {v(ACC+mt*4,4)}, {v(b+4,4)}, {v(76,4)}, {v(ACC+mt*4,4)}")
    if mt<2: qreads(mt+2,b)
e("s_waitcnt vmcnt(0)")
for k in range(4): e(f"v_cmp_ne_u32 s[{44+2*k}:{45+2*k}], 0, v{SV+k}")
e("s_nop 4")
for mt in range(4):
    e(f"v_cvt_pk_bf16_f32 v{QB+mt*2}, v{ACC+mt*4}, v{ACC+mt*4+1}")
    e(f"v_cvt_pk_bf16_f32 v{QB+mt*2+1}, v{ACC+mt*4+2}, v{ACC+mt*4+3}")
for i in range(16): e(f"v_mov_b32 v{ACC+i}, 0")
e("G_batch:")
for k in range(8):
    e(f"v_cmp_gt_i32 s[{52+2*k}:{53+2*k}], 0, v{Ee+k}")
    e(f"v_lshrrev_b32 v{Bb+k}, 22, v{Ee+k}")
    e(f"v_and_or_b32 v{Bb+k}, v{Bb+k}, s{sM1FC}, v3")
for k in range(8):
    e(f"s_mov_b64 exec, s[{52+2*k}:{53+2*k}]")
    e(f"ds_add_rtn_u32 v{Rr+k}, v{Bb+k}, v2")
e("s_mov_b64 exec, -1")
e(f"v_lshl_add_u32 v{TM}, v1, 3, v3")
e("s_waitcnt lgkmcnt(0)")
e("s_barrier")
c0,c1,s_,tot,vv,inc = P,P+1,P+2,P+3,TM+1,TM+2
e(f"ds_read_b64 {v(c0,2)}, v{TM}")
e(f"v_and_b32 v{TM+3}, 3, v1")
e(f"v_cmp_eq_u32 vcc, 3, v{TM+3}")
e("s_waitcnt lgkmcnt(0)")
e(f"v_add_u32 v{s_}, v{c0}, v{c1}")
e("s_nop 1")
e(f"v_add_u32_dpp v{tot}, v{s_}, v{s_} quad_perm:[1,0,3,2] row_mask:0xf bank_mask:0xf")
e("s_nop 1")
e(f"v_add_u32_dpp v{tot}, v{tot}, v{tot} quad_perm:[2,3,0,1] row_mask:0xf bank_mask:0xf")
e(f"v_sub_u32 v{TM+3}, 0, v{tot}")
e(f"v_and_b32 v{TM+3}, 31, v{TM+3}")
e(f"v_cndmask_b32 v{TM+3}, 0, v{TM+3}, vcc")
e(f"v_add_u32 v{vv}, v{s_}, v{TM+3}")
e(f"v_mov_b32 v{inc}, v{vv}")
for sh in (1,2,4,8):
    e("s_nop 1")
    e(f"v_add_u32_dpp v{inc}, v{inc}, v{inc} row_shr:{sh} row_mask:0xf bank_mask:0xf bound_ctrl:0")
e("s_nop 1")
e(f"v_add_u32_dpp v{inc}, v{inc}, v{inc} row_bcast:15 row_mask:0xa bank_mask:0xf")
e("s_nop 1")
e(f"v_add_u32_dpp v{inc}, v{inc}, v{inc} row_bcast:31 row_mask:0xc bank_mask:0xf")
e(f"s_lshl_b32 s{sT1}, s{sW}, 2")
e(f"v_sub_u32 v{vv}, v{inc}, v{vv}")
e(f"v_readlane_b32 s{sT0}, v{inc}, 63")
e(f"v_readlane_b32 s{sCNT}, v{tot}, s{sT1}")
e(f"v_readlane_b32 s{sST}, v{vv}, s{sT1}")
e(f"v_add_u32 v{c1}, v{vv}, v{c0}")
e(f"v_mov_b32 v{TM+3}, {L_LIST}")
e(f"v_lshl_add_u32 v{c0}, v{vv}, 2, v{TM+3}")
e(f"v_lshl_add_u32 v{c1}, v{c1}, 2, v{TM+3}")
e(f"s_cmp_gt_u32 s{sT0}, {CAP}")
e("s_cbranch_scc1 G_split")
e(f"ds_write_b64 v{TM}, {v(c0,2)} offset:512")
e(f"s_add_u32 s{sT0}, s{sST}, s{sCNT}")
e(f"s_add_u32 s{sREM}, s{sCNT}, 31")
e(f"s_lshr_b32 s{sREM}, s{sREM}, 5")
e(f"s_lshl_b32 s{sT1}, s{sREM}, 5")
e(f"s_sub_u32 s{sT1}, s{sT1}, s{sCNT}")
e(f"v_add_u32 v{TM+4}, s{sT0}, v1")
e(f"v_lshl_add_u32 v{TM+4}, v{TM+4}, 2, v{TM+3}")
e(f"v_mov_b32 v{TM+5}, 0x78")
e(f"v_cmp_gt_u32 vcc, s{sT1}, v1")
e("s_and_saveexec_b64 s[84:85], vcc")
e(f"ds_write_b32 v{TM+4}, v{TM+5}")
e("s_mov_b64 exec, -1")
e("s_waitcnt lgkmcnt(0)")
for k in range(8): e(f"ds_read_b32 v{Aa+k}, v{Bb+k} offset:512")
e(f"s_lshl_b32 s{sT0}, s{sST}, 2")
e(f"s_add_u32 s{sT0}, s{sT0}, {L_LIST}")
e(f"v_lshrrev_b32 v{VEN}, 3, v1")
e(f"v_lshlrev_b32 v{VEN}, 4, v{VEN}")
e(f"v_add_u32 v{VEN}, s{sT0}, v{VEN}")
e(f"v_and_b32 v{VED}, 7, v1")
e(f"v_bfe_u32 v{TM+4}, v1, 3, 1")
e(f"v_lshl_add_u32 v{VED}, v{VED}, 2, v{TM+4}")
e(f"v_lshlrev_b32 v{VED}, 2, v{VED}")
e(f"v_add_u32 v{VED}, s{sT0}, v{VED}")
e("s_waitcnt lgkmcnt(0)")
for k in range(8):
    e(f"v_lshl_add_u32 v{Aa+k}, v{Rr+k}, 2, v{Aa+k}")
for k in range(8):
    e(f"s_mov_b64 exec, s[{52+2*k}:{53+2*k}]")
    e(f"ds_write_b32 v{Aa+k}, v{Ee+k}")
e("s_mov_b64 exec, -1")
e("s_waitcnt lgkmcnt(0)")
e("s_barrier")
def dma(buf, en):
    e(f"s_add_u32 m0, s{sBUFB}, {buf*4096}")
    for i in range(4):
        e(f"v_and_or_b32 v{TM+i}, v{en+i}, s{sMSRC}, v{VLO}")
        e(f"buffer_load_dwordx4 v{TM+i}, s[20:23], 0 offen lds")
        if i<3: e("s_add_u32 m0, m0, 1024")
e(f"s_cmp_eq_u32 s{sREM}, 0")
e("s_cbranch_scc1 G_next")
e(f"ds_read_b128 {v(EN,4)}, v{VEN}")
e(f"ds_read_b128 {v(P,4)}, v{VEN} offset:128")
e(f"ds_read2_b32 {v(ED,2)}, v{VED} offset0:0 offset1:2")
e("s_waitcnt lgkmcnt(2)")
dma(0,EN)
e(f"s_cmp_lt_u32 s{sREM}, 2")
e("s_waitcnt lgkmcnt(0)")
e("s_cbranch_scc1 G_loop")
dma(1,P)
e("G_loop:")
def tile(buf):
    L=f"G_t{buf}"
    e(f"v_and_or_b32 v{TM+4}, v{ED}, s{sM78}, v{VQT}")
    e(f"v_and_or_b32 v{TM+5}, v{ED+1}, s{sM78}, v{VQT}")
    e(f"s_cmp_lg_u32 s{sREM}, 1")
    e("s_waitcnt vmcnt(4)")
    e(f"s_cbranch_scc1 {L}a")
    e("s_waitcnt vmcnt(0)")
    e(f"{L}a:")
    e(f"ds_read_b64 {v(OH,2)}, v{TM+4}")
    e(f"ds_read_b64 {v(OH+2,2)}, v{TM+5}")
    for T in range(2):
        for s in range(2):
            e(f"ds_read_b128 {v(XA+T*8+s*4,4)}, v{AA+s} offset:{buf*4096+T*2048}")
    for t in range(4):
        for h in range(2):
            e(f"ds_read_b64_tr_b16 {v(XT+t*4+h*2,2)}, v{AT+t} offset:{buf*4096+h*2048}")
    e(f"ds_read_b128 {v(EN,4)}, v{VEN} offset:{256+buf*128}")
    e("s_waitcnt lgkmcnt(13)")
    e(f"v_mfma_f32_16x16x16_bf16 {v(LG,4)}, {v(OH,2)}, {v(MB,2)}, 0")
    e(f"v_mfma_f32_16x16x16_bf16 {v(LG+4,4)}, {v(OH+2,2)}, {v(MB,2)}, 0")
    e(f"ds_read2_b32 {v(ED,2)}, v{VED} offset0:{32+buf*32} offset1:{34+buf*32}")
    e("s_nop 2")
    e("s_waitcnt lgkmcnt(13)")
    e(f"v_mfma_f32_16x16x32_bf16 {v(LG,4)}, {v(XA,4)}, {v(QB,4)}, {v(LG,4)}")
    e("s_waitcnt lgkmcnt(12)")
    e(f"v_mfma_f32_16x16x32_bf16 {v(LG,4)}, {v(XA+4,4)}, {v(QB+4,4)}, {v(LG,4)}")
    e("s_waitcnt lgkmcnt(11)")
    e(f"v_mfma_f32_16x16x32_bf16 {v(LG+4,4)}, {v(XA+8,4)}, {v(QB,4)}, {v(LG+4,4)}")
    e("s_waitcnt lgkmcnt(10)")
    e(f"v_mfma_f32_16x16x32_bf16 {v(LG+4,4)}, {v(XA+12,4)}, {v(QB+4,4)}, {v(LG+4,4)}")
    e(f"s_cmp_lt_u32 s{sREM}, 3")
    e("s_waitcnt lgkmcnt(0)")
    e(f"s_cbranch_scc1 {L}b")
    dma(buf,EN)
    e(f"{L}b:")
    e("s_nop 5")
    for i in range(8): e(f"v_mul_f32 v{LG+i}, s{sC}, v{LG+i}")
    for i in range(8): e(f"v_exp_f32 v{LG+i}, v{LG+i}")
    for i in range(8): e(f"v_add_f32 v{LG+i}, 1.0, v{LG+i}")
    for i in range(8): e(f"v_rcp_f32 v{LG+i}, v{LG+i}")
    if buf==1:
        e(f"v_add_u32 v{VEN}, 256, v{VEN}")
        e(f"v_add_u32 v{VED}, 256, v{VED}")
    else: e("s_nop 0")
    for i in range(4): e(f"v_cvt_pk_bf16_f32 v{P+i}, v{LG+2*i}, v{LG+2*i+1}")
    e(f"s_sub_u32 s{sREM}, s{sREM}, 1")
    e(f"s_cmp_eq_u32 s{sREM}, 0")
    for t in range(4):
        e(f"v_mfma_f32_16x16x32_bf16 {v(ACC+t*4,4)}, {v(XT+t*4,4)}, {v(P,4)}, {v(ACC+t*4,4)}")
tile(0)
e("s_cbranch_scc1 G_next")
tile(1)
e("s_cbranch_scc0 G_loop")
e("G_next:")
e(f"s_cmp_eq_u32 s{sSTATE}, 1")
e("s_cbranch_scc1 G_half2")
for k in range(4):
    e(f"s_ff1_i32_b64 s{sOW}, s[{44+2*k}:{45+2*k}]")
    e(f"s_cmp_lg_i32 s{sOW}, -1")
    e(f"s_cbranch_scc1 G_f{k}")
e("s_branch G_epi")
for k in range(4):
    e(f"G_f{k}:")
    e(f"s_bitset0_b64 s[{44+2*k}:{45+2*k}], s{sOW}")
    e(f"s_lshl_b32 s{sOW}, s{sOW}, 2")
    e(f"s_add_u32 s{sOW}, s{sOW}, {k}")
    e("s_branch G_ovl")
e("G_ovl:")
e(f"s_lshl_b32 s{sT0}, s{sOW}, 2")
e(f"s_add_u32 s86, s18, {OC_OFF}")
e(f"s_addc_u32 s87, s19, 0")
e(f"s_load_dword s{sT1}, s[86:87], s{sT0}")
e(f"s_mul_i32 s{sT0}, s{sOW}, {CH*4}")
e(f"v_lshlrev_b32 v{TM}, 4, v0")
e(f"buffer_load_dwordx4 {v(Rr,4)}, v{TM}, s[40:43], s{sT0} offen")
e(f"v_lshlrev_b32 v{TM}, 2, v0")
e("s_waitcnt vmcnt(0) lgkmcnt(0)")
for k in range(4):
    e(f"v_lshrrev_b32 v{TM+1}, 16, v{Rr+k}")
    e(f"v_and_b32 v{TM+2}, 0xffff, v{Rr+k}")
    entry(f"v{TM+1}", f"v{TM+2}", f"v{Ee+k}", f"v{TM+3}", f"v{TM+4}", f"v{TM+5}", f"s{sSIGN}")
    e(f"v_lshrrev_b32 v{TM+3}, 4, v{TM+3}")
    e(f"v_cmp_eq_u32 vcc, s2, v{TM+3}")
    e(f"v_add_u32 v{TM+4}, {k}, v{TM}")
    e(f"v_cmp_gt_u32 s[84:85], s{sT1}, v{TM+4}")
    e("s_and_b64 vcc, vcc, s[84:85]")
    e("s_nop 1")
    e(f"v_cndmask_b32 v{Ee+k}, 0, v{Ee+k}, vcc")
for k in range(4): e(f"v_mov_b32 v{Ee+4+k}, 0")
e("s_branch G_again")
e("G_half2:")
for k in range(4):
    e(f"v_mov_b32 v{Ee+k}, v{SV+k}")
    e(f"v_mov_b32 v{Ee+4+k}, 0")
e(f"s_mov_b32 s{sSTATE}, 2")
e("s_branch G_again")
e("G_split:")
for k in range(4):
    e(f"v_mov_b32 v{SV+k}, v{Ee+4+k}")
    e(f"v_mov_b32 v{Ee+4+k}, 0")
e(f"s_mov_b32 s{sSTATE}, 1")
e("G_again:")
e("s_waitcnt lgkmcnt(0)")
e("s_barrier")
e(f"v_mov_b32 v{P}, 0\nv_mov_b32 v{P+1}, 0")
e(f"v_lshl_add_u32 v{TM}, v1, 3, v3")
e(f"ds_write_b64 v{TM}, {v(P,2)}")
e("s_waitcnt lgkmcnt(0)")
e("s_barrier")
e("s_branch G_batch")
e("G_epi:")
WV=40; BH=72; BL=80; DO=88
e(f"v_lshrrev_b32 v{DO}, 2, v1")
e(f"v_lshlrev_b32 v{DO}, 7, v{DO}")
e(f"v_and_b32 v{DO+1}, 3, v1")
e(f"v_lshl_add_u32 v{DO}, v{DO+1}, 5, v{DO}")
e(f"v_add_u32 v{DO}, {L_WV}, v{DO}")
for mt in range(4):
    for u in range(4):
        e(f"ds_read_b64_tr_b16 {v(WV+mt*8+u*2,2)}, v{DO} offset:{u*2048+mt*8}")
e("s_nop 4")
for i in range(8):
    e(f"v_cvt_pk_bf16_f32 v{BH+i}, v{ACC+2*i}, v{ACC+2*i+1}")
    e(f"v_lshlrev_b32 v{QB}, 16, v{BH+i}")
    e(f"v_and_b32 v{QB+1}, 0xffff0000, v{BH+i}")
    e(f"v_sub_f32 v{QB}, v{ACC+2*i}, v{QB}")
    e(f"v_sub_f32 v{QB+1}, v{ACC+2*i+1}, v{QB+1}")
    e(f"v_cvt_pk_bf16_f32 v{BL+i}, v{QB}, v{QB+1}")
e(f"v_and_b32 v{QB+2}, 15, v1")
e(f"v_lshrrev_b32 v{QB+3}, 4, v1")
e(f"v_lshlrev_b32 v{QB+4}, 7, v{QB+2}")
e(f"v_lshl_add_u32 v{QB+4}, v{QB+3}, 5, v{QB+4}")
e(f"v_cmp_gt_u32 vcc, {GS}, v{QB+2}")
e("s_waitcnt lgkmcnt(0)")
for mt in range(4):
    e(f"v_mfma_f32_16x16x32_bf16 {v(DO+mt*4,4)}, {v(WV+mt*8,4)}, {v(BL,4)}, 0")
for mt in range(4):
    e(f"v_mfma_f32_16x16x32_bf16 {v(DO+mt*4,4)}, {v(WV+mt*8+4,4)}, {v(BL+4,4)}, {v(DO+mt*4,4)}")
for mt in range(4):
    e(f"v_mfma_f32_16x16x32_bf16 {v(DO+mt*4,4)}, {v(WV+mt*8,4)}, {v(BH,4)}, {v(DO+mt*4,4)}")
for mt in range(4):
    e(f"v_mfma_f32_16x16x32_bf16 {v(DO+mt*4,4)}, {v(WV+mt*8+4,4)}, {v(BH+4,4)}, {v(DO+mt*4,4)}")
e("s_nop 7")
for i in range(8): e(f"v_cvt_pk_bf16_f32 v{ACC+i}, v{DO+2*i}, v{DO+2*i+1}")
e("s_and_saveexec_b64 s[84:85], vcc")
e(f"buffer_store_dwordx4 {v(ACC,4)}, v{QB+4}, s[32:35], s{sNODE} offen")
e(f"buffer_store_dwordx4 {v(ACC+4,4)}, v{QB+4}, s[32:35], s{sNODE} offen offset:16")
e("G_end:")
e("s_endpgm")
e('.section .rodata,"a"')
for name,nv in (("part_kernel",28),("gath_kernel",104)):
    e(f""".p2align 6
.amdhsa_kernel {name}
  .amdhsa_next_free_vgpr {nv}
  .amdhsa_next_free_sgpr 96
  .amdhsa_accum_offset {nv}
  .amdhsa_group_segment_fixed_size 0
  .amdhsa_kernarg_size 64
  .amdhsa_user_sgpr_count 2
  .amdhsa_user_sgpr_kernarg_segment_ptr 1
  .amdhsa_system_sgpr_workgroup_id_x 1
.end_amdhsa_kernel""")
dst = sys.argv[1] if len(sys.argv)>1 else 'gather_scatter__kernel_systems_refs_featgraph__graph.s'
open(dst,'w').write('\n'.join(out)+'\n')
```

```python
import sys, os
N=50000; E=800000
G1=240; CH=3336
GS=13; NB=241
SLOTB=G1*128; SLOT_BYTES=NB*SLOTB
GO_OFF=0x7d0000; ARR=0x8000
XO_OFF=0x7f0000
OC_OFF=0x800000
OV_OFF=0x810000
L_LIST=131072; CAP=5760
L_HIST=L_LIST+CAP*4; L_BASE=L_HIST+512; L_T=L_BASE+512; L_WV=L_T+512
L_IMG=32768; L_CNT=65536
assert L_HIST%512==0 and L_T%128==0 and L_WV+8192==163840
STAMP=int(os.environ.get('STAMP','0')); ST_OFF=0x1000000
PF0=int(os.environ.get('PF0','0')); PFPOS=int(os.environ.get('PFPOS','0'))
SLEEP=int(os.environ.get('SLEEP','4'))
KN="gather_scatter__kernel_systems_refs_featgraph__graph_kernel"
out=[]
def e(s): out.append(s)
def v(i,n=1): return f"v{i}" if n==1 else f"v[{i}:{i+n-1}]"
def stamp(k):
    if not STAMP: return
    e("s_memrealtime s[96:97]")
    e("s_waitcnt lgkmcnt(0)")
    if k==0:
        for j in range(1,8): e(f"s_mov_b32 s{88+j}, 0")
        e(f"s_mov_b32 s{88+k}, s96")
    else:
        e(f"s_cmp_eq_u32 s{88+k}, 0")
        e(f"s_cselect_b32 s{88+k}, s96, s{88+k}")
def stamp_out():
    if not STAMP: return
    e("s_mov_b64 exec, 1")
    e(f"s_add_u32 s96, s18, {ST_OFF}")
    e("s_addc_u32 s97, s19, 0")
    e("s_mov_b32 s98, 0x100000\ns_mov_b32 s99, 0x00020000")
    e("v_lshrrev_b32 v2, 6, v0")
    e("s_lshl_b32 s3, s2, 4")
    e("v_add_u32 v2, s3, v2")
    e("v_lshlrev_b32 v2, 5, v2")
    for k in range(8): e(f"v_mov_b32 v{4+k}, s{88+k}")
    e("buffer_store_dwordx4 v[4:7], v2, s[96:99], 0 offen")
    e("buffer_store_dwordx4 v[8:11], v2, s[96:99], 0 offen offset:16")
def srd(d, lo, size, off=0):
    if off:
        e(f"s_add_u32 s{d}, s{lo}, {off}"); e(f"s_addc_u32 s{d+1}, s{lo+1}, 0")
    else:
        e(f"s_mov_b32 s{d}, s{lo}"); e(f"s_mov_b32 s{d+1}, s{lo+1}")
    e(f"s_mov_b32 s{d+2}, {size}"); e(f"s_mov_b32 s{d+3}, 0x00020000")
def entry(dst, src, ent, gg, t1, t2):
    e(f"v_mul_u32_u24 {gg}, 40330, {dst}")
    e(f"v_lshrrev_b32 {gg}, 19, {gg}")
    e(f"v_mad_i32_i24 {t1}, {gg}, -13, {dst}")
    e(f"v_lshl_or_b32 {ent}, {src}, 7, s{sSIGN}")
    e(f"v_lshl_or_b32 {ent}, {t1}, 3, {ent}")
    e(f"v_lshrrev_b32 {t1}, 13, {src}")
    e(f"v_and_b32 {t2}, 15, {gg}")
    e(f"v_lshl_or_b32 {t1}, {t2}, 3, {t1}")
    e(f"v_lshl_or_b32 {ent}, {t1}, 24, {ent}")
def rawconv(raw, ent, cnt_s=None, idx=None, k=0):
    e(f"v_lshrrev_b32 v{TM+1}, 16, {raw}")
    e(f"v_and_b32 v{TM+2}, 0xffff, {raw}")
    entry(f"v{TM+1}", f"v{TM+2}", ent, f"v{TM+3}", f"v{TM+4}", f"v{TM+5}")
    e(f"v_lshrrev_b32 v{TM+3}, 4, v{TM+3}")
    e(f"v_cmp_eq_u32 vcc, s2, v{TM+3}")
    if cnt_s is not None:
        e(f"v_add_u32 v{TM+4}, {k}, {idx}")
        e(f"v_cmp_gt_u32 s[84:85], s{cnt_s}, v{TM+4}")
        e("s_and_b64 vcc, vcc, s[84:85]")
    e("s_nop 1")
    e(f"v_cndmask_b32 {ent}, 0, {ent}, vcc")

for l in open('gather_scatter__kernel_systems_refs_featgraph__graph.s.ref').read().split('\n'):
    if l.startswith('; @launch'): continue
    if l.startswith(';'): e(l)
    else: break
e(f"; @launch grid=({NB},1,1) block=(1024,1,1) lds=163840")
e('.amdgcn_target "amdgcn-amd-amdhsa--gfx950"\n.text')
ACC=4; QB=20; MB=28; AT=30; AA=34; VLO=36; VQT=37; VEN=38; VED=39
XA=40; XT=56; OH=72; LG=76; P=84; EN=88; ED=92; TM=94; SV=100; OC4=104; PFV=108
Ee=40; Rr=48; Bb=56; Aa=64
sW=68; sST=69; sCNT=70; sREM=71; sSTATE=72; sMSRC=73; sM78=74; sC=75; sT0=76; sT1=77; sBUFB=78; sSIGN=79; sM1FC=80; sNODE=81; sOW=82; sEOFF=83; sGO=87
e(f".globl {KN}\n.p2align 8\n.type {KN},@function\n{KN}:")
e(f"s_cmp_ge_u32 s2, {NB}")
e("s_cbranch_scc1 G_end")
stamp(0)
e("s_load_dwordx16 s[4:19], s[0:1], 0")
e("v_lshrrev_b32 v2, 6, v0")
e("v_and_b32 v1, 63, v0")
e(f"v_readfirstlane_b32 s{sW}, v2")
e(f"s_mov_b32 s{sMSRC}, 0x7fff80")
e(f"s_movk_i32 s{sM78}, 0x78")
e(f"s_mov_b32 s{sC}, 0xbe38aa3b")
e(f"s_mov_b32 s{sSIGN}, 0x80000000")
e(f"s_movk_i32 s{sM1FC}, 0x1fc")
e(f"s_mov_b32 s{sSTATE}, 0")
e(f"v_lshlrev_b32 v2, 4, v1")
e(f"v_lshlrev_b32 v3, 4, v0")
e(f"s_mul_i32 s{sEOFF}, s2, {CH*4}")
e(f"s_sub_u32 s{sT0}, {E*4}, s{sEOFF}")
e(f"s_max_i32 s{sT0}, s{sT0}, 0")
e(f"s_min_u32 s{sT0}, s{sT0}, {CH*4}")
e(f"v_cmp_gt_u32 s[52:53], s{sT0}, v3")
for k in range(4): e(f"v_mov_b32 v{P+k}, 0")
e("s_waitcnt lgkmcnt(0)")
srd(28, 6, E*4); srd(36, 8, E*4)
D_=40; S_=44; EN_=48; BK=52; RK=56
e("s_mov_b64 exec, s[52:53]")
e("s_cbranch_execz P_noload")
e(f"buffer_load_dwordx4 {v(D_,4)}, v3, s[36:39], s{sEOFF} offen")
e(f"buffer_load_dwordx4 {v(S_,4)}, v3, s[28:31], s{sEOFF} offen")
e("P_noload:")
e("s_mov_b64 exec, -1")
e(f"ds_write_b128 v3, {v(P,4)} offset:{L_IMG}")
e(f"ds_write_b128 v3, {v(P,4)} offset:{L_IMG+16384}")
e(f"v_lshlrev_b32 v{TM+3}, 3, v1")
e(f"v_and_b32 v{TM}, 15, v1")
e(f"v_lshrrev_b32 v{TM+1}, 4, v1")
e(f"s_cmp_eq_u32 s{sW}, 0")
e("s_cbranch_scc0 G_i1")
e(f"v_add_u32 v{TM+4}, {L_HIST}, v{TM+3}")
e(f"ds_write_b64 v{TM+4}, {v(P,2)}")
e(f"v_add_u32 v{TM+4}, {L_CNT}, v2")
e(f"ds_write_b128 v{TM+4}, {v(P,4)}")
e(f"v_mov_b32 v{TM+4}, {L_CNT+1024}")
e(f"v_mov_b32 v{EN}, -1\nv_mov_b32 v{EN+1}, -1")
e(f"ds_write_b64 v{TM+4}, {v(EN,2)}")
e("G_i1:")
e(f"v_lshlrev_b32 v{TM+4}, 2, v{TM+1}")
e(f"v_sub_u32 v{TM+4}, v{TM}, v{TM+4}")
e(f"v_mov_b32 v{P+2}, 0x3f80\nv_mov_b32 v{P+3}, 0x3f800000")
for r,(d0,d1) in enumerate([(0,1),(2,3)]):
    e(f"v_cmp_eq_u32 vcc, {d0}, v{TM+4}")
    e(f"v_cmp_eq_u32 s[46:47], {d1}, v{TM+4}")
    e(f"v_mov_b32 v{MB+r}, 0xf000f000")
    e(f"v_mov_b32 v{TM+5}, 0xf0000000")
    e(f"v_cndmask_b32 v{P+r}, 0, v{P+2}, vcc")
    e(f"v_cndmask_b32 v{P+r}, v{P+r}, v{P+3}, s[46:47]")
    e(f"v_cndmask_b32 v{MB+r}, v{MB+r}, v{TM+5}, vcc")
    e(f"v_mov_b32 v{TM+5}, 0x0000f000")
    e(f"v_cndmask_b32 v{MB+r}, v{MB+r}, v{TM+5}, s[46:47]")
e(f"s_cmp_eq_u32 s{sW}, 1")
e("s_cbranch_scc0 G_i2")
e(f"v_add_u32 v{TM+4}, {L_T}, v{TM+3}")
e(f"ds_write_b64 v{TM+4}, {v(P,2)}")
e("G_i2:")
srd(20, 4, N*128); srd(24, 18, SLOT_BYTES); srd(40, 18, G1*CH*4, OV_OFF); srd(32, 14, N*128)
e("s_waitcnt lgkmcnt(0)")
e("s_barrier")
stamp(1)
srd(44, 18, ARR+G1*128, GO_OFF)
srd(28, 16, 256)
e(f"s_lshl_b32 s{sGO}, s2, 7")
e(f"s_cmp_lg_u32 s{sW}, 0")
e("s_cbranch_scc1 P_nors")
e(f"v_mov_b32 v{TM+6}, 0")
e(f"s_cmp_ge_u32 s2, {G1}")
e("s_cbranch_scc1 P_mrs")
e("s_mov_b64 exec, 1")
e(f"buffer_store_dword v{TM+6}, v{TM+6}, s[44:47], s{sGO} offen sc1")
e("s_branch P_rsd")
e("P_mrs:")
e(f"v_lshlrev_b32 v{TM+7}, 7, v1")
for k in range(4):
    e(f"s_mov_b32 s{sT0}, {ARR+k*8192}")
    e(f"buffer_store_dword v{TM+6}, v{TM+7}, s[44:47], s{sT0} offen sc1")
e(f"v_mov_b32 v{TM+7}, 1")
e("s_mov_b64 exec, 1")
e("s_waitcnt vmcnt(0)")
e(f"buffer_store_dword v{TM+7}, v{TM+6}, s[28:31], 0 offen sc1")
e("P_rsd:")
e("s_mov_b64 exec, -1")
e("P_nors:")
e(f"s_cmp_ge_u32 s{sW}, 8")
e("s_cselect_b32 s36, s12, s10")
e("s_cselect_b32 s37, s13, s11")
e("s_mov_b32 s38, 8192\ns_mov_b32 s39, 0x00020000")
e(f"s_cselect_b32 s{sT0}, {L_WV}, 0")
e(f"s_and_b32 s{sT1}, s{sW}, 7")
e(f"s_lshl_b32 s{sT1}, s{sT1}, 10")
e(f"s_add_u32 m0, s{sT0}, s{sT1}")
e(f"s_lshl_b32 s{sNODE}, s2, 4")
e(f"buffer_load_dwordx4 v2, s[36:39], s{sT1} offen lds")
e(f"s_add_u32 s{sNODE}, s{sNODE}, s{sW}")
e(f"s_mul_i32 s{sNODE}, s{sNODE}, {GS*128}")
e(f"v_lshlrev_b32 v{TM+2}, 7, v{TM}")
e(f"v_lshl_add_u32 v{TM+2}, v{TM+1}, 4, v{TM+2}")
e(f"buffer_load_dwordx4 {v(72,4)}, v{TM+2}, s[20:23], s{sNODE} offen")
e(f"buffer_load_dwordx4 {v(76,4)}, v{TM+2}, s[20:23], s{sNODE} offen offset:64")
def prefetch():
    srd(36, 4, PF0*128)
    e(f"s_lshr_b32 s{sT0}, s2, 3")
    e(f"s_lshl_b32 s{sT0}, s{sT0}, 17")
    e(f"v_lshlrev_b32 v{PFV}, 7, v0")
    e(f"buffer_load_dword v{PFV+1}, v{PFV}, s[36:39], s{sT0} offen")
NPF=0
if PF0 and PFPOS==0: prefetch(); NPF=1
e(f"v_mov_b32 v2, 1")
e(f"v_mov_b32 v{TM+5}, {L_CNT}")
e("s_mov_b64 exec, s[52:53]")
e("s_cbranch_execz P_copy")
e(f"s_waitcnt vmcnt({3+NPF})")
for k in range(4):
    entry(v(D_+k), v(S_+k), v(EN_+k), v(BK+k), v(TM+2), v(TM+3))
    e(f"v_lshrrev_b32 v{BK+k}, 4, v{BK+k}")
    e(f"v_lshl_add_u32 v{TM+2}, v{BK+k}, 2, v{TM+5}")
    e(f"ds_add_rtn_u32 v{RK+k}, v{TM+2}, v2")
for k in range(4):
    e(f"s_waitcnt lgkmcnt({3-k})")
    e(f"v_add_u32 v{TM+2}, v{RK+k}, v{BK+k}")
    e(f"v_and_b32 v{TM+2}, 31, v{TM+2}")
    e(f"v_lshlrev_b32 v{TM+2}, 2, v{TM+2}")
    e(f"v_lshl_or_b32 v{TM+2}, v{BK+k}, 7, v{TM+2}")
    e(f"v_cmp_gt_u32 vcc, 32, v{RK+k}")
    e(f"s_and_saveexec_b64 s[50:51], vcc")
    e(f"ds_write_b32 v{TM+2}, v{EN_+k} offset:{L_IMG}")
    e(f"s_mov_b64 exec, s[50:51]")
e(f"v_max3_u32 v{TM+2}, v{RK}, v{RK+1}, v{RK+2}")
e(f"v_max_u32 v{TM+2}, v{TM+2}, v{RK+3}")
e(f"v_cmp_lt_u32 vcc, 31, v{TM+2}")
e("s_cbranch_vccz P_copy")
for k in range(4):
    e(f"v_cmp_lt_u32 vcc, 31, v{RK+k}")
    e(f"s_and_saveexec_b64 s[50:51], vcc")
    e(f"s_cbranch_execz P_ov{k}")
    e(f"ds_add_rtn_u32 v{TM+2}, v{TM+5}, v2 offset:1020")
    e(f"v_lshl_or_b32 v{TM+3}, v{D_+k}, 16, v{S_+k}")
    e(f"s_waitcnt lgkmcnt(0)")
    e(f"v_lshlrev_b32 v{TM+2}, 2, v{TM+2}")
    e(f"v_cmp_gt_u32 vcc, 8, v{TM+2}")
    e(f"v_add_u32 v{TM+4}, v{TM+5}, v{TM+2}")
    e(f"s_and_saveexec_b64 s[48:49], vcc")
    e(f"ds_write_b32 v{TM+4}, v{TM+3} offset:1024")
    e(f"s_andn2_b64 exec, s[48:49], exec")
    e(f"s_cbranch_execz P_ov{k}")
    e(f"v_subrev_u32 v{TM+2}, 8, v{TM+2}")
    e(f"buffer_store_dword v{TM+3}, v{TM+2}, s[40:43], s{sEOFF} offen sc1")
    e(f"s_waitcnt vmcnt(0)")
    e(f"P_ov{k}:")
    e(f"s_mov_b64 exec, s[50:51]")
e("P_copy:")
e("s_mov_b64 exec, -1")
e(f"v_lshrrev_b32 v{TM+2}, 3, v0")
e(f"v_mul_u32_u24 v{TM+2}, {SLOTB}, v{TM+2}")
e(f"v_and_b32 v{TM+3}, 7, v0")
e(f"v_lshl_add_u32 v{TM+2}, v{TM+3}, 4, v{TM+2}")
e(f"s_lshl_b32 s{sT0}, s2, 7")
e(f"s_add_u32 s{sT1}, s{sT0}, {128*SLOTB}")
e(f"s_waitcnt vmcnt({2+NPF}) lgkmcnt(0)")
e("s_barrier")
stamp(2)
e(f"s_cmp_ge_u32 s2, {G1}")
e("s_cbranch_scc1 P_nost")
e(f"s_cmp_lg_u32 s{sW}, 0")
e("s_cbranch_scc1 P_nord")
e("v_mov_b32 v111, 0")
e("buffer_load_dword v110, v111, s[28:31], 0 offen sc1")
e("P_nord:")
e(f"ds_read_b128 {v(40,4)}, v3 offset:{L_IMG}")
e(f"ds_read_b128 {v(44,4)}, v3 offset:{L_IMG+16384}")
e(f"ds_read_b32 v48, v{TM+5} offset:1020")
e(f"ds_read_b64 {v(50,2)}, v{TM+5} offset:1024")
e("s_waitcnt lgkmcnt(3)")
e(f"buffer_store_dwordx4 {v(40,4)}, v{TM+2}, s[24:27], s{sT0} offen sc1")
e("s_waitcnt lgkmcnt(2)")
e(f"buffer_store_dwordx4 {v(44,4)}, v{TM+2}, s[24:27], s{sT1} offen sc1")
e("v_cmp_eq_u32 vcc, 0, v0")
e("s_and_saveexec_b64 s[50:51], vcc")
e("s_cbranch_execz P_st2")
srd(36, 18, 0x20000, XO_OFF)
e(f"s_lshl_b32 s{sT0}, s2, 3")
e(f"s_lshl_b32 s{sT1}, s2, 2")
e(f"s_add_u32 s{sT1}, s{sT1}, {OC_OFF-XO_OFF}")
e("v_mov_b32 v49, 0")
e("s_waitcnt lgkmcnt(0)")
e("v_max_u32 v48, 2, v48")
e("v_subrev_u32 v48, 2, v48")
e(f"buffer_store_dwordx2 {v(50,2)}, v49, s[36:39], s{sT0} offen sc1")
e(f"buffer_store_dword v48, v49, s[36:39], s{sT1} offen sc1")
e("P_st2:")
e("s_mov_b64 exec, -1")
e("P_nost:")
e(f"s_lshl_b32 s{sBUFB}, s{sW}, 13")
e(f"v_lshlrev_b32 v{VQT}, 7, v{TM+1}")
e(f"v_add_u32 v{VQT}, {L_T}, v{VQT}")
e(f"v_and_b32 v{TM+4}, 7, v1")
e(f"v_lshlrev_b32 v{TM+5}, 1, v{TM+1}")
e(f"v_xor_b32 v{VLO}, v{TM+4}, v{TM+5}")
e(f"v_lshlrev_b32 v{VLO}, 4, v{VLO}")
e(f"v_and_b32 v{TM+4}, 6, v{TM}")
e(f"v_xor_b32 v{TM+4}, v{TM+4}, v{TM+1}")
e(f"v_lshlrev_b32 v{TM+4}, 4, v{TM+4}")
e(f"v_lshl_add_u32 v{AA}, v{TM}, 7, v{TM+4}")
e(f"v_add_u32 v{AA}, s{sBUFB}, v{AA}")
e(f"v_xor_b32 v{AA+1}, 64, v{AA}")
e(f"v_lshrrev_b32 v{TM+4}, 2, v1")
e(f"v_lshlrev_b32 v{TM+4}, 7, v{TM+4}")
e(f"v_and_b32 v{TM+5}, 3, v1")
e(f"v_lshl_add_u32 v{TM+4}, v{TM+5}, 3, v{TM+4}")
e(f"v_bfe_u32 v{TM+5}, v1, 3, 2")
e(f"v_lshl_add_u32 v{AT}, v{TM+5}, 5, v{TM+4}")
e(f"v_add_u32 v{AT}, s{sBUFB}, v{AT}")
for t in range(1,4): e(f"v_xor_b32 v{AT+t}, {t*32}, v{AT}")
e(f"v_bfe_u32 v{TM+4}, v1, 2, 2")
e(f"v_lshl_add_u32 v{TM+4}, v{TM+1}, 3, v{TM+4}")
e(f"v_lshlrev_b32 v{TM+4}, 7, v{TM+4}")
e(f"v_and_b32 v{TM+5}, 3, v1")
e(f"v_lshl_add_u32 v{TM+4}, v{TM+5}, 4, v{TM+4}")
WQ=[56,64,84,100]
for mt in range(4):
    for s in range(2):
        for h in range(2):
            e(f"ds_read_b64_tr_b16 {v(WQ[mt]+s*4+h*2,2)}, v{TM+4} offset:{s*4096+h*512+(mt//2)*64+(mt%2)*8}")
e("s_waitcnt vmcnt(0)")
for mt in range(4):
    e(f"s_waitcnt lgkmcnt({12-4*mt})")
    e(f"v_mfma_f32_16x16x32_bf16 {v(ACC+mt*4,4)}, {v(WQ[mt],4)}, {v(72,4)}, 0")
    e(f"v_mfma_f32_16x16x32_bf16 {v(ACC+mt*4,4)}, {v(WQ[mt]+4,4)}, {v(76,4)}, {v(ACC+mt*4,4)}")
e("s_barrier")
stamp(3)
e(f"s_cmp_lg_u32 s{sW}, 0")
e("s_cbranch_scc1 P_nopoll")
e(f"s_mov_b32 s{sT1}, 0x40000")
e(f"s_cmp_ge_u32 s2, {G1}")
e("s_cbranch_scc1 P_master")
e("s_mov_b64 exec, 1")
e(f"v_mov_b32 v{TM+4}, 0")
e(f"v_cmp_eq_u32 vcc, 1, v110")
e("s_cbranch_vccnz P_arr")
e("P_rpoll:")
e(f"buffer_load_dword v{TM+5}, v{TM+4}, s[28:31], 0 offen sc1")
e(f"s_sub_u32 s{sT1}, s{sT1}, 1")
e("s_cbranch_scc1 P_pdone")
e("s_waitcnt vmcnt(0)")
e(f"v_cmp_eq_u32 vcc, 1, v{TM+5}")
e("s_cbranch_vccz P_rpoll")
e("P_arr:")
e(f"s_add_u32 s{sT0}, s{sGO}, {ARR}")
e(f"buffer_store_dword v2, v{TM+4}, s[44:47], s{sT0} offen sc1")
e("P_poll:")
e(f"buffer_load_dword v{TM+5}, v{TM+4}, s[44:47], s{sGO} offen sc1")
e(f"s_sub_u32 s{sT1}, s{sT1}, 1")
e("s_cbranch_scc1 P_pdone")
e("s_waitcnt vmcnt(0)")
e(f"v_cmp_eq_u32 vcc, 1, v{TM+5}")
e("s_cbranch_vccnz P_pdone")
if SLEEP: e(f"s_sleep {SLEEP}")
e("s_branch P_poll")
e("P_master:")
e(f"v_lshlrev_b32 v{TM+4}, 7, v1")
e(f"v_cmp_le_u32 s[48:49], {G1-192}, v1")
e("P_mpoll:")
for k in range(4):
    e(f"s_mov_b32 s{sT0}, {ARR+k*8192}")
    e(f"buffer_load_dword v{40+k}, v{TM+4}, s[44:47], s{sT0} offen sc1")
e(f"s_sub_u32 s{sT1}, s{sT1}, 1")
e("s_cbranch_scc1 P_mdone")
e("s_waitcnt vmcnt(0)")
e("v_and_b32 v40, v40, v41")
e("v_cmp_eq_u32 vcc, 1, v43")
e("v_and_b32 v40, v40, v42")
e("s_or_b64 s[50:51], vcc, s[48:49]")
e("v_cmp_eq_u32 vcc, 1, v40")
e("s_and_b64 vcc, vcc, s[50:51]")
e("s_cmp_eq_u64 vcc, -1")
e("s_cbranch_scc0 P_mpoll")
e("P_mdone:")
e(f"v_lshlrev_b32 v{TM+4}, 7, v1")
for k in range(4):
    e(f"s_mov_b32 s{sT0}, {k*8192}")
    e(f"buffer_store_dword v2, v{TM+4}, s[44:47], s{sT0} offen sc1")
e("P_pdone:")
e("s_mov_b64 exec, -1")
e("P_nopoll:")
NPF2=0
if PF0 and PFPOS==1: prefetch(); NPF2=1
for mt in range(4):
    e(f"v_cvt_pk_bf16_f32 v{QB+mt*2}, v{ACC+mt*4}, v{ACC+mt*4+1}")
    e(f"v_cvt_pk_bf16_f32 v{QB+mt*2+1}, v{ACC+mt*4+2}, v{ACC+mt*4+3}")
for i in range(16): e(f"v_mov_b32 v{ACC+i}, 0")
srd(36, 18, 0x20000, XO_OFF)
e(f"s_mul_i32 s{sT0}, s2, {SLOTB}")
e(f"s_add_u32 s{sT1}, s{sT0}, 16384")
e("s_barrier")
stamp(4)
e(f"buffer_load_dwordx4 {v(Ee,4)}, v3, s[24:27], s{sT0} offen sc1")
e(f"s_cmp_ge_u32 s{sW}, 14")
e("s_cbranch_scc1 G_xo")
e(f"buffer_load_dwordx4 {v(Ee+4,4)}, v3, s[24:27], s{sT1} offen sc1")
e(f"v_mov_b32 v3, {L_HIST}")
e("s_waitcnt vmcnt(0)")
e("s_branch G_batch")
e("G_xo:")
e(f"v_subrev_u32 v{TM}, {896*16}, v3")
e(f"buffer_load_dwordx4 {v(Rr,4)}, v{TM}, s[36:39], 0 offen sc1")
e(f"s_movk_i32 s{sT1}, {G1*2}")
e(f"v_lshrrev_b32 v{TM}, 2, v{TM}")
e(f"v_mov_b32 v3, {L_HIST}")
e("s_waitcnt vmcnt(0)")
for k in range(4): rawconv(v(Rr+k), v(Ee+4+k), sT1, v(TM), k)
e("G_batch:")
for k in range(8):
    e(f"v_cmp_gt_i32 s[{52+2*k}:{53+2*k}], 0, v{Ee+k}")
    e(f"v_lshrrev_b32 v{Bb+k}, 22, v{Ee+k}")
    e(f"v_and_or_b32 v{Bb+k}, v{Bb+k}, s{sM1FC}, v3")
for k in range(8):
    e(f"s_mov_b64 exec, s[{52+2*k}:{53+2*k}]")
    e(f"ds_add_rtn_u32 v{Rr+k}, v{Bb+k}, v2")
e("s_mov_b64 exec, -1")
e(f"v_lshl_add_u32 v{TM}, v1, 3, v3")
e(f"s_cmp_lg_u32 s{sSTATE}, 0")
e("s_cbranch_scc1 G_nooc")
e(f"v_lshlrev_b32 v{TM+1}, 4, v1")
e(f"s_mov_b32 s{sT0}, {OC_OFF-XO_OFF}")
e(f"buffer_load_dwordx4 {v(OC4,4)}, v{TM+1}, s[36:39], s{sT0} offen sc1")
e("G_nooc:")
e(f"s_waitcnt lgkmcnt(0)")
e("s_barrier")
stamp(5)
c0,c1,s_,tot,vv,inc = P,P+1,P+2,P+3,TM+1,TM+2
e(f"ds_read_b64 {v(c0,2)}, v{TM}")
e(f"v_and_b32 v{TM+3}, 3, v1")
e(f"v_cmp_eq_u32 vcc, 3, v{TM+3}")
e("s_waitcnt lgkmcnt(0)")
e(f"v_add_u32 v{s_}, v{c0}, v{c1}")
e("s_nop 1")
e(f"v_add_u32_dpp v{tot}, v{s_}, v{s_} quad_perm:[1,0,3,2] row_mask:0xf bank_mask:0xf")
e("s_nop 1")
e(f"v_add_u32_dpp v{tot}, v{tot}, v{tot} quad_perm:[2,3,0,1] row_mask:0xf bank_mask:0xf")
e(f"v_sub_u32 v{TM+3}, 0, v{tot}")
e(f"v_and_b32 v{TM+3}, 31, v{TM+3}")
e(f"v_cndmask_b32 v{TM+3}, 0, v{TM+3}, vcc")
e(f"v_add_u32 v{vv}, v{s_}, v{TM+3}")
e(f"v_mov_b32 v{inc}, v{vv}")
for sh in (1,2,4,8):
    e("s_nop 1")
    e(f"v_add_u32_dpp v{inc}, v{inc}, v{inc} row_shr:{sh} row_mask:0xf bank_mask:0xf bound_ctrl:0")
e("s_nop 1")
e(f"v_add_u32_dpp v{inc}, v{inc}, v{inc} row_bcast:15 row_mask:0xa bank_mask:0xf")
e("s_nop 1")
e(f"v_add_u32_dpp v{inc}, v{inc}, v{inc} row_bcast:31 row_mask:0xc bank_mask:0xf")
e(f"s_lshl_b32 s{sT1}, s{sW}, 2")
e(f"v_sub_u32 v{vv}, v{inc}, v{vv}")
e(f"v_readlane_b32 s{sT0}, v{inc}, 63")
e(f"v_readlane_b32 s{sCNT}, v{tot}, s{sT1}")
e(f"v_readlane_b32 s{sST}, v{vv}, s{sT1}")
e(f"v_add_u32 v{c1}, v{vv}, v{c0}")
e(f"v_mov_b32 v{TM+3}, {L_LIST}")
e(f"v_lshl_add_u32 v{c0}, v{vv}, 2, v{TM+3}")
e(f"v_lshl_add_u32 v{c1}, v{c1}, 2, v{TM+3}")
e(f"s_cmp_gt_u32 s{sT0}, {CAP}")
e("s_cbranch_scc1 G_split")
e(f"ds_write_b64 v{TM}, {v(c0,2)} offset:512")
e(f"s_add_u32 s{sT0}, s{sST}, s{sCNT}")
e(f"s_add_u32 s{sREM}, s{sCNT}, 31")
e(f"s_lshr_b32 s{sREM}, s{sREM}, 5")
e(f"s_lshl_b32 s{sT1}, s{sREM}, 5")
e(f"s_sub_u32 s{sT1}, s{sT1}, s{sCNT}")
e(f"v_add_u32 v{TM+4}, s{sT0}, v1")
e(f"v_lshl_add_u32 v{TM+4}, v{TM+4}, 2, v{TM+3}")
e(f"v_mov_b32 v{TM+5}, 0x78")
e(f"v_cmp_gt_u32 vcc, s{sT1}, v1")
e("s_and_saveexec_b64 s[84:85], vcc")
e(f"ds_write_b32 v{TM+4}, v{TM+5}")
e("s_mov_b64 exec, -1")
e("s_waitcnt lgkmcnt(0)")
for k in range(8): e(f"ds_read_b32 v{Aa+k}, v{Bb+k} offset:512")
e(f"s_lshl_b32 s{sT0}, s{sST}, 2")
e(f"s_add_u32 s{sT0}, s{sT0}, {L_LIST}")
e(f"v_lshrrev_b32 v{VEN}, 3, v1")
e(f"v_lshlrev_b32 v{VEN}, 4, v{VEN}")
e(f"v_add_u32 v{VEN}, s{sT0}, v{VEN}")
e(f"v_and_b32 v{VED}, 7, v1")
e(f"v_bfe_u32 v{TM+4}, v1, 3, 1")
e(f"v_lshl_add_u32 v{VED}, v{VED}, 2, v{TM+4}")
e(f"v_lshlrev_b32 v{VED}, 2, v{VED}")
e(f"v_add_u32 v{VED}, s{sT0}, v{VED}")
for k in range(8):
    e(f"s_waitcnt lgkmcnt({7 if k else 7})" if False else f"s_waitcnt lgkmcnt(7)")
    e(f"v_lshl_add_u32 v{Aa+k}, v{Rr+k}, 2, v{Aa+k}")
    e(f"s_mov_b64 exec, s[{52+2*k}:{53+2*k}]")
    e(f"ds_write_b32 v{Aa+k}, v{Ee+k}")
    e("s_mov_b64 exec, -1")
e("s_waitcnt lgkmcnt(0)")
e("s_barrier")
stamp(6)
def dma(buf, en):
    e(f"s_add_u32 m0, s{sBUFB}, {buf*4096}")
    for i in range(4):
        e(f"v_and_or_b32 v{TM+i}, v{en+i}, s{sMSRC}, v{VLO}")
        e(f"buffer_load_dwordx4 v{TM+i}, s[20:23], 0 offen lds")
        if i<3: e("s_add_u32 m0, m0, 1024")
e(f"s_cmp_eq_u32 s{sREM}, 0")
e("s_cbranch_scc1 G_next")
e(f"ds_read_b128 {v(EN,4)}, v{VEN}")
e(f"ds_read_b128 {v(P,4)}, v{VEN} offset:128")
e(f"ds_read2_b32 {v(ED,2)}, v{VED} offset0:0 offset1:2")
e("s_waitcnt lgkmcnt(2)")
dma(0,EN)
e(f"s_cmp_lt_u32 s{sREM}, 2")
e("s_waitcnt lgkmcnt(0)")
e("s_cbranch_scc1 G_loop")
dma(1,P)
e("G_loop:")
def tile(buf):
    L=f"G_t{buf}"
    e(f"v_and_or_b32 v{TM+4}, v{ED}, s{sM78}, v{VQT}")
    e(f"v_and_or_b32 v{TM+5}, v{ED+1}, s{sM78}, v{VQT}")
    e(f"ds_read_b64 {v(OH,2)}, v{TM+4}")
    e(f"ds_read_b64 {v(OH+2,2)}, v{TM+5}")
    e(f"ds_read_b128 {v(EN,4)}, v{VEN} offset:{256+buf*128}")
    e(f"ds_read2_b32 {v(ED,2)}, v{VED} offset0:{32+buf*32} offset1:{34+buf*32}")
    e(f"s_cmp_lg_u32 s{sREM}, 1")
    e("s_waitcnt lgkmcnt(2)")
    e(f"v_mfma_f32_16x16x16_bf16 {v(LG,4)}, {v(OH,2)}, {v(MB,2)}, 0")
    e(f"v_mfma_f32_16x16x16_bf16 {v(LG+4,4)}, {v(OH+2,2)}, {v(MB,2)}, 0")
    e("s_waitcnt vmcnt(4)")
    e(f"s_cbranch_scc1 {L}a")
    e("s_waitcnt vmcnt(0)")
    e(f"{L}a:")
    for T in range(2):
        for s in range(2):
            e(f"ds_read_b128 {v(XA+T*8+s*4,4)}, v{AA+s} offset:{buf*4096+T*2048}")
    for t in range(4):
        for h in range(2):
            e(f"ds_read_b64_tr_b16 {v(XT+t*4+h*2,2)}, v{AT+t} offset:{buf*4096+h*2048}")
    e("s_waitcnt lgkmcnt(11)")
    e(f"v_mfma_f32_16x16x32_bf16 {v(LG,4)}, {v(XA,4)}, {v(QB,4)}, {v(LG,4)}")
    e("s_waitcnt lgkmcnt(10)")
    e(f"v_mfma_f32_16x16x32_bf16 {v(LG,4)}, {v(XA+4,4)}, {v(QB+4,4)}, {v(LG,4)}")
    e("s_waitcnt lgkmcnt(9)")
    e(f"v_mfma_f32_16x16x32_bf16 {v(LG+4,4)}, {v(XA+8,4)}, {v(QB,4)}, {v(LG+4,4)}")
    e("s_waitcnt lgkmcnt(8)")
    e(f"v_mfma_f32_16x16x32_bf16 {v(LG+4,4)}, {v(XA+12,4)}, {v(QB+4,4)}, {v(LG+4,4)}")
    e(f"s_cmp_lt_u32 s{sREM}, 3")
    e("s_waitcnt lgkmcnt(0)")
    e(f"s_cbranch_scc1 {L}b")
    dma(buf,EN)
    e(f"{L}b:")
    e("s_nop 5")
    for i in range(8): e(f"v_mul_f32 v{LG+i}, s{sC}, v{LG+i}")
    for i in range(8): e(f"v_exp_f32 v{LG+i}, v{LG+i}")
    for i in range(8): e(f"v_add_f32 v{LG+i}, 1.0, v{LG+i}")
    for i in range(8): e(f"v_rcp_f32 v{LG+i}, v{LG+i}")
    if buf==1:
        e(f"v_add_u32 v{VEN}, 256, v{VEN}")
        e(f"v_add_u32 v{VED}, 256, v{VED}")
    else: e("s_nop 0")
    for i in range(4): e(f"v_cvt_pk_bf16_f32 v{P+i}, v{LG+2*i}, v{LG+2*i+1}")
    e(f"s_sub_u32 s{sREM}, s{sREM}, 1")
    e(f"s_cmp_eq_u32 s{sREM}, 0")
    for t in range(4):
        e(f"v_mfma_f32_16x16x32_bf16 {v(ACC+t*4,4)}, {v(XT+t*4,4)}, {v(P,4)}, {v(ACC+t*4,4)}")
tile(0)
e("s_cbranch_scc1 G_next")
tile(1)
e("s_cbranch_scc0 G_loop")
e("G_next:")
stamp(7)
e(f"s_cmp_eq_u32 s{sSTATE}, 1")
e("s_cbranch_scc1 G_half2")
e(f"s_cmp_eq_u32 s{sSTATE}, 3")
e("s_cbranch_scc1 G_have")
e(f"s_mov_b32 s{sSTATE}, 3")
e(f"v_cmp_gt_u32 s[84:85], {G1//4}, v1")
e("s_waitcnt vmcnt(0)")
for k in range(4): e(f"v_cmp_ne_u32 s[{44+2*k}:{45+2*k}], 0, v{OC4+k}")
for k in range(4): e(f"s_and_b64 s[{44+2*k}:{45+2*k}], s[{44+2*k}:{45+2*k}], s[84:85]")
e("G_have:")
for k in range(4):
    e(f"s_ff1_i32_b64 s{sOW}, s[{44+2*k}:{45+2*k}]")
    e(f"s_cmp_lg_i32 s{sOW}, -1")
    e(f"s_cbranch_scc1 G_f{k}")
e("s_branch G_epi")
for k in range(4):
    e(f"G_f{k}:")
    e(f"s_bitset0_b64 s[{44+2*k}:{45+2*k}], s{sOW}")
    e(f"v_readlane_b32 s{sOW+4}, v{OC4+k}, s{sOW}")
    e(f"s_lshl_b32 s{sOW}, s{sOW}, 2")
    e(f"s_add_u32 s{sOW}, s{sOW}, {k}")
    e("s_branch G_ovl")
e("G_ovl:")
e(f"s_mul_i32 s{sT0}, s{sOW}, {CH*4}")
e(f"v_lshlrev_b32 v{TM}, 4, v0")
e(f"buffer_load_dwordx4 {v(Rr,4)}, v{TM}, s[40:43], s{sT0} offen sc1")
e(f"v_lshlrev_b32 v{TM}, 2, v0")
e("s_waitcnt vmcnt(0)")
for k in range(4): rawconv(v(Rr+k), v(Ee+k), sOW+4, v(TM), k)
for k in range(4): e(f"v_mov_b32 v{Ee+4+k}, 0")
e("s_branch G_again")
e("G_half2:")
for k in range(4):
    e(f"v_mov_b32 v{Ee+k}, v{SV+k}")
    e(f"v_mov_b32 v{Ee+4+k}, 0")
e(f"s_mov_b32 s{sSTATE}, 2")
e("s_branch G_again")
e("G_split:")
for k in range(4):
    e(f"v_mov_b32 v{SV+k}, v{Ee+4+k}")
    e(f"v_mov_b32 v{Ee+4+k}, 0")
e(f"s_mov_b32 s{sSTATE}, 1")
e("G_again:")
e("s_waitcnt lgkmcnt(0)")
e("s_barrier")
e(f"v_mov_b32 v{P}, 0\nv_mov_b32 v{P+1}, 0")
e(f"v_lshl_add_u32 v{TM}, v1, 3, v3")
e(f"ds_write_b64 v{TM}, {v(P,2)}")
e("s_waitcnt lgkmcnt(0)")
e("s_barrier")
e("s_branch G_batch")
e("G_epi:")
WV=40; BH=72; BL=80; DO=88
e(f"v_lshrrev_b32 v{DO}, 2, v1")
e(f"v_lshlrev_b32 v{DO}, 7, v{DO}")
e(f"v_and_b32 v{DO+1}, 3, v1")
e(f"v_lshl_add_u32 v{DO}, v{DO+1}, 5, v{DO}")
e(f"v_add_u32 v{DO}, {L_WV}, v{DO}")
for mt in range(4):
    for u in range(4):
        e(f"ds_read_b64_tr_b16 {v(WV+mt*8+u*2,2)}, v{DO} offset:{u*2048+mt*8}")
for i in range(8):
    e(f"v_cvt_pk_bf16_f32 v{BH+i}, v{ACC+2*i}, v{ACC+2*i+1}")
    e(f"v_lshlrev_b32 v{QB}, 16, v{BH+i}")
    e(f"v_and_b32 v{QB+1}, 0xffff0000, v{BH+i}")
    e(f"v_sub_f32 v{QB}, v{ACC+2*i}, v{QB}")
    e(f"v_sub_f32 v{QB+1}, v{ACC+2*i+1}, v{QB+1}")
    e(f"v_cvt_pk_bf16_f32 v{BL+i}, v{QB}, v{QB+1}")
e(f"v_and_b32 v{QB+2}, 15, v1")
e(f"v_lshrrev_b32 v{QB+3}, 4, v1")
e(f"v_lshlrev_b32 v{QB+4}, 7, v{QB+2}")
e(f"v_lshl_add_u32 v{QB+4}, v{QB+3}, 5, v{QB+4}")
e(f"v_cmp_gt_u32 vcc, {GS}, v{QB+2}")
e("s_waitcnt lgkmcnt(0)")
for B,h,z in ((BL,0,1),(BL+4,4,0),(BH,0,0),(BH+4,4,0)):
    for mt in range(4):
        e(f"v_mfma_f32_16x16x32_bf16 {v(DO+mt*4,4)}, {v(WV+mt*8+h,4)}, {v(B,4)}, {'0' if z else v(DO+mt*4,4)}")
e("s_nop 7")
for i in range(8): e(f"v_cvt_pk_bf16_f32 v{ACC+i}, v{DO+2*i}, v{DO+2*i+1}")
e("s_and_saveexec_b64 s[84:85], vcc")
e(f"buffer_store_dwordx4 {v(ACC,4)}, v{QB+4}, s[32:35], s{sNODE} offen")
e(f"buffer_store_dwordx4 {v(ACC+4,4)}, v{QB+4}, s[32:35], s{sNODE} offen offset:16")
stamp_out()
e("G_end:")
e("s_endpgm")
e('.section .rodata,"a"')
e(f""".p2align 6
.amdhsa_kernel {KN}
  .amdhsa_next_free_vgpr 112
  .amdhsa_next_free_sgpr 100
  .amdhsa_accum_offset 112
  .amdhsa_group_segment_fixed_size 0
  .amdhsa_kernarg_size 64
  .amdhsa_user_sgpr_count 2
  .amdhsa_user_sgpr_kernarg_segment_ptr 1
  .amdhsa_system_sgpr_workgroup_id_x 1
.end_amdhsa_kernel""")
dst = sys.argv[1] if len(sys.argv)>1 else 'gather_scatter__kernel_systems_refs_featgraph__graph.s'
open(dst,'w').write('\n'.join(out)+'\n')
```

```python
import sys, os
N=50000; E=800000
G1=240; CH=3336
GS=13; NB=241
SLOTB=G1*128; SLOT_BYTES=NB*SLOTB
GO_OFF=0x7d0000; ARR=0x8000
XO_OFF=0x7f0000
OC_OFF=0x800000
OV_OFF=0x810000
L_LIST=131072; CAP=5760
L_HIST=L_LIST+CAP*4; L_BASE=L_HIST+512; L_T=L_BASE+512; L_WV=L_T+512
L_IMG=32768; L_CNT=65536
assert L_HIST%512==0 and L_T%128==0 and L_WV+8192==163840
STAMP=int(os.environ.get('STAMP','0')); ST_OFF=0x1000000
PF0=int(os.environ.get('PF0','0')); PFPOS=int(os.environ.get('PFPOS','0'))
SLEEP=int(os.environ.get('SLEEP','4'))
KN="gather_scatter__kernel_systems_refs_featgraph__graph_kernel"
out=[]
def e(s): out.append(s)
def v(i,n=1): return f"v{i}" if n==1 else f"v[{i}:{i+n-1}]"
def stamp(k):
    if not STAMP: return
    e("s_memrealtime s[96:97]")
    e("s_waitcnt lgkmcnt(0)")
    if k==0:
        for j in range(1,8): e(f"s_mov_b32 s{88+j}, 0")
        e(f"s_mov_b32 s{88+k}, s96")
    else:
        e(f"s_cmp_eq_u32 s{88+k}, 0")
        e(f"s_cselect_b32 s{88+k}, s96, s{88+k}")
def stamp_out():
    if not STAMP: return
    if STAMP==2:
        e("s_waitcnt vmcnt(0)")
        e("s_memrealtime s[96:97]")
        e("s_mov_b64 exec, 1")
        srd(28, 16, 256)
        e("v_mov_b32 v2, 0")
        e("s_not_b32 s3, s88")
        e("v_mov_b32 v3, s3")
        e("buffer_atomic_umax v3, v2, s[28:31], 0 offen offset:8")
        e("s_not_b32 s3, s92")
        e("v_mov_b32 v12, s3")
        e("buffer_atomic_umax v12, v2, s[28:31], 0 offen offset:12")
        for k in range(8):
            e(f"v_mov_b32 v{4+k}, s{88+k}")
            e(f"buffer_atomic_umax v{4+k}, v2, s[28:31], 0 offen offset:{16+4*k}")
        e("s_waitcnt lgkmcnt(0)")
        e("v_mov_b32 v13, s96")
        e("buffer_atomic_umax v13, v2, s[28:31], 0 offen offset:48")
        return
    e("s_mov_b64 exec, 1")
    e(f"s_add_u32 s96, s18, {ST_OFF}")
    e("s_addc_u32 s97, s19, 0")
    e("s_mov_b32 s98, 0x100000\ns_mov_b32 s99, 0x00020000")
    e("v_lshrrev_b32 v2, 6, v0")
    e("s_lshl_b32 s3, s2, 4")
    e("v_add_u32 v2, s3, v2")
    e("v_lshlrev_b32 v2, 5, v2")
    for k in range(8): e(f"v_mov_b32 v{4+k}, s{88+k}")
    e("buffer_store_dwordx4 v[4:7], v2, s[96:99], 0 offen")
    e("buffer_store_dwordx4 v[8:11], v2, s[96:99], 0 offen offset:16")
def srd(d, lo, size, off=0):
    if off:
        e(f"s_add_u32 s{d}, s{lo}, {off}"); e(f"s_addc_u32 s{d+1}, s{lo+1}, 0")
    else:
        e(f"s_mov_b32 s{d}, s{lo}"); e(f"s_mov_b32 s{d+1}, s{lo+1}")
    e(f"s_mov_b32 s{d+2}, {size}"); e(f"s_mov_b32 s{d+3}, 0x00020000")
def entry(dst, src, ent, gg, t1, t2):
    e(f"v_mul_u32_u24 {gg}, 40330, {dst}")
    e(f"v_lshrrev_b32 {gg}, 19, {gg}")
    e(f"v_mad_i32_i24 {t1}, {gg}, -13, {dst}")
    e(f"v_lshl_or_b32 {ent}, {src}, 7, s{sSIGN}")
    e(f"v_lshl_or_b32 {ent}, {t1}, 3, {ent}")
    e(f"v_lshrrev_b32 {t1}, 13, {src}")
    e(f"v_and_b32 {t2}, 15, {gg}")
    e(f"v_lshl_or_b32 {t1}, {t2}, 3, {t1}")
    e(f"v_lshl_or_b32 {ent}, {t1}, 24, {ent}")
def rawconv(raw, ent, cnt_s=None, idx=None, k=0):
    e(f"v_lshrrev_b32 v{TM+1}, 16, {raw}")
    e(f"v_and_b32 v{TM+2}, 0xffff, {raw}")
    entry(f"v{TM+1}", f"v{TM+2}", ent, f"v{TM+3}", f"v{TM+4}", f"v{TM+5}")
    e(f"v_lshrrev_b32 v{TM+3}, 4, v{TM+3}")
    e(f"v_cmp_eq_u32 vcc, s2, v{TM+3}")
    if cnt_s is not None:
        e(f"v_add_u32 v{TM+4}, {k}, {idx}")
        e(f"v_cmp_gt_u32 s[84:85], s{cnt_s}, v{TM+4}")
        e("s_and_b64 vcc, vcc, s[84:85]")
    e("s_nop 1")
    e(f"v_cndmask_b32 {ent}, 0, {ent}, vcc")

for l in open('gather_scatter__kernel_systems_refs_featgraph__graph.s.ref').read().split('\n'):
    if l.startswith('; @launch'): continue
    if l.startswith(';'): e(l)
    else: break
e(f"; @launch grid=({NB},1,1) block=(1024,1,1) lds=163840")
e('.amdgcn_target "amdgcn-amd-amdhsa--gfx950"\n.text')
ACC=4; QB=20; MB=28; AT=30; AA=34; VLO=36; VQT=37; VEN=38; VED=39
XA=40; XT=56; OH=72; LG=76; P=84; EN=88; ED=92; TM=94; SV=100; OC4=104; PFV=108
Ee=40; Rr=48; Bb=56; Aa=64
sW=68; sST=69; sCNT=70; sREM=71; sSTATE=72; sMSRC=73; sM78=74; sC=75; sT0=76; sT1=77; sBUFB=78; sSIGN=79; sM1FC=80; sNODE=81; sOW=82; sEOFF=83; sGO=87
e(f".globl {KN}\n.p2align 8\n.type {KN},@function\n{KN}:")
e(f"s_cmp_ge_u32 s2, {NB}")
e("s_cbranch_scc1 G_end")
stamp(0)
e("s_load_dwordx16 s[4:19], s[0:1], 0")
e("v_lshrrev_b32 v2, 6, v0")
e("v_and_b32 v1, 63, v0")
e(f"v_readfirstlane_b32 s{sW}, v2")
e(f"s_mov_b32 s{sMSRC}, 0x7fff80")
e(f"s_movk_i32 s{sM78}, 0x78")
e(f"s_mov_b32 s{sC}, 0xbe38aa3b")
e(f"s_mov_b32 s{sSIGN}, 0x80000000")
e(f"s_movk_i32 s{sM1FC}, 0x1fc")
e(f"s_mov_b32 s{sSTATE}, 0")
e(f"v_lshlrev_b32 v2, 4, v1")
e(f"v_lshlrev_b32 v3, 4, v0")
e(f"s_mul_i32 s{sEOFF}, s2, {CH*4}")
e(f"s_sub_u32 s{sT0}, {E*4}, s{sEOFF}")
e(f"s_max_i32 s{sT0}, s{sT0}, 0")
e(f"s_min_u32 s{sT0}, s{sT0}, {CH*4}")
e(f"v_cmp_gt_u32 s[52:53], s{sT0}, v3")
for k in range(4): e(f"v_mov_b32 v{P+k}, 0")
e("s_waitcnt lgkmcnt(0)")
srd(28, 6, E*4); srd(36, 8, E*4)
D_=40; S_=44; EN_=48; BK=52; RK=56
e("s_mov_b64 exec, s[52:53]")
e("s_cbranch_execz P_noload")
e(f"buffer_load_dwordx4 {v(D_,4)}, v3, s[36:39], s{sEOFF} offen")
e(f"buffer_load_dwordx4 {v(S_,4)}, v3, s[28:31], s{sEOFF} offen")
e("P_noload:")
e("s_mov_b64 exec, -1")
e(f"ds_write_b128 v3, {v(P,4)} offset:{L_IMG}")
e(f"ds_write_b128 v3, {v(P,4)} offset:{L_IMG+16384}")
e(f"v_lshlrev_b32 v{TM+3}, 3, v1")
e(f"v_and_b32 v{TM}, 15, v1")
e(f"v_lshrrev_b32 v{TM+1}, 4, v1")
e(f"s_cmp_eq_u32 s{sW}, 0")
e("s_cbranch_scc0 G_i1")
e(f"v_add_u32 v{TM+4}, {L_HIST}, v{TM+3}")
e(f"ds_write_b64 v{TM+4}, {v(P,2)}")
e(f"v_add_u32 v{TM+4}, {L_CNT}, v2")
e(f"ds_write_b128 v{TM+4}, {v(P,4)}")
e(f"v_mov_b32 v{TM+4}, {L_CNT+1024}")
e(f"v_mov_b32 v{EN}, -1\nv_mov_b32 v{EN+1}, -1")
e(f"ds_write_b64 v{TM+4}, {v(EN,2)}")
e("G_i1:")
e(f"v_lshlrev_b32 v{TM+4}, 2, v{TM+1}")
e(f"v_sub_u32 v{TM+4}, v{TM}, v{TM+4}")
e(f"v_mov_b32 v{P+2}, 0x3f80\nv_mov_b32 v{P+3}, 0x3f800000")
for r,(d0,d1) in enumerate([(0,1),(2,3)]):
    e(f"v_cmp_eq_u32 vcc, {d0}, v{TM+4}")
    e(f"v_cmp_eq_u32 s[46:47], {d1}, v{TM+4}")
    e(f"v_mov_b32 v{MB+r}, 0xf000f000")
    e(f"v_mov_b32 v{TM+5}, 0xf0000000")
    e(f"v_cndmask_b32 v{P+r}, 0, v{P+2}, vcc")
    e(f"v_cndmask_b32 v{P+r}, v{P+r}, v{P+3}, s[46:47]")
    e(f"v_cndmask_b32 v{MB+r}, v{MB+r}, v{TM+5}, vcc")
    e(f"v_mov_b32 v{TM+5}, 0x0000f000")
    e(f"v_cndmask_b32 v{MB+r}, v{MB+r}, v{TM+5}, s[46:47]")
e(f"s_cmp_eq_u32 s{sW}, 1")
e("s_cbranch_scc0 G_i2")
e(f"v_add_u32 v{TM+4}, {L_T}, v{TM+3}")
e(f"ds_write_b64 v{TM+4}, {v(P,2)}")
e("G_i2:")
srd(20, 4, N*128); srd(24, 18, SLOT_BYTES); srd(40, 18, G1*CH*4, OV_OFF); srd(32, 14, N*128)
e("s_waitcnt lgkmcnt(0)")
e("s_barrier")
stamp(1)
srd(44, 18, ARR+G1*128, GO_OFF)
srd(28, 16, 256)
e(f"s_lshl_b32 s{sGO}, s2, 7")
e(f"s_cmp_lg_u32 s{sW}, 0")
e("s_cbranch_scc1 P_nors")
e(f"v_mov_b32 v{TM+6}, 0")
e(f"s_cmp_ge_u32 s2, {G1}")
e("s_cbranch_scc1 P_mrs")
e("s_mov_b64 exec, 1")
e(f"buffer_store_dword v{TM+6}, v{TM+6}, s[44:47], s{sGO} offen sc1")
e("s_branch P_rsd")
e("P_mrs:")
e(f"v_lshlrev_b32 v{TM+7}, 7, v1")
for k in range(4):
    e(f"s_mov_b32 s{sT0}, {ARR+k*8192}")
    e(f"buffer_store_dword v{TM+6}, v{TM+7}, s[44:47], s{sT0} offen sc1")
e(f"v_mov_b32 v{TM+7}, 1")
e("s_mov_b64 exec, 1")
e("s_waitcnt vmcnt(0)")
e(f"buffer_store_dword v{TM+7}, v{TM+6}, s[28:31], 0 offen sc1")
e("P_rsd:")
e("s_mov_b64 exec, -1")
e("P_nors:")
e(f"s_cmp_ge_u32 s{sW}, 8")
e("s_cselect_b32 s36, s12, s10")
e("s_cselect_b32 s37, s13, s11")
e("s_mov_b32 s38, 8192\ns_mov_b32 s39, 0x00020000")
e(f"s_cselect_b32 s{sT0}, {L_WV}, 0")
e(f"s_and_b32 s{sT1}, s{sW}, 7")
e(f"s_lshl_b32 s{sT1}, s{sT1}, 10")
e(f"s_add_u32 m0, s{sT0}, s{sT1}")
e(f"s_lshl_b32 s{sNODE}, s2, 4")
e(f"buffer_load_dwordx4 v2, s[36:39], s{sT1} offen lds")
e(f"s_add_u32 s{sNODE}, s{sNODE}, s{sW}")
e(f"s_mul_i32 s{sNODE}, s{sNODE}, {GS*128}")
e(f"v_lshlrev_b32 v{TM+2}, 7, v{TM}")
e(f"v_lshl_add_u32 v{TM+2}, v{TM+1}, 4, v{TM+2}")
e(f"buffer_load_dwordx4 {v(72,4)}, v{TM+2}, s[20:23], s{sNODE} offen")
e(f"buffer_load_dwordx4 {v(76,4)}, v{TM+2}, s[20:23], s{sNODE} offen offset:64")
def prefetch():
    srd(36, 4, PF0*128)
    e(f"s_lshr_b32 s{sT0}, s2, 3")
    e(f"s_lshl_b32 s{sT0}, s{sT0}, 17")
    e(f"v_lshlrev_b32 v{PFV}, 7, v0")
    e(f"buffer_load_dword v{PFV+1}, v{PFV}, s[36:39], s{sT0} offen")
NPF=0
if PF0 and PFPOS==0: prefetch(); NPF=1
e(f"v_mov_b32 v2, 1")
e(f"v_mov_b32 v{TM+5}, {L_CNT}")
e("s_mov_b64 exec, s[52:53]")
e("s_cbranch_execz P_copy")
e(f"s_waitcnt vmcnt({3+NPF})")
for k in range(4):
    entry(v(D_+k), v(S_+k), v(EN_+k), v(BK+k), v(TM+2), v(TM+3))
    e(f"v_lshrrev_b32 v{BK+k}, 4, v{BK+k}")
    e(f"v_lshl_add_u32 v{TM+2}, v{BK+k}, 2, v{TM+5}")
    e(f"ds_add_rtn_u32 v{RK+k}, v{TM+2}, v2")
for k in range(4):
    e(f"s_waitcnt lgkmcnt({3-k})")
    e(f"v_add_u32 v{TM+2}, v{RK+k}, v{BK+k}")
    e(f"v_and_b32 v{TM+2}, 31, v{TM+2}")
    e(f"v_lshlrev_b32 v{TM+2}, 2, v{TM+2}")
    e(f"v_lshl_or_b32 v{TM+2}, v{BK+k}, 7, v{TM+2}")
    e(f"v_cmp_gt_u32 vcc, 32, v{RK+k}")
    e(f"s_and_saveexec_b64 s[50:51], vcc")
    e(f"ds_write_b32 v{TM+2}, v{EN_+k} offset:{L_IMG}")
    e(f"s_mov_b64 exec, s[50:51]")
e(f"v_max3_u32 v{TM+2}, v{RK}, v{RK+1}, v{RK+2}")
e(f"v_max_u32 v{TM+2}, v{TM+2}, v{RK+3}")
e(f"v_cmp_lt_u32 vcc, 31, v{TM+2}")
e("s_cbranch_vccz P_copy")
for k in range(4):
    e(f"v_cmp_lt_u32 vcc, 31, v{RK+k}")
    e(f"s_and_saveexec_b64 s[50:51], vcc")
    e(f"s_cbranch_execz P_ov{k}")
    e(f"ds_add_rtn_u32 v{TM+2}, v{TM+5}, v2 offset:1020")
    e(f"v_lshl_or_b32 v{TM+3}, v{D_+k}, 16, v{S_+k}")
    e(f"s_waitcnt lgkmcnt(0)")
    e(f"v_lshlrev_b32 v{TM+2}, 2, v{TM+2}")
    e(f"v_cmp_gt_u32 vcc, 8, v{TM+2}")
    e(f"v_add_u32 v{TM+4}, v{TM+5}, v{TM+2}")
    e(f"s_and_saveexec_b64 s[48:49], vcc")
    e(f"ds_write_b32 v{TM+4}, v{TM+3} offset:1024")
    e(f"s_andn2_b64 exec, s[48:49], exec")
    e(f"s_cbranch_execz P_ov{k}")
    e(f"v_subrev_u32 v{TM+2}, 8, v{TM+2}")
    e(f"buffer_store_dword v{TM+3}, v{TM+2}, s[40:43], s{sEOFF} offen sc1")
    e(f"s_waitcnt vmcnt(0)")
    e(f"P_ov{k}:")
    e(f"s_mov_b64 exec, s[50:51]")
e("P_copy:")
e("s_mov_b64 exec, -1")
e(f"v_lshrrev_b32 v{TM+2}, 3, v0")
e(f"v_mul_u32_u24 v{TM+2}, {SLOTB}, v{TM+2}")
e(f"v_and_b32 v{TM+3}, 7, v0")
e(f"v_lshl_add_u32 v{TM+2}, v{TM+3}, 4, v{TM+2}")
e(f"s_lshl_b32 s{sT0}, s2, 7")
e(f"s_add_u32 s{sT1}, s{sT0}, {128*SLOTB}")
e(f"s_waitcnt vmcnt({2+NPF}) lgkmcnt(0)")
e("s_barrier")
stamp(2)
e(f"s_cmp_ge_u32 s2, {G1}")
e("s_cbranch_scc1 P_nost")
e(f"s_cmp_lg_u32 s{sW}, 0")
e("s_cbranch_scc1 P_nord")
e("v_mov_b32 v111, 0")
e("buffer_load_dword v110, v111, s[28:31], 0 offen sc1")
e("P_nord:")
e(f"ds_read_b128 {v(40,4)}, v3 offset:{L_IMG}")
e(f"ds_read_b128 {v(44,4)}, v3 offset:{L_IMG+16384}")
e(f"ds_read_b32 v48, v{TM+5} offset:1020")
e(f"ds_read_b64 {v(50,2)}, v{TM+5} offset:1024")
e("s_waitcnt lgkmcnt(3)")
e(f"buffer_store_dwordx4 {v(40,4)}, v{TM+2}, s[24:27], s{sT0} offen sc1")
e("s_waitcnt lgkmcnt(2)")
e(f"buffer_store_dwordx4 {v(44,4)}, v{TM+2}, s[24:27], s{sT1} offen sc1")
e("v_cmp_eq_u32 vcc, 0, v0")
e("s_and_saveexec_b64 s[50:51], vcc")
e("s_cbranch_execz P_st2")
srd(36, 18, 0x20000, XO_OFF)
e(f"s_lshl_b32 s{sT0}, s2, 3")
e(f"s_lshl_b32 s{sT1}, s2, 2")
e(f"s_add_u32 s{sT1}, s{sT1}, {OC_OFF-XO_OFF}")
e("v_mov_b32 v49, 0")
e("s_waitcnt lgkmcnt(0)")
e("v_max_u32 v48, 2, v48")
e("v_subrev_u32 v48, 2, v48")
e(f"buffer_store_dwordx2 {v(50,2)}, v49, s[36:39], s{sT0} offen sc1")
e(f"buffer_store_dword v48, v49, s[36:39], s{sT1} offen sc1")
e("P_st2:")
e("s_mov_b64 exec, -1")
e("P_nost:")
e(f"s_lshl_b32 s{sBUFB}, s{sW}, 13")
e(f"v_lshlrev_b32 v{VQT}, 7, v{TM+1}")
e(f"v_add_u32 v{VQT}, {L_T}, v{VQT}")
e(f"v_and_b32 v{TM+4}, 7, v1")
e(f"v_lshlrev_b32 v{TM+5}, 1, v{TM+1}")
e(f"v_xor_b32 v{VLO}, v{TM+4}, v{TM+5}")
e(f"v_lshlrev_b32 v{VLO}, 4, v{VLO}")
e(f"v_and_b32 v{TM+4}, 6, v{TM}")
e(f"v_xor_b32 v{TM+4}, v{TM+4}, v{TM+1}")
e(f"v_lshlrev_b32 v{TM+4}, 4, v{TM+4}")
e(f"v_lshl_add_u32 v{AA}, v{TM}, 7, v{TM+4}")
e(f"v_add_u32 v{AA}, s{sBUFB}, v{AA}")
e(f"v_xor_b32 v{AA+1}, 64, v{AA}")
e(f"v_lshrrev_b32 v{TM+4}, 2, v1")
e(f"v_lshlrev_b32 v{TM+4}, 7, v{TM+4}")
e(f"v_and_b32 v{TM+5}, 3, v1")
e(f"v_lshl_add_u32 v{TM+4}, v{TM+5}, 3, v{TM+4}")
e(f"v_bfe_u32 v{TM+5}, v1, 3, 2")
e(f"v_lshl_add_u32 v{AT}, v{TM+5}, 5, v{TM+4}")
e(f"v_add_u32 v{AT}, s{sBUFB}, v{AT}")
for t in range(1,4): e(f"v_xor_b32 v{AT+t}, {t*32}, v{AT}")
e(f"v_bfe_u32 v{TM+4}, v1, 2, 2")
e(f"v_lshl_add_u32 v{TM+4}, v{TM+1}, 3, v{TM+4}")
e(f"v_lshlrev_b32 v{TM+4}, 7, v{TM+4}")
e(f"v_and_b32 v{TM+5}, 3, v1")
e(f"v_lshl_add_u32 v{TM+4}, v{TM+5}, 4, v{TM+4}")
WQ=[56,64,84,100]
for mt in range(4):
    for s in range(2):
        for h in range(2):
            e(f"ds_read_b64_tr_b16 {v(WQ[mt]+s*4+h*2,2)}, v{TM+4} offset:{s*4096+h*512+(mt//2)*64+(mt%2)*8}")
e("s_waitcnt vmcnt(0)")
for mt in range(4):
    e(f"s_waitcnt lgkmcnt({12-4*mt})")
    e(f"v_mfma_f32_16x16x32_bf16 {v(ACC+mt*4,4)}, {v(WQ[mt],4)}, {v(72,4)}, 0")
    e(f"v_mfma_f32_16x16x32_bf16 {v(ACC+mt*4,4)}, {v(WQ[mt]+4,4)}, {v(76,4)}, {v(ACC+mt*4,4)}")
e("s_barrier")
stamp(3)
e(f"s_cmp_lg_u32 s{sW}, 0")
e("s_cbranch_scc1 P_nopoll")
e(f"s_mov_b32 s{sT1}, 0x40000")
e(f"s_cmp_ge_u32 s2, {G1}")
e("s_cbranch_scc1 P_master")
e("s_mov_b64 exec, 1")
e(f"v_mov_b32 v{TM+4}, 0")
e(f"v_cmp_eq_u32 vcc, 1, v110")
e("s_cbranch_vccnz P_arr")
e("P_rpoll:")
e(f"buffer_load_dword v{TM+5}, v{TM+4}, s[28:31], 0 offen sc1")
e(f"s_sub_u32 s{sT1}, s{sT1}, 1")
e("s_cbranch_scc1 P_pdone")
e("s_waitcnt vmcnt(0)")
e(f"v_cmp_eq_u32 vcc, 1, v{TM+5}")
e("s_cbranch_vccz P_rpoll")
e("P_arr:")
e(f"s_add_u32 s{sT0}, s{sGO}, {ARR}")
e(f"buffer_store_dword v2, v{TM+4}, s[44:47], s{sT0} offen sc1")
e("P_poll:")
e(f"buffer_load_dword v{TM+5}, v{TM+4}, s[44:47], s{sGO} offen sc1")
e(f"s_sub_u32 s{sT1}, s{sT1}, 1")
e("s_cbranch_scc1 P_pdone")
e("s_waitcnt vmcnt(0)")
e(f"v_cmp_eq_u32 vcc, 1, v{TM+5}")
e("s_cbranch_vccnz P_pdone")
if SLEEP: e(f"s_sleep {SLEEP}")
e("s_branch P_poll")
e("P_master:")
e(f"v_lshlrev_b32 v{TM+4}, 7, v1")
e(f"v_cmp_le_u32 s[48:49], {G1-192}, v1")
e("P_mpoll:")
for k in range(4):
    e(f"s_mov_b32 s{sT0}, {ARR+k*8192}")
    e(f"buffer_load_dword v{40+k}, v{TM+4}, s[44:47], s{sT0} offen sc1")
e(f"s_sub_u32 s{sT1}, s{sT1}, 1")
e("s_cbranch_scc1 P_mdone")
e("s_waitcnt vmcnt(0)")
e("v_and_b32 v40, v40, v41")
e("v_cmp_eq_u32 vcc, 1, v43")
e("v_and_b32 v40, v40, v42")
e("s_or_b64 s[50:51], vcc, s[48:49]")
e("v_cmp_eq_u32 vcc, 1, v40")
e("s_and_b64 vcc, vcc, s[50:51]")
e("s_cmp_eq_u64 vcc, -1")
e("s_cbranch_scc0 P_mpoll")
e("P_mdone:")
e(f"v_lshlrev_b32 v{TM+4}, 7, v1")
for k in range(4):
    e(f"s_mov_b32 s{sT0}, {k*8192}")
    e(f"buffer_store_dword v2, v{TM+4}, s[44:47], s{sT0} offen sc1")
e("P_pdone:")
e("s_mov_b64 exec, -1")
e("P_nopoll:")
NPF2=0
if PF0 and PFPOS==1: prefetch(); NPF2=1
for mt in range(4):
    e(f"v_cvt_pk_bf16_f32 v{QB+mt*2}, v{ACC+mt*4}, v{ACC+mt*4+1}")
    e(f"v_cvt_pk_bf16_f32 v{QB+mt*2+1}, v{ACC+mt*4+2}, v{ACC+mt*4+3}")
for i in range(16): e(f"v_mov_b32 v{ACC+i}, 0")
srd(36, 18, 0x20000, XO_OFF)
e(f"s_mul_i32 s{sT0}, s2, {SLOTB}")
e(f"s_add_u32 s{sT1}, s{sT0}, 16384")
e("s_barrier")
stamp(4)
e(f"buffer_load_dwordx4 {v(Ee,4)}, v3, s[24:27], s{sT0} offen sc1")
e(f"s_cmp_ge_u32 s{sW}, 14")
e("s_cbranch_scc1 G_xo")
e(f"buffer_load_dwordx4 {v(Ee+4,4)}, v3, s[24:27], s{sT1} offen sc1")
e(f"v_mov_b32 v3, {L_HIST}")
e("s_waitcnt vmcnt(0)")
e("s_branch G_batch")
e("G_xo:")
e(f"v_subrev_u32 v{TM}, {896*16}, v3")
e(f"buffer_load_dwordx4 {v(Rr,4)}, v{TM}, s[36:39], 0 offen sc1")
e(f"s_movk_i32 s{sT1}, {G1*2}")
e(f"v_lshrrev_b32 v{TM}, 2, v{TM}")
e(f"v_mov_b32 v3, {L_HIST}")
e("s_waitcnt vmcnt(0)")
for k in range(4): rawconv(v(Rr+k), v(Ee+4+k), sT1, v(TM), k)
e("G_batch:")
for k in range(8):
    e(f"v_cmp_gt_i32 s[{52+2*k}:{53+2*k}], 0, v{Ee+k}")
    e(f"v_lshrrev_b32 v{Bb+k}, 22, v{Ee+k}")
    e(f"v_and_or_b32 v{Bb+k}, v{Bb+k}, s{sM1FC}, v3")
for k in range(8):
    e(f"s_mov_b64 exec, s[{52+2*k}:{53+2*k}]")
    e(f"ds_add_rtn_u32 v{Rr+k}, v{Bb+k}, v2")
e("s_mov_b64 exec, -1")
e(f"v_lshl_add_u32 v{TM}, v1, 3, v3")
e(f"s_cmp_lg_u32 s{sSTATE}, 0")
e("s_cbranch_scc1 G_nooc")
e(f"v_lshlrev_b32 v{TM+1}, 4, v1")
e(f"s_mov_b32 s{sT0}, {OC_OFF-XO_OFF}")
e(f"buffer_load_dwordx4 {v(OC4,4)}, v{TM+1}, s[36:39], s{sT0} offen sc1")
e("G_nooc:")
e(f"s_waitcnt lgkmcnt(0)")
e("s_barrier")
stamp(5)
c0,c1,s_,tot,vv,inc = P,P+1,P+2,P+3,TM+1,TM+2
e(f"ds_read_b64 {v(c0,2)}, v{TM}")
e(f"v_and_b32 v{TM+3}, 3, v1")
e(f"v_cmp_eq_u32 vcc, 3, v{TM+3}")
e("s_waitcnt lgkmcnt(0)")
e(f"v_add_u32 v{s_}, v{c0}, v{c1}")
e("s_nop 1")
e(f"v_add_u32_dpp v{tot}, v{s_}, v{s_} quad_perm:[1,0,3,2] row_mask:0xf bank_mask:0xf")
e("s_nop 1")
e(f"v_add_u32_dpp v{tot}, v{tot}, v{tot} quad_perm:[2,3,0,1] row_mask:0xf bank_mask:0xf")
e(f"v_sub_u32 v{TM+3}, 0, v{tot}")
e(f"v_and_b32 v{TM+3}, 31, v{TM+3}")
e(f"v_cndmask_b32 v{TM+3}, 0, v{TM+3}, vcc")
e(f"v_add_u32 v{vv}, v{s_}, v{TM+3}")
e(f"v_mov_b32 v{inc}, v{vv}")
for sh in (1,2,4,8):
    e("s_nop 1")
    e(f"v_add_u32_dpp v{inc}, v{inc}, v{inc} row_shr:{sh} row_mask:0xf bank_mask:0xf bound_ctrl:0")
e("s_nop 1")
e(f"v_add_u32_dpp v{inc}, v{inc}, v{inc} row_bcast:15 row_mask:0xa bank_mask:0xf")
e("s_nop 1")
e(f"v_add_u32_dpp v{inc}, v{inc}, v{inc} row_bcast:31 row_mask:0xc bank_mask:0xf")
e(f"s_lshl_b32 s{sT1}, s{sW}, 2")
e(f"v_sub_u32 v{vv}, v{inc}, v{vv}")
e(f"v_readlane_b32 s{sT0}, v{inc}, 63")
e(f"v_readlane_b32 s{sCNT}, v{tot}, s{sT1}")
e(f"v_readlane_b32 s{sST}, v{vv}, s{sT1}")
e(f"v_add_u32 v{c1}, v{vv}, v{c0}")
e(f"v_mov_b32 v{TM+3}, {L_LIST}")
e(f"v_lshl_add_u32 v{c0}, v{vv}, 2, v{TM+3}")
e(f"v_lshl_add_u32 v{c1}, v{c1}, 2, v{TM+3}")
e(f"s_cmp_gt_u32 s{sT0}, {CAP}")
e("s_cbranch_scc1 G_split")
e(f"ds_write_b64 v{TM}, {v(c0,2)} offset:512")
e(f"s_add_u32 s{sT0}, s{sST}, s{sCNT}")
e(f"s_add_u32 s{sREM}, s{sCNT}, 31")
e(f"s_lshr_b32 s{sREM}, s{sREM}, 5")
e(f"s_lshl_b32 s{sT1}, s{sREM}, 5")
e(f"s_sub_u32 s{sT1}, s{sT1}, s{sCNT}")
e(f"v_add_u32 v{TM+4}, s{sT0}, v1")
e(f"v_lshl_add_u32 v{TM+4}, v{TM+4}, 2, v{TM+3}")
e(f"v_mov_b32 v{TM+5}, 0x78")
e(f"v_cmp_gt_u32 vcc, s{sT1}, v1")
e("s_and_saveexec_b64 s[84:85], vcc")
e(f"ds_write_b32 v{TM+4}, v{TM+5}")
e("s_mov_b64 exec, -1")
e("s_waitcnt lgkmcnt(0)")
for k in range(8): e(f"ds_read_b32 v{Aa+k}, v{Bb+k} offset:512")
e(f"s_lshl_b32 s{sT0}, s{sST}, 2")
e(f"s_add_u32 s{sT0}, s{sT0}, {L_LIST}")
e(f"v_lshrrev_b32 v{VEN}, 3, v1")
e(f"v_lshlrev_b32 v{VEN}, 4, v{VEN}")
e(f"v_add_u32 v{VEN}, s{sT0}, v{VEN}")
e(f"v_and_b32 v{VED}, 7, v1")
e(f"v_bfe_u32 v{TM+4}, v1, 3, 1")
e(f"v_lshl_add_u32 v{VED}, v{VED}, 2, v{TM+4}")
e(f"v_lshlrev_b32 v{VED}, 2, v{VED}")
e(f"v_add_u32 v{VED}, s{sT0}, v{VED}")
for k in range(8):
    e(f"s_waitcnt lgkmcnt({7 if k else 7})" if False else f"s_waitcnt lgkmcnt(7)")
    e(f"v_lshl_add_u32 v{Aa+k}, v{Rr+k}, 2, v{Aa+k}")
    e(f"s_mov_b64 exec, s[{52+2*k}:{53+2*k}]")
    e(f"ds_write_b32 v{Aa+k}, v{Ee+k}")
    e("s_mov_b64 exec, -1")
e("s_waitcnt lgkmcnt(0)")
e("s_barrier")
stamp(6)
def dma(buf, en):
    e(f"s_add_u32 m0, s{sBUFB}, {buf*4096}")
    for i in range(4):
        e(f"v_and_or_b32 v{TM+i}, v{en+i}, s{sMSRC}, v{VLO}")
        e(f"buffer_load_dwordx4 v{TM+i}, s[20:23], 0 offen lds")
        if i<3: e("s_add_u32 m0, m0, 1024")
e(f"s_cmp_eq_u32 s{sREM}, 0")
e("s_cbranch_scc1 G_next")
e(f"ds_read_b128 {v(EN,4)}, v{VEN}")
e(f"ds_read_b128 {v(P,4)}, v{VEN} offset:128")
e(f"ds_read2_b32 {v(ED,2)}, v{VED} offset0:0 offset1:2")
e("s_waitcnt lgkmcnt(2)")
dma(0,EN)
e(f"s_cmp_lt_u32 s{sREM}, 2")
e("s_waitcnt lgkmcnt(0)")
e("s_cbranch_scc1 G_loop")
dma(1,P)
e("G_loop:")
def tile(buf):
    L=f"G_t{buf}"
    e(f"v_and_or_b32 v{TM+4}, v{ED}, s{sM78}, v{VQT}")
    e(f"v_and_or_b32 v{TM+5}, v{ED+1}, s{sM78}, v{VQT}")
    e(f"ds_read_b64 {v(OH,2)}, v{TM+4}")
    e(f"ds_read_b64 {v(OH+2,2)}, v{TM+5}")
    e(f"ds_read_b128 {v(EN,4)}, v{VEN} offset:{256+buf*128}")
    e(f"ds_read2_b32 {v(ED,2)}, v{VED} offset0:{32+buf*32} offset1:{34+buf*32}")
    e(f"s_cmp_lg_u32 s{sREM}, 1")
    e("s_waitcnt lgkmcnt(2)")
    e(f"v_mfma_f32_16x16x16_bf16 {v(LG,4)}, {v(OH,2)}, {v(MB,2)}, 0")
    e(f"v_mfma_f32_16x16x16_bf16 {v(LG+4,4)}, {v(OH+2,2)}, {v(MB,2)}, 0")
    e("s_waitcnt vmcnt(4)")
    e(f"s_cbranch_scc1 {L}a")
    e("s_waitcnt vmcnt(0)")
    e(f"{L}a:")
    for T in range(2):
        for s in range(2):
            e(f"ds_read_b128 {v(XA+T*8+s*4,4)}, v{AA+s} offset:{buf*4096+T*2048}")
    for t in range(4):
        for h in range(2):
            e(f"ds_read_b64_tr_b16 {v(XT+t*4+h*2,2)}, v{AT+t} offset:{buf*4096+h*2048}")
    e("s_waitcnt lgkmcnt(11)")
    e(f"v_mfma_f32_16x16x32_bf16 {v(LG,4)}, {v(XA,4)}, {v(QB,4)}, {v(LG,4)}")
    e("s_waitcnt lgkmcnt(10)")
    e(f"v_mfma_f32_16x16x32_bf16 {v(LG,4)}, {v(XA+4,4)}, {v(QB+4,4)}, {v(LG,4)}")
    e("s_waitcnt lgkmcnt(9)")
    e(f"v_mfma_f32_16x16x32_bf16 {v(LG+4,4)}, {v(XA+8,4)}, {v(QB,4)}, {v(LG+4,4)}")
    e("s_waitcnt lgkmcnt(8)")
    e(f"v_mfma_f32_16x16x32_bf16 {v(LG+4,4)}, {v(XA+12,4)}, {v(QB+4,4)}, {v(LG+4,4)}")
    e(f"s_cmp_lt_u32 s{sREM}, 3")
    e("s_waitcnt lgkmcnt(0)")
    e(f"s_cbranch_scc1 {L}b")
    dma(buf,EN)
    e(f"{L}b:")
    e("s_nop 5")
    for i in range(8): e(f"v_mul_f32 v{LG+i}, s{sC}, v{LG+i}")
    for i in range(8): e(f"v_exp_f32 v{LG+i}, v{LG+i}")
    for i in range(8): e(f"v_add_f32 v{LG+i}, 1.0, v{LG+i}")
    for i in range(8): e(f"v_rcp_f32 v{LG+i}, v{LG+i}")
    if buf==1:
        e(f"v_add_u32 v{VEN}, 256, v{VEN}")
        e(f"v_add_u32 v{VED}, 256, v{VED}")
    else: e("s_nop 0")
    for i in range(4): e(f"v_cvt_pk_bf16_f32 v{P+i}, v{LG+2*i}, v{LG+2*i+1}")
    e(f"s_sub_u32 s{sREM}, s{sREM}, 1")
    e(f"s_cmp_eq_u32 s{sREM}, 0")
    for t in range(4):
        e(f"v_mfma_f32_16x16x32_bf16 {v(ACC+t*4,4)}, {v(XT+t*4,4)}, {v(P,4)}, {v(ACC+t*4,4)}")
tile(0)
e("s_cbranch_scc1 G_next")
tile(1)
e("s_cbranch_scc0 G_loop")
e("G_next:")
stamp(7)
e(f"s_cmp_eq_u32 s{sSTATE}, 1")
e("s_cbranch_scc1 G_half2")
e(f"s_cmp_eq_u32 s{sSTATE}, 3")
e("s_cbranch_scc1 G_have")
e(f"s_mov_b32 s{sSTATE}, 3")
e(f"v_cmp_gt_u32 s[84:85], {G1//4}, v1")
e("s_waitcnt vmcnt(0)")
for k in range(4): e(f"v_cmp_ne_u32 s[{44+2*k}:{45+2*k}], 0, v{OC4+k}")
for k in range(4): e(f"s_and_b64 s[{44+2*k}:{45+2*k}], s[{44+2*k}:{45+2*k}], s[84:85]")
e("G_have:")
for k in range(4):
    e(f"s_ff1_i32_b64 s{sOW}, s[{44+2*k}:{45+2*k}]")
    e(f"s_cmp_lg_i32 s{sOW}, -1")
    e(f"s_cbranch_scc1 G_f{k}")
e("s_branch G_epi")
for k in range(4):
    e(f"G_f{k}:")
    e(f"s_bitset0_b64 s[{44+2*k}:{45+2*k}], s{sOW}")
    e(f"v_readlane_b32 s{sOW+4}, v{OC4+k}, s{sOW}")
    e(f"s_lshl_b32 s{sOW}, s{sOW}, 2")
    e(f"s_add_u32 s{sOW}, s{sOW}, {k}")
    e("s_branch G_ovl")
e("G_ovl:")
e(f"s_mul_i32 s{sT0}, s{sOW}, {CH*4}")
e(f"v_lshlrev_b32 v{TM}, 4, v0")
e(f"buffer_load_dwordx4 {v(Rr,4)}, v{TM}, s[40:43], s{sT0} offen sc1")
e(f"v_lshlrev_b32 v{TM}, 2, v0")
e("s_waitcnt vmcnt(0)")
for k in range(4): rawconv(v(Rr+k), v(Ee+k), sOW+4, v(TM), k)
for k in range(4): e(f"v_mov_b32 v{Ee+4+k}, 0")
e("s_branch G_again")
e("G_half2:")
for k in range(4):
    e(f"v_mov_b32 v{Ee+k}, v{SV+k}")
    e(f"v_mov_b32 v{Ee+4+k}, 0")
e(f"s_mov_b32 s{sSTATE}, 2")
e("s_branch G_again")
e("G_split:")
for k in range(4):
    e(f"v_mov_b32 v{SV+k}, v{Ee+4+k}")
    e(f"v_mov_b32 v{Ee+4+k}, 0")
e(f"s_mov_b32 s{sSTATE}, 1")
e("G_again:")
e("s_waitcnt lgkmcnt(0)")
e("s_barrier")
e(f"v_mov_b32 v{P}, 0\nv_mov_b32 v{P+1}, 0")
e(f"v_lshl_add_u32 v{TM}, v1, 3, v3")
e(f"ds_write_b64 v{TM}, {v(P,2)}")
e("s_waitcnt lgkmcnt(0)")
e("s_barrier")
e("s_branch G_batch")
e("G_epi:")
WV=40; BH=72; BL=80; DO=88
e(f"v_lshrrev_b32 v{DO}, 2, v1")
e(f"v_lshlrev_b32 v{DO}, 7, v{DO}")
e(f"v_and_b32 v{DO+1}, 3, v1")
e(f"v_lshl_add_u32 v{DO}, v{DO+1}, 5, v{DO}")
e(f"v_add_u32 v{DO}, {L_WV}, v{DO}")
for mt in range(4):
    for u in range(4):
        e(f"ds_read_b64_tr_b16 {v(WV+mt*8+u*2,2)}, v{DO} offset:{u*2048+mt*8}")
for i in range(8):
    e(f"v_cvt_pk_bf16_f32 v{BH+i}, v{ACC+2*i}, v{ACC+2*i+1}")
    e(f"v_lshlrev_b32 v{QB}, 16, v{BH+i}")
    e(f"v_and_b32 v{QB+1}, 0xffff0000, v{BH+i}")
    e(f"v_sub_f32 v{QB}, v{ACC+2*i}, v{QB}")
    e(f"v_sub_f32 v{QB+1}, v{ACC+2*i+1}, v{QB+1}")
    e(f"v_cvt_pk_bf16_f32 v{BL+i}, v{QB}, v{QB+1}")
e(f"v_and_b32 v{QB+2}, 15, v1")
e(f"v_lshrrev_b32 v{QB+3}, 4, v1")
e(f"v_lshlrev_b32 v{QB+4}, 7, v{QB+2}")
e(f"v_lshl_add_u32 v{QB+4}, v{QB+3}, 5, v{QB+4}")
e(f"v_cmp_gt_u32 vcc, {GS}, v{QB+2}")
e("s_waitcnt lgkmcnt(0)")
for B,h,z in ((BL,0,1),(BL+4,4,0),(BH,0,0),(BH+4,4,0)):
    for mt in range(4):
        e(f"v_mfma_f32_16x16x32_bf16 {v(DO+mt*4,4)}, {v(WV+mt*8+h,4)}, {v(B,4)}, {'0' if z else v(DO+mt*4,4)}")
e("s_nop 7")
for i in range(8): e(f"v_cvt_pk_bf16_f32 v{ACC+i}, v{DO+2*i}, v{DO+2*i+1}")
e("s_and_saveexec_b64 s[84:85], vcc")
e(f"buffer_store_dwordx4 {v(ACC,4)}, v{QB+4}, s[32:35], s{sNODE} offen")
e(f"buffer_store_dwordx4 {v(ACC+4,4)}, v{QB+4}, s[32:35], s{sNODE} offen offset:16")
stamp_out()
e("G_end:")
e("s_endpgm")
e('.section .rodata,"a"')
e(f""".p2align 6
.amdhsa_kernel {KN}
  .amdhsa_next_free_vgpr 112
  .amdhsa_next_free_sgpr 100
  .amdhsa_accum_offset 112
  .amdhsa_group_segment_fixed_size 0
  .amdhsa_kernarg_size 64
  .amdhsa_user_sgpr_count 2
  .amdhsa_user_sgpr_kernarg_segment_ptr 1
  .amdhsa_system_sgpr_workgroup_id_x 1
.end_amdhsa_kernel""")
dst = sys.argv[1] if len(sys.argv)>1 else 'gather_scatter__kernel_systems_refs_featgraph__graph.s'
open(dst,'w').write('\n'.join(out)+'\n')
```

```python
import sys, os
N=50000; E=800000
G1=240; CH=3336
GS=13; NB=241
SLOTB=G1*128; SLOT_BYTES=NB*SLOTB
GO_OFF=0x7d0000; ARR=0x8000
XO_OFF=0x7f0000
OC_OFF=0x800000
OV_OFF=0x810000
L_LIST=131072; CAP=5760
L_HIST=L_LIST+CAP*4; L_BASE=L_HIST+512; L_T=L_BASE+512; L_WV=L_T+512
L_IMG=32768; L_CNT=65536
assert L_HIST%512==0 and L_T%128==0 and L_WV+8192==163840
STAMP=int(os.environ.get('STAMP','0')); ST_OFF=0x1000000
PF0=int(os.environ.get('PF0','0')); PFPOS=int(os.environ.get('PFPOS','0'))
SLEEP=int(os.environ.get('SLEEP','4'))
KN="gather_scatter__kernel_systems_refs_featgraph__graph_kernel"
out=[]
def e(s): out.append(s)
def v(i,n=1): return f"v{i}" if n==1 else f"v[{i}:{i+n-1}]"
def stamp(k):
    if not STAMP: return
    e("s_memrealtime s[96:97]")
    e("s_waitcnt lgkmcnt(0)")
    if k==0:
        for j in range(1,8): e(f"s_mov_b32 s{88+j}, 0")
        e(f"s_mov_b32 s{88+k}, s96")
    else:
        e(f"s_cmp_eq_u32 s{88+k}, 0")
        e(f"s_cselect_b32 s{88+k}, s96, s{88+k}")
def stamp_out():
    if not STAMP: return
    if STAMP==3:
        e("s_waitcnt vmcnt(0)")
        e("s_memrealtime s[96:97]")
        e("s_mov_b64 exec, 1")
        srd(28, 16, 256)
        e("v_mov_b32 v2, 0")
        e(f"s_lshl_b32 s3, s2, 4")
        e(f"s_add_u32 s3, s3, s{sW}")
        for k in range(8): e(f"v_mov_b32 v{4+k}, s{88+k}")
        e("s_waitcnt lgkmcnt(0)")
        e("v_mov_b32 v12, s96")
        e(f"s_cmp_eq_u32 s3, {100*16+15}")
        e("s_cbranch_scc0 S_a")
        e("buffer_store_dwordx4 v[4:7], v2, s[28:31], 0 offen offset:8")
        e("buffer_store_dwordx4 v[8:11], v2, s[28:31], 0 offen offset:24")
        e("buffer_store_dword v12, v2, s[28:31], 0 offen offset:40")
        e("S_a:")
        e(f"s_cmp_eq_u32 s3, {240*16}")
        e("s_cbranch_scc0 S_b")
        e("buffer_store_dwordx2 v[7:8], v2, s[28:31], 0 offen offset:44" if 0 else "v_mov_b32 v14, v7\nv_mov_b32 v15, v8\nbuffer_store_dwordx2 v[14:15], v2, s[28:31], 0 offen offset:44")
        e("S_b:")
        e(f"s_cmp_eq_u32 s3, {37*16+0}")
        e("s_cbranch_scc0 S_c")
        e("v_mov_b32 v14, v4\nv_mov_b32 v15, v11\nv_mov_b32 v16, v12\nbuffer_store_dwordx3 v[14:16], v2, s[28:31], 0 offen offset:52")
        e("S_c:")
        return
    if STAMP==2:
        e("s_waitcnt vmcnt(0)")
        e("s_memrealtime s[96:97]")
        e("s_mov_b64 exec, 1")
        srd(28, 16, 256)
        e("v_mov_b32 v2, 0")
        e("s_not_b32 s3, s88")
        e("v_mov_b32 v3, s3")
        e("buffer_atomic_umax v3, v2, s[28:31], 0 offen offset:8")
        e("s_not_b32 s3, s92")
        e("v_mov_b32 v12, s3")
        e("buffer_atomic_umax v12, v2, s[28:31], 0 offen offset:12")
        for k in range(8):
            e(f"v_mov_b32 v{4+k}, s{88+k}")
            e(f"buffer_atomic_umax v{4+k}, v2, s[28:31], 0 offen offset:{16+4*k}")
        e("s_waitcnt lgkmcnt(0)")
        e("v_mov_b32 v13, s96")
        e("buffer_atomic_umax v13, v2, s[28:31], 0 offen offset:48")
        return
    e("s_mov_b64 exec, 1")
    e(f"s_add_u32 s96, s18, {ST_OFF}")
    e("s_addc_u32 s97, s19, 0")
    e("s_mov_b32 s98, 0x100000\ns_mov_b32 s99, 0x00020000")
    e("v_lshrrev_b32 v2, 6, v0")
    e("s_lshl_b32 s3, s2, 4")
    e("v_add_u32 v2, s3, v2")
    e("v_lshlrev_b32 v2, 5, v2")
    for k in range(8): e(f"v_mov_b32 v{4+k}, s{88+k}")
    e("buffer_store_dwordx4 v[4:7], v2, s[96:99], 0 offen")
    e("buffer_store_dwordx4 v[8:11], v2, s[96:99], 0 offen offset:16")
def srd(d, lo, size, off=0):
    if off:
        e(f"s_add_u32 s{d}, s{lo}, {off}"); e(f"s_addc_u32 s{d+1}, s{lo+1}, 0")
    else:
        e(f"s_mov_b32 s{d}, s{lo}"); e(f"s_mov_b32 s{d+1}, s{lo+1}")
    e(f"s_mov_b32 s{d+2}, {size}"); e(f"s_mov_b32 s{d+3}, 0x00020000")
def entry(dst, src, ent, gg, t1, t2):
    e(f"v_mul_u32_u24 {gg}, 40330, {dst}")
    e(f"v_lshrrev_b32 {gg}, 19, {gg}")
    e(f"v_mad_i32_i24 {t1}, {gg}, -13, {dst}")
    e(f"v_lshl_or_b32 {ent}, {src}, 7, s{sSIGN}")
    e(f"v_lshl_or_b32 {ent}, {t1}, 3, {ent}")
    e(f"v_lshrrev_b32 {t1}, 13, {src}")
    e(f"v_and_b32 {t2}, 15, {gg}")
    e(f"v_lshl_or_b32 {t1}, {t2}, 3, {t1}")
    e(f"v_lshl_or_b32 {ent}, {t1}, 24, {ent}")
def rawconv(raw, ent, cnt_s=None, idx=None, k=0):
    e(f"v_lshrrev_b32 v{TM+1}, 16, {raw}")
    e(f"v_and_b32 v{TM+2}, 0xffff, {raw}")
    entry(f"v{TM+1}", f"v{TM+2}", ent, f"v{TM+3}", f"v{TM+4}", f"v{TM+5}")
    e(f"v_lshrrev_b32 v{TM+3}, 4, v{TM+3}")
    e(f"v_cmp_eq_u32 vcc, s2, v{TM+3}")
    if cnt_s is not None:
        e(f"v_add_u32 v{TM+4}, {k}, {idx}")
        e(f"v_cmp_gt_u32 s[84:85], s{cnt_s}, v{TM+4}")
        e("s_and_b64 vcc, vcc, s[84:85]")
    e("s_nop 1")
    e(f"v_cndmask_b32 {ent}, 0, {ent}, vcc")

for l in open('gather_scatter__kernel_systems_refs_featgraph__graph.s.ref').read().split('\n'):
    if l.startswith('; @launch'): continue
    if l.startswith(';'): e(l)
    else: break
e(f"; @launch grid=({NB},1,1) block=(1024,1,1) lds=163840")
e('.amdgcn_target "amdgcn-amd-amdhsa--gfx950"\n.text')
ACC=4; QB=20; MB=28; AT=30; AA=34; VLO=36; VQT=37; VEN=38; VED=39
XA=40; XT=56; OH=72; LG=76; P=84; EN=88; ED=92; TM=94; SV=100; OC4=104; PFV=108
Ee=40; Rr=48; Bb=56; Aa=64
sW=68; sST=69; sCNT=70; sREM=71; sSTATE=72; sMSRC=73; sM78=74; sC=75; sT0=76; sT1=77; sBUFB=78; sSIGN=79; sM1FC=80; sNODE=81; sOW=82; sEOFF=83; sGO=87
e(f".globl {KN}\n.p2align 8\n.type {KN},@function\n{KN}:")
e(f"s_cmp_ge_u32 s2, {NB}")
e("s_cbranch_scc1 G_end")
stamp(0)
e("s_load_dwordx16 s[4:19], s[0:1], 0")
e("v_lshrrev_b32 v2, 6, v0")
e("v_and_b32 v1, 63, v0")
e(f"v_readfirstlane_b32 s{sW}, v2")
e(f"s_mov_b32 s{sMSRC}, 0x7fff80")
e(f"s_movk_i32 s{sM78}, 0x78")
e(f"s_mov_b32 s{sC}, 0xbe38aa3b")
e(f"s_mov_b32 s{sSIGN}, 0x80000000")
e(f"s_movk_i32 s{sM1FC}, 0x1fc")
e(f"s_mov_b32 s{sSTATE}, 0")
e(f"v_lshlrev_b32 v2, 4, v1")
e(f"v_lshlrev_b32 v3, 4, v0")
e(f"s_mul_i32 s{sEOFF}, s2, {CH*4}")
e(f"s_sub_u32 s{sT0}, {E*4}, s{sEOFF}")
e(f"s_max_i32 s{sT0}, s{sT0}, 0")
e(f"s_min_u32 s{sT0}, s{sT0}, {CH*4}")
e(f"v_cmp_gt_u32 s[52:53], s{sT0}, v3")
for k in range(4): e(f"v_mov_b32 v{P+k}, 0")
e("s_waitcnt lgkmcnt(0)")
srd(28, 6, E*4); srd(36, 8, E*4)
D_=40; S_=44; EN_=48; BK=52; RK=56
e("s_mov_b64 exec, s[52:53]")
e("s_cbranch_execz P_noload")
e(f"buffer_load_dwordx4 {v(D_,4)}, v3, s[36:39], s{sEOFF} offen")
e(f"buffer_load_dwordx4 {v(S_,4)}, v3, s[28:31], s{sEOFF} offen")
e("P_noload:")
e("s_mov_b64 exec, -1")
e(f"ds_write_b128 v3, {v(P,4)} offset:{L_IMG}")
e(f"ds_write_b128 v3, {v(P,4)} offset:{L_IMG+16384}")
e(f"v_lshlrev_b32 v{TM+3}, 3, v1")
e(f"v_and_b32 v{TM}, 15, v1")
e(f"v_lshrrev_b32 v{TM+1}, 4, v1")
e(f"s_cmp_eq_u32 s{sW}, 0")
e("s_cbranch_scc0 G_i1")
e(f"v_add_u32 v{TM+4}, {L_HIST}, v{TM+3}")
e(f"ds_write_b64 v{TM+4}, {v(P,2)}")
e(f"v_add_u32 v{TM+4}, {L_CNT}, v2")
e(f"ds_write_b128 v{TM+4}, {v(P,4)}")
e(f"v_mov_b32 v{TM+4}, {L_CNT+1024}")
e(f"v_mov_b32 v{EN}, -1\nv_mov_b32 v{EN+1}, -1")
e(f"ds_write_b64 v{TM+4}, {v(EN,2)}")
e("G_i1:")
e(f"v_lshlrev_b32 v{TM+4}, 2, v{TM+1}")
e(f"v_sub_u32 v{TM+4}, v{TM}, v{TM+4}")
e(f"v_mov_b32 v{P+2}, 0x3f80\nv_mov_b32 v{P+3}, 0x3f800000")
for r,(d0,d1) in enumerate([(0,1),(2,3)]):
    e(f"v_cmp_eq_u32 vcc, {d0}, v{TM+4}")
    e(f"v_cmp_eq_u32 s[46:47], {d1}, v{TM+4}")
    e(f"v_mov_b32 v{MB+r}, 0xf000f000")
    e(f"v_mov_b32 v{TM+5}, 0xf0000000")
    e(f"v_cndmask_b32 v{P+r}, 0, v{P+2}, vcc")
    e(f"v_cndmask_b32 v{P+r}, v{P+r}, v{P+3}, s[46:47]")
    e(f"v_cndmask_b32 v{MB+r}, v{MB+r}, v{TM+5}, vcc")
    e(f"v_mov_b32 v{TM+5}, 0x0000f000")
    e(f"v_cndmask_b32 v{MB+r}, v{MB+r}, v{TM+5}, s[46:47]")
e(f"s_cmp_eq_u32 s{sW}, 1")
e("s_cbranch_scc0 G_i2")
e(f"v_add_u32 v{TM+4}, {L_T}, v{TM+3}")
e(f"ds_write_b64 v{TM+4}, {v(P,2)}")
e("G_i2:")
srd(20, 4, N*128); srd(24, 18, SLOT_BYTES); srd(40, 18, G1*CH*4, OV_OFF); srd(32, 14, N*128)
e("s_waitcnt lgkmcnt(0)")
e("s_barrier")
stamp(1)
srd(44, 18, ARR+G1*128, GO_OFF)
srd(28, 16, 256)
e(f"s_lshl_b32 s{sGO}, s2, 7")
e(f"s_cmp_lg_u32 s{sW}, 0")
e("s_cbranch_scc1 P_nors")
e(f"v_mov_b32 v{TM+6}, 0")
e(f"s_cmp_ge_u32 s2, {G1}")
e("s_cbranch_scc1 P_mrs")
e("s_mov_b64 exec, 1")
e(f"buffer_store_dword v{TM+6}, v{TM+6}, s[44:47], s{sGO} offen sc1")
e("s_branch P_rsd")
e("P_mrs:")
e(f"v_lshlrev_b32 v{TM+7}, 7, v1")
for k in range(4):
    e(f"s_mov_b32 s{sT0}, {ARR+k*8192}")
    e(f"buffer_store_dword v{TM+6}, v{TM+7}, s[44:47], s{sT0} offen sc1")
e(f"v_mov_b32 v{TM+7}, 1")
e("s_mov_b64 exec, 1")
e("s_waitcnt vmcnt(0)")
e(f"buffer_store_dword v{TM+7}, v{TM+6}, s[28:31], 0 offen sc1")
e("P_rsd:")
e("s_mov_b64 exec, -1")
e("P_nors:")
e(f"s_cmp_ge_u32 s{sW}, 8")
e("s_cselect_b32 s36, s12, s10")
e("s_cselect_b32 s37, s13, s11")
e("s_mov_b32 s38, 8192\ns_mov_b32 s39, 0x00020000")
e(f"s_cselect_b32 s{sT0}, {L_WV}, 0")
e(f"s_and_b32 s{sT1}, s{sW}, 7")
e(f"s_lshl_b32 s{sT1}, s{sT1}, 10")
e(f"s_add_u32 m0, s{sT0}, s{sT1}")
e(f"s_lshl_b32 s{sNODE}, s2, 4")
e(f"buffer_load_dwordx4 v2, s[36:39], s{sT1} offen lds")
e(f"s_add_u32 s{sNODE}, s{sNODE}, s{sW}")
e(f"s_mul_i32 s{sNODE}, s{sNODE}, {GS*128}")
e(f"v_lshlrev_b32 v{TM+2}, 7, v{TM}")
e(f"v_lshl_add_u32 v{TM+2}, v{TM+1}, 4, v{TM+2}")
e(f"buffer_load_dwordx4 {v(72,4)}, v{TM+2}, s[20:23], s{sNODE} offen")
e(f"buffer_load_dwordx4 {v(76,4)}, v{TM+2}, s[20:23], s{sNODE} offen offset:64")
def prefetch():
    srd(36, 4, PF0*128)
    e(f"s_lshr_b32 s{sT0}, s2, 3")
    e(f"s_lshl_b32 s{sT0}, s{sT0}, 17")
    e(f"v_lshlrev_b32 v{PFV}, 7, v0")
    e(f"buffer_load_dword v{PFV+1}, v{PFV}, s[36:39], s{sT0} offen")
NPF=0
if PF0 and PFPOS==0: prefetch(); NPF=1
e(f"v_mov_b32 v2, 1")
e(f"v_mov_b32 v{TM+5}, {L_CNT}")
e("s_mov_b64 exec, s[52:53]")
e("s_cbranch_execz P_copy")
e(f"s_waitcnt vmcnt({3+NPF})")
for k in range(4):
    entry(v(D_+k), v(S_+k), v(EN_+k), v(BK+k), v(TM+2), v(TM+3))
    e(f"v_lshrrev_b32 v{BK+k}, 4, v{BK+k}")
    e(f"v_lshl_add_u32 v{TM+2}, v{BK+k}, 2, v{TM+5}")
    e(f"ds_add_rtn_u32 v{RK+k}, v{TM+2}, v2")
for k in range(4):
    e(f"s_waitcnt lgkmcnt({3-k})")
    e(f"v_add_u32 v{TM+2}, v{RK+k}, v{BK+k}")
    e(f"v_and_b32 v{TM+2}, 31, v{TM+2}")
    e(f"v_lshlrev_b32 v{TM+2}, 2, v{TM+2}")
    e(f"v_lshl_or_b32 v{TM+2}, v{BK+k}, 7, v{TM+2}")
    e(f"v_cmp_gt_u32 vcc, 32, v{RK+k}")
    e(f"s_and_saveexec_b64 s[50:51], vcc")
    e(f"ds_write_b32 v{TM+2}, v{EN_+k} offset:{L_IMG}")
    e(f"s_mov_b64 exec, s[50:51]")
e(f"v_max3_u32 v{TM+2}, v{RK}, v{RK+1}, v{RK+2}")
e(f"v_max_u32 v{TM+2}, v{TM+2}, v{RK+3}")
e(f"v_cmp_lt_u32 vcc, 31, v{TM+2}")
e("s_cbranch_vccz P_copy")
for k in range(4):
    e(f"v_cmp_lt_u32 vcc, 31, v{RK+k}")
    e(f"s_and_saveexec_b64 s[50:51], vcc")
    e(f"s_cbranch_execz P_ov{k}")
    e(f"ds_add_rtn_u32 v{TM+2}, v{TM+5}, v2 offset:1020")
    e(f"v_lshl_or_b32 v{TM+3}, v{D_+k}, 16, v{S_+k}")
    e(f"s_waitcnt lgkmcnt(0)")
    e(f"v_lshlrev_b32 v{TM+2}, 2, v{TM+2}")
    e(f"v_cmp_gt_u32 vcc, 8, v{TM+2}")
    e(f"v_add_u32 v{TM+4}, v{TM+5}, v{TM+2}")
    e(f"s_and_saveexec_b64 s[48:49], vcc")
    e(f"ds_write_b32 v{TM+4}, v{TM+3} offset:1024")
    e(f"s_andn2_b64 exec, s[48:49], exec")
    e(f"s_cbranch_execz P_ov{k}")
    e(f"v_subrev_u32 v{TM+2}, 8, v{TM+2}")
    e(f"buffer_store_dword v{TM+3}, v{TM+2}, s[40:43], s{sEOFF} offen sc1")
    e(f"s_waitcnt vmcnt(0)")
    e(f"P_ov{k}:")
    e(f"s_mov_b64 exec, s[50:51]")
e("P_copy:")
e("s_mov_b64 exec, -1")
e(f"v_lshrrev_b32 v{TM+2}, 3, v0")
e(f"v_mul_u32_u24 v{TM+2}, {SLOTB}, v{TM+2}")
e(f"v_and_b32 v{TM+3}, 7, v0")
e(f"v_lshl_add_u32 v{TM+2}, v{TM+3}, 4, v{TM+2}")
e(f"s_lshl_b32 s{sT0}, s2, 7")
e(f"s_add_u32 s{sT1}, s{sT0}, {128*SLOTB}")
e(f"s_waitcnt vmcnt({2+NPF}) lgkmcnt(0)")
e("s_barrier")
stamp(2)
e(f"s_cmp_ge_u32 s2, {G1}")
e("s_cbranch_scc1 P_nost")
e(f"s_cmp_lg_u32 s{sW}, 0")
e("s_cbranch_scc1 P_nord")
e("v_mov_b32 v111, 0")
e("buffer_load_dword v110, v111, s[28:31], 0 offen sc1")
e("P_nord:")
e(f"ds_read_b128 {v(40,4)}, v3 offset:{L_IMG}")
e(f"ds_read_b128 {v(44,4)}, v3 offset:{L_IMG+16384}")
e(f"ds_read_b32 v48, v{TM+5} offset:1020")
e(f"ds_read_b64 {v(50,2)}, v{TM+5} offset:1024")
e("s_waitcnt lgkmcnt(3)")
e(f"buffer_store_dwordx4 {v(40,4)}, v{TM+2}, s[24:27], s{sT0} offen sc1")
e("s_waitcnt lgkmcnt(2)")
e(f"buffer_store_dwordx4 {v(44,4)}, v{TM+2}, s[24:27], s{sT1} offen sc1")
e("v_cmp_eq_u32 vcc, 0, v0")
e("s_and_saveexec_b64 s[50:51], vcc")
e("s_cbranch_execz P_st2")
srd(36, 18, 0x20000, XO_OFF)
e(f"s_lshl_b32 s{sT0}, s2, 3")
e(f"s_lshl_b32 s{sT1}, s2, 2")
e(f"s_add_u32 s{sT1}, s{sT1}, {OC_OFF-XO_OFF}")
e("v_mov_b32 v49, 0")
e("s_waitcnt lgkmcnt(0)")
e("v_max_u32 v48, 2, v48")
e("v_subrev_u32 v48, 2, v48")
e(f"buffer_store_dwordx2 {v(50,2)}, v49, s[36:39], s{sT0} offen sc1")
e(f"buffer_store_dword v48, v49, s[36:39], s{sT1} offen sc1")
e("P_st2:")
e("s_mov_b64 exec, -1")
e("P_nost:")
e(f"s_lshl_b32 s{sBUFB}, s{sW}, 13")
e(f"v_lshlrev_b32 v{VQT}, 7, v{TM+1}")
e(f"v_add_u32 v{VQT}, {L_T}, v{VQT}")
e(f"v_and_b32 v{TM+4}, 7, v1")
e(f"v_lshlrev_b32 v{TM+5}, 1, v{TM+1}")
e(f"v_xor_b32 v{VLO}, v{TM+4}, v{TM+5}")
e(f"v_lshlrev_b32 v{VLO}, 4, v{VLO}")
e(f"v_and_b32 v{TM+4}, 6, v{TM}")
e(f"v_xor_b32 v{TM+4}, v{TM+4}, v{TM+1}")
e(f"v_lshlrev_b32 v{TM+4}, 4, v{TM+4}")
e(f"v_lshl_add_u32 v{AA}, v{TM}, 7, v{TM+4}")
e(f"v_add_u32 v{AA}, s{sBUFB}, v{AA}")
e(f"v_xor_b32 v{AA+1}, 64, v{AA}")
e(f"v_lshrrev_b32 v{TM+4}, 2, v1")
e(f"v_lshlrev_b32 v{TM+4}, 7, v{TM+4}")
e(f"v_and_b32 v{TM+5}, 3, v1")
e(f"v_lshl_add_u32 v{TM+4}, v{TM+5}, 3, v{TM+4}")
e(f"v_bfe_u32 v{TM+5}, v1, 3, 2")
e(f"v_lshl_add_u32 v{AT}, v{TM+5}, 5, v{TM+4}")
e(f"v_add_u32 v{AT}, s{sBUFB}, v{AT}")
for t in range(1,4): e(f"v_xor_b32 v{AT+t}, {t*32}, v{AT}")
e(f"v_bfe_u32 v{TM+4}, v1, 2, 2")
e(f"v_lshl_add_u32 v{TM+4}, v{TM+1}, 3, v{TM+4}")
e(f"v_lshlrev_b32 v{TM+4}, 7, v{TM+4}")
e(f"v_and_b32 v{TM+5}, 3, v1")
e(f"v_lshl_add_u32 v{TM+4}, v{TM+5}, 4, v{TM+4}")
WQ=[56,64,84,100]
for mt in range(4):
    for s in range(2):
        for h in range(2):
            e(f"ds_read_b64_tr_b16 {v(WQ[mt]+s*4+h*2,2)}, v{TM+4} offset:{s*4096+h*512+(mt//2)*64+(mt%2)*8}")
e("s_waitcnt vmcnt(0)")
for mt in range(4):
    e(f"s_waitcnt lgkmcnt({12-4*mt})")
    e(f"v_mfma_f32_16x16x32_bf16 {v(ACC+mt*4,4)}, {v(WQ[mt],4)}, {v(72,4)}, 0")
    e(f"v_mfma_f32_16x16x32_bf16 {v(ACC+mt*4,4)}, {v(WQ[mt]+4,4)}, {v(76,4)}, {v(ACC+mt*4,4)}")
e("s_barrier")
stamp(3)
e(f"s_cmp_lg_u32 s{sW}, 0")
e("s_cbranch_scc1 P_nopoll")
e(f"s_mov_b32 s{sT1}, 0x40000")
e(f"s_cmp_ge_u32 s2, {G1}")
e("s_cbranch_scc1 P_master")
e("s_mov_b64 exec, 1")
e(f"v_mov_b32 v{TM+4}, 0")
e(f"v_cmp_eq_u32 vcc, 1, v110")
e("s_cbranch_vccnz P_arr")
e("P_rpoll:")
e(f"buffer_load_dword v{TM+5}, v{TM+4}, s[28:31], 0 offen sc1")
e(f"s_sub_u32 s{sT1}, s{sT1}, 1")
e("s_cbranch_scc1 P_pdone")
e("s_waitcnt vmcnt(0)")
e(f"v_cmp_eq_u32 vcc, 1, v{TM+5}")
e("s_cbranch_vccz P_rpoll")
e("P_arr:")
e(f"s_add_u32 s{sT0}, s{sGO}, {ARR}")
e(f"buffer_store_dword v2, v{TM+4}, s[44:47], s{sT0} offen sc1")
e("P_poll:")
e(f"buffer_load_dword v{TM+5}, v{TM+4}, s[44:47], s{sGO} offen sc1")
e(f"s_sub_u32 s{sT1}, s{sT1}, 1")
e("s_cbranch_scc1 P_pdone")
e("s_waitcnt vmcnt(0)")
e(f"v_cmp_eq_u32 vcc, 1, v{TM+5}")
e("s_cbranch_vccnz P_pdone")
if SLEEP: e(f"s_sleep {SLEEP}")
e("s_branch P_poll")
e("P_master:")
e(f"v_lshlrev_b32 v{TM+4}, 7, v1")
e(f"v_cmp_le_u32 s[48:49], {G1-192}, v1")
e("P_mpoll:")
for k in range(4):
    e(f"s_mov_b32 s{sT0}, {ARR+k*8192}")
    e(f"buffer_load_dword v{40+k}, v{TM+4}, s[44:47], s{sT0} offen sc1")
e(f"s_sub_u32 s{sT1}, s{sT1}, 1")
e("s_cbranch_scc1 P_mdone")
e("s_waitcnt vmcnt(0)")
e("v_and_b32 v40, v40, v41")
e("v_cmp_eq_u32 vcc, 1, v43")
e("v_and_b32 v40, v40, v42")
e("s_or_b64 s[50:51], vcc, s[48:49]")
e("v_cmp_eq_u32 vcc, 1, v40")
e("s_and_b64 vcc, vcc, s[50:51]")
e("s_cmp_eq_u64 vcc, -1")
e("s_cbranch_scc0 P_mpoll")
e("P_mdone:")
e(f"v_lshlrev_b32 v{TM+4}, 7, v1")
for k in range(4):
    e(f"s_mov_b32 s{sT0}, {k*8192}")
    e(f"buffer_store_dword v2, v{TM+4}, s[44:47], s{sT0} offen sc1")
e("P_pdone:")
e("s_mov_b64 exec, -1")
e("P_nopoll:")
NPF2=0
if PF0 and PFPOS==1: prefetch(); NPF2=1
for mt in range(4):
    e(f"v_cvt_pk_bf16_f32 v{QB+mt*2}, v{ACC+mt*4}, v{ACC+mt*4+1}")
    e(f"v_cvt_pk_bf16_f32 v{QB+mt*2+1}, v{ACC+mt*4+2}, v{ACC+mt*4+3}")
for i in range(16): e(f"v_mov_b32 v{ACC+i}, 0")
srd(36, 18, 0x20000, XO_OFF)
e(f"s_mul_i32 s{sT0}, s2, {SLOTB}")
e(f"s_add_u32 s{sT1}, s{sT0}, 16384")
e("s_barrier")
stamp(4)
e(f"buffer_load_dwordx4 {v(Ee,4)}, v3, s[24:27], s{sT0} offen sc1")
e(f"s_cmp_ge_u32 s{sW}, 14")
e("s_cbranch_scc1 G_xo")
e(f"buffer_load_dwordx4 {v(Ee+4,4)}, v3, s[24:27], s{sT1} offen sc1")
e(f"v_mov_b32 v3, {L_HIST}")
e("s_waitcnt vmcnt(0)")
e("s_branch G_batch")
e("G_xo:")
e(f"v_subrev_u32 v{TM}, {896*16}, v3")
e(f"buffer_load_dwordx4 {v(Rr,4)}, v{TM}, s[36:39], 0 offen sc1")
e(f"s_movk_i32 s{sT1}, {G1*2}")
e(f"v_lshrrev_b32 v{TM}, 2, v{TM}")
e(f"v_mov_b32 v3, {L_HIST}")
e("s_waitcnt vmcnt(0)")
for k in range(4): rawconv(v(Rr+k), v(Ee+4+k), sT1, v(TM), k)
e("G_batch:")
for k in range(8):
    e(f"v_cmp_gt_i32 s[{52+2*k}:{53+2*k}], 0, v{Ee+k}")
    e(f"v_lshrrev_b32 v{Bb+k}, 22, v{Ee+k}")
    e(f"v_and_or_b32 v{Bb+k}, v{Bb+k}, s{sM1FC}, v3")
for k in range(8):
    e(f"s_mov_b64 exec, s[{52+2*k}:{53+2*k}]")
    e(f"ds_add_rtn_u32 v{Rr+k}, v{Bb+k}, v2")
e("s_mov_b64 exec, -1")
e(f"v_lshl_add_u32 v{TM}, v1, 3, v3")
e(f"s_cmp_lg_u32 s{sSTATE}, 0")
e("s_cbranch_scc1 G_nooc")
e(f"v_lshlrev_b32 v{TM+1}, 4, v1")
e(f"s_mov_b32 s{sT0}, {OC_OFF-XO_OFF}")
e(f"buffer_load_dwordx4 {v(OC4,4)}, v{TM+1}, s[36:39], s{sT0} offen sc1")
e("G_nooc:")
e(f"s_waitcnt lgkmcnt(0)")
e("s_barrier")
stamp(5)
c0,c1,s_,tot,vv,inc = P,P+1,P+2,P+3,TM+1,TM+2
e(f"ds_read_b64 {v(c0,2)}, v{TM}")
e(f"v_and_b32 v{TM+3}, 3, v1")
e(f"v_cmp_eq_u32 vcc, 3, v{TM+3}")
e("s_waitcnt lgkmcnt(0)")
e(f"v_add_u32 v{s_}, v{c0}, v{c1}")
e("s_nop 1")
e(f"v_add_u32_dpp v{tot}, v{s_}, v{s_} quad_perm:[1,0,3,2] row_mask:0xf bank_mask:0xf")
e("s_nop 1")
e(f"v_add_u32_dpp v{tot}, v{tot}, v{tot} quad_perm:[2,3,0,1] row_mask:0xf bank_mask:0xf")
e(f"v_sub_u32 v{TM+3}, 0, v{tot}")
e(f"v_and_b32 v{TM+3}, 31, v{TM+3}")
e(f"v_cndmask_b32 v{TM+3}, 0, v{TM+3}, vcc")
e(f"v_add_u32 v{vv}, v{s_}, v{TM+3}")
e(f"v_mov_b32 v{inc}, v{vv}")
for sh in (1,2,4,8):
    e("s_nop 1")
    e(f"v_add_u32_dpp v{inc}, v{inc}, v{inc} row_shr:{sh} row_mask:0xf bank_mask:0xf bound_ctrl:0")
e("s_nop 1")
e(f"v_add_u32_dpp v{inc}, v{inc}, v{inc} row_bcast:15 row_mask:0xa bank_mask:0xf")
e("s_nop 1")
e(f"v_add_u32_dpp v{inc}, v{inc}, v{inc} row_bcast:31 row_mask:0xc bank_mask:0xf")
e(f"s_lshl_b32 s{sT1}, s{sW}, 2")
e(f"v_sub_u32 v{vv}, v{inc}, v{vv}")
e(f"v_readlane_b32 s{sT0}, v{inc}, 63")
e(f"v_readlane_b32 s{sCNT}, v{tot}, s{sT1}")
e(f"v_readlane_b32 s{sST}, v{vv}, s{sT1}")
e(f"v_add_u32 v{c1}, v{vv}, v{c0}")
e(f"v_mov_b32 v{TM+3}, {L_LIST}")
e(f"v_lshl_add_u32 v{c0}, v{vv}, 2, v{TM+3}")
e(f"v_lshl_add_u32 v{c1}, v{c1}, 2, v{TM+3}")
e(f"s_cmp_gt_u32 s{sT0}, {CAP}")
e("s_cbranch_scc1 G_split")
e(f"ds_write_b64 v{TM}, {v(c0,2)} offset:512")
e(f"s_add_u32 s{sT0}, s{sST}, s{sCNT}")
e(f"s_add_u32 s{sREM}, s{sCNT}, 31")
e(f"s_lshr_b32 s{sREM}, s{sREM}, 5")
e(f"s_lshl_b32 s{sT1}, s{sREM}, 5")
e(f"s_sub_u32 s{sT1}, s{sT1}, s{sCNT}")
e(f"v_add_u32 v{TM+4}, s{sT0}, v1")
e(f"v_lshl_add_u32 v{TM+4}, v{TM+4}, 2, v{TM+3}")
e(f"v_mov_b32 v{TM+5}, 0x78")
e(f"v_cmp_gt_u32 vcc, s{sT1}, v1")
e("s_and_saveexec_b64 s[84:85], vcc")
e(f"ds_write_b32 v{TM+4}, v{TM+5}")
e("s_mov_b64 exec, -1")
e("s_waitcnt lgkmcnt(0)")
for k in range(8): e(f"ds_read_b32 v{Aa+k}, v{Bb+k} offset:512")
e(f"s_lshl_b32 s{sT0}, s{sST}, 2")
e(f"s_add_u32 s{sT0}, s{sT0}, {L_LIST}")
e(f"v_lshrrev_b32 v{VEN}, 3, v1")
e(f"v_lshlrev_b32 v{VEN}, 4, v{VEN}")
e(f"v_add_u32 v{VEN}, s{sT0}, v{VEN}")
e(f"v_and_b32 v{VED}, 7, v1")
e(f"v_bfe_u32 v{TM+4}, v1, 3, 1")
e(f"v_lshl_add_u32 v{VED}, v{VED}, 2, v{TM+4}")
e(f"v_lshlrev_b32 v{VED}, 2, v{VED}")
e(f"v_add_u32 v{VED}, s{sT0}, v{VED}")
for k in range(8):
    e(f"s_waitcnt lgkmcnt({7 if k else 7})" if False else f"s_waitcnt lgkmcnt(7)")
    e(f"v_lshl_add_u32 v{Aa+k}, v{Rr+k}, 2, v{Aa+k}")
    e(f"s_mov_b64 exec, s[{52+2*k}:{53+2*k}]")
    e(f"ds_write_b32 v{Aa+k}, v{Ee+k}")
    e("s_mov_b64 exec, -1")
e("s_waitcnt lgkmcnt(0)")
e("s_barrier")
stamp(6)
def dma(buf, en):
    e(f"s_add_u32 m0, s{sBUFB}, {buf*4096}")
    for i in range(4):
        e(f"v_and_or_b32 v{TM+i}, v{en+i}, s{sMSRC}, v{VLO}")
        e(f"buffer_load_dwordx4 v{TM+i}, s[20:23], 0 offen lds")
        if i<3: e("s_add_u32 m0, m0, 1024")
e(f"s_cmp_eq_u32 s{sREM}, 0")
e("s_cbranch_scc1 G_next")
e(f"ds_read_b128 {v(EN,4)}, v{VEN}")
e(f"ds_read_b128 {v(P,4)}, v{VEN} offset:128")
e(f"ds_read2_b32 {v(ED,2)}, v{VED} offset0:0 offset1:2")
e("s_waitcnt lgkmcnt(2)")
dma(0,EN)
e(f"s_cmp_lt_u32 s{sREM}, 2")
e("s_waitcnt lgkmcnt(0)")
e("s_cbranch_scc1 G_loop")
dma(1,P)
e("G_loop:")
def tile(buf):
    L=f"G_t{buf}"
    e(f"v_and_or_b32 v{TM+4}, v{ED}, s{sM78}, v{VQT}")
    e(f"v_and_or_b32 v{TM+5}, v{ED+1}, s{sM78}, v{VQT}")
    e(f"ds_read_b64 {v(OH,2)}, v{TM+4}")
    e(f"ds_read_b64 {v(OH+2,2)}, v{TM+5}")
    e(f"ds_read_b128 {v(EN,4)}, v{VEN} offset:{256+buf*128}")
    e(f"ds_read2_b32 {v(ED,2)}, v{VED} offset0:{32+buf*32} offset1:{34+buf*32}")
    e(f"s_cmp_lg_u32 s{sREM}, 1")
    e("s_waitcnt lgkmcnt(2)")
    e(f"v_mfma_f32_16x16x16_bf16 {v(LG,4)}, {v(OH,2)}, {v(MB,2)}, 0")
    e(f"v_mfma_f32_16x16x16_bf16 {v(LG+4,4)}, {v(OH+2,2)}, {v(MB,2)}, 0")
    e("s_waitcnt vmcnt(4)")
    e(f"s_cbranch_scc1 {L}a")
    e("s_waitcnt vmcnt(0)")
    e(f"{L}a:")
    for T in range(2):
        for s in range(2):
            e(f"ds_read_b128 {v(XA+T*8+s*4,4)}, v{AA+s} offset:{buf*4096+T*2048}")
    for t in range(4):
        for h in range(2):
            e(f"ds_read_b64_tr_b16 {v(XT+t*4+h*2,2)}, v{AT+t} offset:{buf*4096+h*2048}")
    e("s_waitcnt lgkmcnt(11)")
    e(f"v_mfma_f32_16x16x32_bf16 {v(LG,4)}, {v(XA,4)}, {v(QB,4)}, {v(LG,4)}")
    e("s_waitcnt lgkmcnt(10)")
    e(f"v_mfma_f32_16x16x32_bf16 {v(LG,4)}, {v(XA+4,4)}, {v(QB+4,4)}, {v(LG,4)}")
    e("s_waitcnt lgkmcnt(9)")
    e(f"v_mfma_f32_16x16x32_bf16 {v(LG+4,4)}, {v(XA+8,4)}, {v(QB,4)}, {v(LG+4,4)}")
    e("s_waitcnt lgkmcnt(8)")
    e(f"v_mfma_f32_16x16x32_bf16 {v(LG+4,4)}, {v(XA+12,4)}, {v(QB+4,4)}, {v(LG+4,4)}")
    e(f"s_cmp_lt_u32 s{sREM}, 3")
    e("s_waitcnt lgkmcnt(0)")
    e(f"s_cbranch_scc1 {L}b")
    dma(buf,EN)
    e(f"{L}b:")
    e("s_nop 5")
    for i in range(8): e(f"v_mul_f32 v{LG+i}, s{sC}, v{LG+i}")
    for i in range(8): e(f"v_exp_f32 v{LG+i}, v{LG+i}")
    for i in range(8): e(f"v_add_f32 v{LG+i}, 1.0, v{LG+i}")
    for i in range(8): e(f"v_rcp_f32 v{LG+i}, v{LG+i}")
    if buf==1:
        e(f"v_add_u32 v{VEN}, 256, v{VEN}")
        e(f"v_add_u32 v{VED}, 256, v{VED}")
    else: e("s_nop 0")
    for i in range(4): e(f"v_cvt_pk_bf16_f32 v{P+i}, v{LG+2*i}, v{LG+2*i+1}")
    e(f"s_sub_u32 s{sREM}, s{sREM}, 1")
    e(f"s_cmp_eq_u32 s{sREM}, 0")
    for t in range(4):
        e(f"v_mfma_f32_16x16x32_bf16 {v(ACC+t*4,4)}, {v(XT+t*4,4)}, {v(P,4)}, {v(ACC+t*4,4)}")
tile(0)
e("s_cbranch_scc1 G_next")
tile(1)
e("s_cbranch_scc0 G_loop")
e("G_next:")
stamp(7)
e(f"s_cmp_eq_u32 s{sSTATE}, 1")
e("s_cbranch_scc1 G_half2")
e(f"s_cmp_eq_u32 s{sSTATE}, 3")
e("s_cbranch_scc1 G_have")
e(f"s_mov_b32 s{sSTATE}, 3")
e(f"v_cmp_gt_u32 s[84:85], {G1//4}, v1")
e("s_waitcnt vmcnt(0)")
for k in range(4): e(f"v_cmp_ne_u32 s[{44+2*k}:{45+2*k}], 0, v{OC4+k}")
for k in range(4): e(f"s_and_b64 s[{44+2*k}:{45+2*k}], s[{44+2*k}:{45+2*k}], s[84:85]")
e("G_have:")
for k in range(4):
    e(f"s_ff1_i32_b64 s{sOW}, s[{44+2*k}:{45+2*k}]")
    e(f"s_cmp_lg_i32 s{sOW}, -1")
    e(f"s_cbranch_scc1 G_f{k}")
e("s_branch G_epi")
for k in range(4):
    e(f"G_f{k}:")
    e(f"s_bitset0_b64 s[{44+2*k}:{45+2*k}], s{sOW}")
    e(f"v_readlane_b32 s{sOW+4}, v{OC4+k}, s{sOW}")
    e(f"s_lshl_b32 s{sOW}, s{sOW}, 2")
    e(f"s_add_u32 s{sOW}, s{sOW}, {k}")
    e("s_branch G_ovl")
e("G_ovl:")
e(f"s_mul_i32 s{sT0}, s{sOW}, {CH*4}")
e(f"v_lshlrev_b32 v{TM}, 4, v0")
e(f"buffer_load_dwordx4 {v(Rr,4)}, v{TM}, s[40:43], s{sT0} offen sc1")
e(f"v_lshlrev_b32 v{TM}, 2, v0")
e("s_waitcnt vmcnt(0)")
for k in range(4): rawconv(v(Rr+k), v(Ee+k), sOW+4, v(TM), k)
for k in range(4): e(f"v_mov_b32 v{Ee+4+k}, 0")
e("s_branch G_again")
e("G_half2:")
for k in range(4):
    e(f"v_mov_b32 v{Ee+k}, v{SV+k}")
    e(f"v_mov_b32 v{Ee+4+k}, 0")
e(f"s_mov_b32 s{sSTATE}, 2")
e("s_branch G_again")
e("G_split:")
for k in range(4):
    e(f"v_mov_b32 v{SV+k}, v{Ee+4+k}")
    e(f"v_mov_b32 v{Ee+4+k}, 0")
e(f"s_mov_b32 s{sSTATE}, 1")
e("G_again:")
e("s_waitcnt lgkmcnt(0)")
e("s_barrier")
e(f"v_mov_b32 v{P}, 0\nv_mov_b32 v{P+1}, 0")
e(f"v_lshl_add_u32 v{TM}, v1, 3, v3")
e(f"ds_write_b64 v{TM}, {v(P,2)}")
e("s_waitcnt lgkmcnt(0)")
e("s_barrier")
e("s_branch G_batch")
e("G_epi:")
WV=40; BH=72; BL=80; DO=88
e(f"v_lshrrev_b32 v{DO}, 2, v1")
e(f"v_lshlrev_b32 v{DO}, 7, v{DO}")
e(f"v_and_b32 v{DO+1}, 3, v1")
e(f"v_lshl_add_u32 v{DO}, v{DO+1}, 5, v{DO}")
e(f"v_add_u32 v{DO}, {L_WV}, v{DO}")
for mt in range(4):
    for u in range(4):
        e(f"ds_read_b64_tr_b16 {v(WV+mt*8+u*2,2)}, v{DO} offset:{u*2048+mt*8}")
for i in range(8):
    e(f"v_cvt_pk_bf16_f32 v{BH+i}, v{ACC+2*i}, v{ACC+2*i+1}")
    e(f"v_lshlrev_b32 v{QB}, 16, v{BH+i}")
    e(f"v_and_b32 v{QB+1}, 0xffff0000, v{BH+i}")
    e(f"v_sub_f32 v{QB}, v{ACC+2*i}, v{QB}")
    e(f"v_sub_f32 v{QB+1}, v{ACC+2*i+1}, v{QB+1}")
    e(f"v_cvt_pk_bf16_f32 v{BL+i}, v{QB}, v{QB+1}")
e(f"v_and_b32 v{QB+2}, 15, v1")
e(f"v_lshrrev_b32 v{QB+3}, 4, v1")
e(f"v_lshlrev_b32 v{QB+4}, 7, v{QB+2}")
e(f"v_lshl_add_u32 v{QB+4}, v{QB+3}, 5, v{QB+4}")
e(f"v_cmp_gt_u32 vcc, {GS}, v{QB+2}")
e("s_waitcnt lgkmcnt(0)")
for B,h,z in ((BL,0,1),(BL+4,4,0),(BH,0,0),(BH+4,4,0)):
    for mt in range(4):
        e(f"v_mfma_f32_16x16x32_bf16 {v(DO+mt*4,4)}, {v(WV+mt*8+h,4)}, {v(B,4)}, {'0' if z else v(DO+mt*4,4)}")
e("s_nop 7")
for i in range(8): e(f"v_cvt_pk_bf16_f32 v{ACC+i}, v{DO+2*i}, v{DO+2*i+1}")
e("s_and_saveexec_b64 s[84:85], vcc")
e(f"buffer_store_dwordx4 {v(ACC,4)}, v{QB+4}, s[32:35], s{sNODE} offen")
e(f"buffer_store_dwordx4 {v(ACC+4,4)}, v{QB+4}, s[32:35], s{sNODE} offen offset:16")
stamp_out()
e("G_end:")
e("s_endpgm")
e('.section .rodata,"a"')
e(f""".p2align 6
.amdhsa_kernel {KN}
  .amdhsa_next_free_vgpr 112
  .amdhsa_next_free_sgpr 100
  .amdhsa_accum_offset 112
  .amdhsa_group_segment_fixed_size 0
  .amdhsa_kernarg_size 64
  .amdhsa_user_sgpr_count 2
  .amdhsa_user_sgpr_kernarg_segment_ptr 1
  .amdhsa_system_sgpr_workgroup_id_x 1
.end_amdhsa_kernel""")
dst = sys.argv[1] if len(sys.argv)>1 else 'gather_scatter__kernel_systems_refs_featgraph__graph.s'
open(dst,'w').write('\n'.join(out)+'\n')
```

```python
import sys, os
N=50000; E=800000
G1=240; CH=3336
GS=13; NB=241
SLOTB=G1*128; SLOT_BYTES=NB*SLOTB
GO_OFF=0x7d0000; ARR=0x8000
XO_OFF=0x7f0000
OC_OFF=0x800000
OV_OFF=0x810000
L_LIST=131072; CAP=5760
L_HIST=L_LIST+CAP*4; L_BASE=L_HIST+512; L_T=L_BASE+512; L_WV=L_T+512
L_IMG=32768; L_CNT=65536
assert L_HIST%512==0 and L_T%128==0 and L_WV+8192==163840
STAMP=int(os.environ.get('STAMP','0')); ST_OFF=0x1000000
PF0=int(os.environ.get('PF0','0')); PFPOS=int(os.environ.get('PFPOS','0'))
OOBPAD=int(os.environ.get('OOBPAD','0')); PRIO=int(os.environ.get('PRIO','0'))
EXP=int(os.environ.get('EXP','0'))
CPF=int(os.environ.get('CPF','0'))
SLEEP=int(os.environ.get('SLEEP','4'))
KN="gather_scatter__kernel_systems_refs_featgraph__graph_kernel"
out=[]
def e(s): out.append(s)
def v(i,n=1): return f"v{i}" if n==1 else f"v[{i}:{i+n-1}]"
def stamp(k):
    if not STAMP: return
    e("s_memrealtime s[96:97]")
    e("s_waitcnt lgkmcnt(0)")
    if k==0:
        for j in range(1,8): e(f"s_mov_b32 s{88+j}, 0")
        e(f"s_mov_b32 s{88+k}, s96")
    else:
        e(f"s_cmp_eq_u32 s{88+k}, 0")
        e(f"s_cselect_b32 s{88+k}, s96, s{88+k}")
def stamp_out():
    if not STAMP: return
    if STAMP==3:
        e("s_waitcnt vmcnt(0)")
        e("s_memrealtime s[96:97]")
        e("s_mov_b64 exec, 1")
        srd(28, 16, 256)
        e("v_mov_b32 v2, 0")
        e(f"s_lshl_b32 s3, s2, 4")
        e(f"s_add_u32 s3, s3, s{sW}")
        for k in range(8): e(f"v_mov_b32 v{4+k}, s{88+k}")
        e("s_waitcnt lgkmcnt(0)")
        e("v_mov_b32 v12, s96")
        e(f"s_cmp_eq_u32 s3, {100*16+15}")
        e("s_cbranch_scc0 S_a")
        e("buffer_store_dwordx4 v[4:7], v2, s[28:31], 0 offen offset:8")
        e("buffer_store_dwordx4 v[8:11], v2, s[28:31], 0 offen offset:24")
        e("buffer_store_dword v12, v2, s[28:31], 0 offen offset:40")
        e("S_a:")
        e(f"s_cmp_eq_u32 s3, {240*16}")
        e("s_cbranch_scc0 S_b")
        e("buffer_store_dwordx2 v[7:8], v2, s[28:31], 0 offen offset:44" if 0 else "v_mov_b32 v14, v7\nv_mov_b32 v15, v8\nbuffer_store_dwordx2 v[14:15], v2, s[28:31], 0 offen offset:44")
        e("S_b:")
        e(f"s_cmp_eq_u32 s3, {37*16+0}")
        e("s_cbranch_scc0 S_c")
        e("v_mov_b32 v14, v4\nv_mov_b32 v15, v11\nv_mov_b32 v16, v12\nbuffer_store_dwordx3 v[14:16], v2, s[28:31], 0 offen offset:52")
        e("S_c:")
        return
    if STAMP==2:
        e("s_waitcnt vmcnt(0)")
        e("s_memrealtime s[96:97]")
        e("s_mov_b64 exec, 1")
        srd(28, 16, 256)
        e("v_mov_b32 v2, 0")
        e("s_not_b32 s3, s88")
        e("v_mov_b32 v3, s3")
        e("buffer_atomic_umax v3, v2, s[28:31], 0 offen offset:8")
        e("s_not_b32 s3, s92")
        e("v_mov_b32 v12, s3")
        e("buffer_atomic_umax v12, v2, s[28:31], 0 offen offset:12")
        for k in range(8):
            e(f"v_mov_b32 v{4+k}, s{88+k}")
            e(f"buffer_atomic_umax v{4+k}, v2, s[28:31], 0 offen offset:{16+4*k}")
        e("s_waitcnt lgkmcnt(0)")
        e("v_mov_b32 v13, s96")
        e("buffer_atomic_umax v13, v2, s[28:31], 0 offen offset:48")
        return
    e("s_mov_b64 exec, 1")
    e(f"s_add_u32 s96, s18, {ST_OFF}")
    e("s_addc_u32 s97, s19, 0")
    e("s_mov_b32 s98, 0x100000\ns_mov_b32 s99, 0x00020000")
    e("v_lshrrev_b32 v2, 6, v0")
    e("s_lshl_b32 s3, s2, 4")
    e("v_add_u32 v2, s3, v2")
    e("v_lshlrev_b32 v2, 5, v2")
    for k in range(8): e(f"v_mov_b32 v{4+k}, s{88+k}")
    e("buffer_store_dwordx4 v[4:7], v2, s[96:99], 0 offen")
    e("buffer_store_dwordx4 v[8:11], v2, s[96:99], 0 offen offset:16")
def srd(d, lo, size, off=0):
    if off:
        e(f"s_add_u32 s{d}, s{lo}, {off}"); e(f"s_addc_u32 s{d+1}, s{lo+1}, 0")
    else:
        e(f"s_mov_b32 s{d}, s{lo}"); e(f"s_mov_b32 s{d+1}, s{lo+1}")
    e(f"s_mov_b32 s{d+2}, {size}"); e(f"s_mov_b32 s{d+3}, 0x00020000")
def entry(dst, src, ent, gg, t1, t2):
    e(f"v_mul_u32_u24 {gg}, 40330, {dst}")
    e(f"v_lshrrev_b32 {gg}, 19, {gg}")
    e(f"v_mad_i32_i24 {t1}, {gg}, -13, {dst}")
    e(f"v_lshl_or_b32 {ent}, {src}, 7, s{sSIGN}")
    e(f"v_lshl_or_b32 {ent}, {t1}, 3, {ent}")
    e(f"v_lshrrev_b32 {t1}, 13, {src}")
    e(f"v_and_b32 {t2}, 15, {gg}")
    e(f"v_lshl_or_b32 {t1}, {t2}, 3, {t1}")
    e(f"v_lshl_or_b32 {ent}, {t1}, 24, {ent}")
def rawconv(raw, ent, cnt_s=None, idx=None, k=0):
    e(f"v_lshrrev_b32 v{TM+1}, 16, {raw}")
    e(f"v_and_b32 v{TM+2}, 0xffff, {raw}")
    entry(f"v{TM+1}", f"v{TM+2}", ent, f"v{TM+3}", f"v{TM+4}", f"v{TM+5}")
    e(f"v_lshrrev_b32 v{TM+3}, 4, v{TM+3}")
    e(f"v_cmp_eq_u32 vcc, s2, v{TM+3}")
    if cnt_s is not None:
        e(f"v_add_u32 v{TM+4}, {k}, {idx}")
        e(f"v_cmp_gt_u32 s[84:85], s{cnt_s}, v{TM+4}")
        e("s_and_b64 vcc, vcc, s[84:85]")
    e("s_nop 1")
    e(f"v_cndmask_b32 {ent}, 0, {ent}, vcc")

for l in open('gather_scatter__kernel_systems_refs_featgraph__graph.s.ref').read().split('\n'):
    if l.startswith('; @launch'): continue
    if l.startswith(';'): e(l)
    else: break
e(f"; @launch grid=({NB},1,1) block=(1024,1,1) lds=163840")
e('.amdgcn_target "amdgcn-amd-amdhsa--gfx950"\n.text')
ACC=4; QB=20; MB=28; AT=30; AA=34; VLO=36; VQT=37; VEN=38; VED=39
XA=40; XT=56; OH=72; LG=76; P=84; EN=88; ED=92; TM=94; SV=100; OC4=104; PFV=108
Ee=40; Rr=48; Bb=56; Aa=64
sW=68; sST=69; sCNT=70; sREM=71; sSTATE=72; sMSRC=73; sM78=74; sC=75; sT0=76; sT1=77; sBUFB=78; sSIGN=79; sM1FC=80; sNODE=81; sOW=82; sEOFF=83; sGO=87
e(f".globl {KN}\n.p2align 8\n.type {KN},@function\n{KN}:")
e(f"s_cmp_ge_u32 s2, {NB}")
e("s_cbranch_scc1 G_end")
if CPF:
    e("s_getpc_b64 s[4:5]")
    e("v_lshlrev_b32 v1, 6, v0")
    e(f"v_min_u32 v1, G_end-{KN}-16, v1")
    e("v_cmp_gt_u32 vcc, 0x80, v0")
    e("s_and_saveexec_b64 s[6:7], vcc")
    e("s_cbranch_execz G_nocpf")
    e("global_load_dword v110, v1, s[4:5]")
    e("G_nocpf:")
    e("s_mov_b64 exec, -1")
stamp(0)
e("s_load_dwordx16 s[4:19], s[0:1], 0")
e("v_lshrrev_b32 v2, 6, v0")
e("v_and_b32 v1, 63, v0")
e(f"v_readfirstlane_b32 s{sW}, v2")
e(f"s_mov_b32 s{sMSRC}, {0x1ff80 if EXP&1 else 0x7fff80}")
e(f"s_movk_i32 s{sM78}, 0x78")
e(f"s_mov_b32 s{sC}, 0xbe38aa3b")
e(f"s_mov_b32 s{sSIGN}, 0x80000000")
e(f"s_movk_i32 s{sM1FC}, 0x1fc")
e(f"s_mov_b32 s{sSTATE}, 0")
e(f"v_lshlrev_b32 v2, 4, v1")
e(f"v_lshlrev_b32 v3, 4, v0")
e(f"s_mul_i32 s{sEOFF}, s2, {CH*4}")
e(f"s_sub_u32 s{sT0}, {E*4}, s{sEOFF}")
e(f"s_max_i32 s{sT0}, s{sT0}, 0")
e(f"s_min_u32 s{sT0}, s{sT0}, {CH*4}")
e(f"v_cmp_gt_u32 s[52:53], s{sT0}, v3")
for k in range(4): e(f"v_mov_b32 v{P+k}, 0")
e("s_waitcnt lgkmcnt(0)")
srd(28, 6, E*4); srd(36, 8, E*4)
D_=40; S_=44; EN_=48; BK=52; RK=56
e("s_mov_b64 exec, s[52:53]")
e("s_cbranch_execz P_noload")
e(f"buffer_load_dwordx4 {v(D_,4)}, v3, s[36:39], s{sEOFF} offen")
e(f"buffer_load_dwordx4 {v(S_,4)}, v3, s[28:31], s{sEOFF} offen")
e("P_noload:")
e("s_mov_b64 exec, -1")
e(f"ds_write_b128 v3, {v(P,4)} offset:{L_IMG}")
e(f"ds_write_b128 v3, {v(P,4)} offset:{L_IMG+16384}")
e(f"v_lshlrev_b32 v{TM+3}, 3, v1")
e(f"v_and_b32 v{TM}, 15, v1")
e(f"v_lshrrev_b32 v{TM+1}, 4, v1")
e(f"s_cmp_eq_u32 s{sW}, 0")
e("s_cbranch_scc0 G_i1")
e(f"v_add_u32 v{TM+4}, {L_HIST}, v{TM+3}")
e(f"ds_write_b64 v{TM+4}, {v(P,2)}")
e(f"v_add_u32 v{TM+4}, {L_CNT}, v2")
e(f"ds_write_b128 v{TM+4}, {v(P,4)}")
e(f"v_mov_b32 v{TM+4}, {L_CNT+1024}")
e(f"v_mov_b32 v{EN}, -1\nv_mov_b32 v{EN+1}, -1")
e(f"ds_write_b64 v{TM+4}, {v(EN,2)}")
e("G_i1:")
e(f"v_lshlrev_b32 v{TM+4}, 2, v{TM+1}")
e(f"v_sub_u32 v{TM+4}, v{TM}, v{TM+4}")
e(f"v_mov_b32 v{P+2}, 0x3f80\nv_mov_b32 v{P+3}, 0x3f800000")
for r,(d0,d1) in enumerate([(0,1),(2,3)]):
    e(f"v_cmp_eq_u32 vcc, {d0}, v{TM+4}")
    e(f"v_cmp_eq_u32 s[46:47], {d1}, v{TM+4}")
    e(f"v_mov_b32 v{MB+r}, 0xf000f000")
    e(f"v_mov_b32 v{TM+5}, 0xf0000000")
    e(f"v_cndmask_b32 v{P+r}, 0, v{P+2}, vcc")
    e(f"v_cndmask_b32 v{P+r}, v{P+r}, v{P+3}, s[46:47]")
    e(f"v_cndmask_b32 v{MB+r}, v{MB+r}, v{TM+5}, vcc")
    e(f"v_mov_b32 v{TM+5}, 0x0000f000")
    e(f"v_cndmask_b32 v{MB+r}, v{MB+r}, v{TM+5}, s[46:47]")
e(f"s_cmp_eq_u32 s{sW}, 1")
e("s_cbranch_scc0 G_i2")
e(f"v_add_u32 v{TM+4}, {L_T}, v{TM+3}")
e(f"ds_write_b64 v{TM+4}, {v(P,2)}")
e("G_i2:")
srd(20, 4, N*128); srd(24, 18, SLOT_BYTES); srd(40, 18, G1*CH*4, OV_OFF); srd(32, 14, N*128)
e("s_waitcnt lgkmcnt(0)")
e("s_barrier")
stamp(1)
srd(44, 18, ARR+G1*128, GO_OFF)
srd(28, 16, 256)
e(f"s_lshl_b32 s{sGO}, s2, 7")
e(f"s_cmp_lg_u32 s{sW}, 0")
e("s_cbranch_scc1 P_nors")
e(f"v_mov_b32 v{TM+6}, 0")
e(f"s_cmp_ge_u32 s2, {G1}")
e("s_cbranch_scc1 P_mrs")
e("s_mov_b64 exec, 1")
e(f"buffer_store_dword v{TM+6}, v{TM+6}, s[44:47], s{sGO} offen sc1")
e("s_branch P_rsd")
e("P_mrs:")
e(f"v_lshlrev_b32 v{TM+7}, 7, v1")
for k in range(4):
    e(f"s_mov_b32 s{sT0}, {ARR+k*8192}")
    e(f"buffer_store_dword v{TM+6}, v{TM+7}, s[44:47], s{sT0} offen sc1")
e(f"v_mov_b32 v{TM+7}, 1")
e("s_mov_b64 exec, 1")
e("s_waitcnt vmcnt(0)")
e(f"buffer_store_dword v{TM+7}, v{TM+6}, s[28:31], 0 offen sc1")
e("P_rsd:")
e("s_mov_b64 exec, -1")
e("P_nors:")
e(f"s_cmp_ge_u32 s{sW}, 8")
e("s_cselect_b32 s36, s12, s10")
e("s_cselect_b32 s37, s13, s11")
e("s_mov_b32 s38, 8192\ns_mov_b32 s39, 0x00020000")
e(f"s_cselect_b32 s{sT0}, {L_WV}, 0")
e(f"s_and_b32 s{sT1}, s{sW}, 7")
e(f"s_lshl_b32 s{sT1}, s{sT1}, 10")
e(f"s_add_u32 m0, s{sT0}, s{sT1}")
e(f"s_lshl_b32 s{sNODE}, s2, 4")
e(f"buffer_load_dwordx4 v2, s[36:39], s{sT1} offen lds")
e(f"s_add_u32 s{sNODE}, s{sNODE}, s{sW}")
e(f"s_mul_i32 s{sNODE}, s{sNODE}, {GS*128}")
e(f"v_lshlrev_b32 v{TM+2}, 7, v{TM}")
e(f"v_lshl_add_u32 v{TM+2}, v{TM+1}, 4, v{TM+2}")
e(f"buffer_load_dwordx4 {v(72,4)}, v{TM+2}, s[20:23], s{sNODE} offen")
e(f"buffer_load_dwordx4 {v(76,4)}, v{TM+2}, s[20:23], s{sNODE} offen offset:64")
def prefetch():
    srd(36, 4, PF0*128)
    e(f"s_lshr_b32 s{sT0}, s2, 3")
    e(f"s_lshl_b32 s{sT0}, s{sT0}, 17")
    e(f"v_lshlrev_b32 v{PFV}, 7, v0")
    e(f"buffer_load_dword v{PFV+1}, v{PFV}, s[36:39], s{sT0} offen")
NPF=0
if PF0 and PFPOS==0: prefetch(); NPF=1
e(f"v_mov_b32 v2, 1")
e(f"v_mov_b32 v{TM+5}, {L_CNT}")
e("s_mov_b64 exec, s[52:53]")
e("s_cbranch_execz P_copy")
e(f"s_waitcnt vmcnt({3+NPF})")
for k in range(4):
    entry(v(D_+k), v(S_+k), v(EN_+k), v(BK+k), v(TM+2), v(TM+3))
    e(f"v_lshrrev_b32 v{BK+k}, 4, v{BK+k}")
    e(f"v_lshl_add_u32 v{TM+2}, v{BK+k}, 2, v{TM+5}")
    e(f"ds_add_rtn_u32 v{RK+k}, v{TM+2}, v2")
for k in range(4):
    e(f"s_waitcnt lgkmcnt({3-k})")
    e(f"v_add_u32 v{TM+2}, v{RK+k}, v{BK+k}")
    e(f"v_and_b32 v{TM+2}, 31, v{TM+2}")
    e(f"v_lshlrev_b32 v{TM+2}, 2, v{TM+2}")
    e(f"v_lshl_or_b32 v{TM+2}, v{BK+k}, 7, v{TM+2}")
    e(f"v_cmp_gt_u32 vcc, 32, v{RK+k}")
    e(f"s_and_saveexec_b64 s[50:51], vcc")
    e(f"ds_write_b32 v{TM+2}, v{EN_+k} offset:{L_IMG}")
    e(f"s_mov_b64 exec, s[50:51]")
e(f"v_max3_u32 v{TM+2}, v{RK}, v{RK+1}, v{RK+2}")
e(f"v_max_u32 v{TM+2}, v{TM+2}, v{RK+3}")
e(f"v_cmp_lt_u32 vcc, 31, v{TM+2}")
e("s_cbranch_vccz P_copy")
for k in range(4):
    e(f"v_cmp_lt_u32 vcc, 31, v{RK+k}")
    e(f"s_and_saveexec_b64 s[50:51], vcc")
    e(f"s_cbranch_execz P_ov{k}")
    e(f"ds_add_rtn_u32 v{TM+2}, v{TM+5}, v2 offset:1020")
    e(f"v_lshl_or_b32 v{TM+3}, v{D_+k}, 16, v{S_+k}")
    e(f"s_waitcnt lgkmcnt(0)")
    e(f"v_lshlrev_b32 v{TM+2}, 2, v{TM+2}")
    e(f"v_cmp_gt_u32 vcc, 8, v{TM+2}")
    e(f"v_add_u32 v{TM+4}, v{TM+5}, v{TM+2}")
    e(f"s_and_saveexec_b64 s[48:49], vcc")
    e(f"ds_write_b32 v{TM+4}, v{TM+3} offset:1024")
    e(f"s_andn2_b64 exec, s[48:49], exec")
    e(f"s_cbranch_execz P_ov{k}")
    e(f"v_subrev_u32 v{TM+2}, 8, v{TM+2}")
    e(f"buffer_store_dword v{TM+3}, v{TM+2}, s[40:43], s{sEOFF} offen sc1")
    e(f"s_waitcnt vmcnt(0)")
    e(f"P_ov{k}:")
    e(f"s_mov_b64 exec, s[50:51]")
e("P_copy:")
e("s_mov_b64 exec, -1")
e(f"v_lshrrev_b32 v{TM+2}, 3, v0")
e(f"v_mul_u32_u24 v{TM+2}, {SLOTB}, v{TM+2}")
e(f"v_and_b32 v{TM+3}, 7, v0")
e(f"v_lshl_add_u32 v{TM+2}, v{TM+3}, 4, v{TM+2}")
e(f"s_lshl_b32 s{sT0}, s2, 7")
e(f"s_add_u32 s{sT1}, s{sT0}, {128*SLOTB}")
e(f"s_waitcnt vmcnt({2+NPF}) lgkmcnt(0)")
e("s_barrier")
stamp(2)
e(f"s_cmp_ge_u32 s2, {G1}")
e("s_cbranch_scc1 P_nost")
e(f"s_cmp_lg_u32 s{sW}, 0")
e("s_cbranch_scc1 P_nord")
e("v_mov_b32 v111, 0")
e("buffer_load_dword v110, v111, s[28:31], 0 offen sc1")
e("P_nord:")
e(f"ds_read_b128 {v(40,4)}, v3 offset:{L_IMG}")
e(f"ds_read_b128 {v(44,4)}, v3 offset:{L_IMG+16384}")
e(f"ds_read_b32 v48, v{TM+5} offset:1020")
e(f"ds_read_b64 {v(50,2)}, v{TM+5} offset:1024")
e("s_waitcnt lgkmcnt(3)")
e(f"buffer_store_dwordx4 {v(40,4)}, v{TM+2}, s[24:27], s{sT0} offen sc1")
e("s_waitcnt lgkmcnt(2)")
e(f"buffer_store_dwordx4 {v(44,4)}, v{TM+2}, s[24:27], s{sT1} offen sc1")
e("v_cmp_eq_u32 vcc, 0, v0")
e("s_and_saveexec_b64 s[50:51], vcc")
e("s_cbranch_execz P_st2")
srd(36, 18, 0x20000, XO_OFF)
e(f"s_lshl_b32 s{sT0}, s2, 3")
e(f"s_lshl_b32 s{sT1}, s2, 2")
e(f"s_add_u32 s{sT1}, s{sT1}, {OC_OFF-XO_OFF}")
e("v_mov_b32 v49, 0")
e("s_waitcnt lgkmcnt(0)")
e("v_max_u32 v48, 2, v48")
e("v_subrev_u32 v48, 2, v48")
e(f"buffer_store_dwordx2 {v(50,2)}, v49, s[36:39], s{sT0} offen sc1")
e(f"buffer_store_dword v48, v49, s[36:39], s{sT1} offen sc1")
e("P_st2:")
e("s_mov_b64 exec, -1")
e("P_nost:")
e(f"s_lshl_b32 s{sBUFB}, s{sW}, 13")
e(f"v_lshlrev_b32 v{VQT}, 7, v{TM+1}")
e(f"v_add_u32 v{VQT}, {L_T}, v{VQT}")
e(f"v_and_b32 v{TM+4}, 7, v1")
e(f"v_lshlrev_b32 v{TM+5}, 1, v{TM+1}")
e(f"v_xor_b32 v{VLO}, v{TM+4}, v{TM+5}")
e(f"v_lshlrev_b32 v{VLO}, 4, v{VLO}")
e(f"v_and_b32 v{TM+4}, 6, v{TM}")
e(f"v_xor_b32 v{TM+4}, v{TM+4}, v{TM+1}")
e(f"v_lshlrev_b32 v{TM+4}, 4, v{TM+4}")
e(f"v_lshl_add_u32 v{AA}, v{TM}, 7, v{TM+4}")
e(f"v_add_u32 v{AA}, s{sBUFB}, v{AA}")
e(f"v_xor_b32 v{AA+1}, 64, v{AA}")
e(f"v_lshrrev_b32 v{TM+4}, 2, v1")
e(f"v_lshlrev_b32 v{TM+4}, 7, v{TM+4}")
e(f"v_and_b32 v{TM+5}, 3, v1")
e(f"v_lshl_add_u32 v{TM+4}, v{TM+5}, 3, v{TM+4}")
e(f"v_bfe_u32 v{TM+5}, v1, 3, 2")
e(f"v_lshl_add_u32 v{AT}, v{TM+5}, 5, v{TM+4}")
e(f"v_add_u32 v{AT}, s{sBUFB}, v{AT}")
for t in range(1,4): e(f"v_xor_b32 v{AT+t}, {t*32}, v{AT}")
e(f"v_bfe_u32 v{TM+4}, v1, 2, 2")
e(f"v_lshl_add_u32 v{TM+4}, v{TM+1}, 3, v{TM+4}")
e(f"v_lshlrev_b32 v{TM+4}, 7, v{TM+4}")
e(f"v_and_b32 v{TM+5}, 3, v1")
e(f"v_lshl_add_u32 v{TM+4}, v{TM+5}, 4, v{TM+4}")
WQ=[56,64,84,100]
for mt in range(4):
    for s in range(2):
        for h in range(2):
            e(f"ds_read_b64_tr_b16 {v(WQ[mt]+s*4+h*2,2)}, v{TM+4} offset:{s*4096+h*512+(mt//2)*64+(mt%2)*8}")
e("s_waitcnt vmcnt(0)")
for mt in range(4):
    e(f"s_waitcnt lgkmcnt({12-4*mt})")
    e(f"v_mfma_f32_16x16x32_bf16 {v(ACC+mt*4,4)}, {v(WQ[mt],4)}, {v(72,4)}, 0")
    e(f"v_mfma_f32_16x16x32_bf16 {v(ACC+mt*4,4)}, {v(WQ[mt]+4,4)}, {v(76,4)}, {v(ACC+mt*4,4)}")
e("s_barrier")
stamp(3)
e(f"s_cmp_lg_u32 s{sW}, 0")
e("s_cbranch_scc1 P_nopoll")
e(f"s_mov_b32 s{sT1}, 0x40000")
e(f"s_cmp_ge_u32 s2, {G1}")
e("s_cbranch_scc1 P_master")
e("s_mov_b64 exec, 1")
e(f"v_mov_b32 v{TM+4}, 0")
e(f"v_cmp_eq_u32 vcc, 1, v110")
e("s_cbranch_vccnz P_arr")
e("P_rpoll:")
e(f"buffer_load_dword v{TM+5}, v{TM+4}, s[28:31], 0 offen sc1")
e(f"s_sub_u32 s{sT1}, s{sT1}, 1")
e("s_cbranch_scc1 P_pdone")
e("s_waitcnt vmcnt(0)")
e(f"v_cmp_eq_u32 vcc, 1, v{TM+5}")
e("s_cbranch_vccz P_rpoll")
e("P_arr:")
e(f"s_add_u32 s{sT0}, s{sGO}, {ARR}")
e(f"buffer_store_dword v2, v{TM+4}, s[44:47], s{sT0} offen sc1")
e("P_poll:")
e(f"buffer_load_dword v{TM+5}, v{TM+4}, s[44:47], s{sGO} offen sc1")
e(f"s_sub_u32 s{sT1}, s{sT1}, 1")
e("s_cbranch_scc1 P_pdone")
e("s_waitcnt vmcnt(0)")
e(f"v_cmp_eq_u32 vcc, 1, v{TM+5}")
e("s_cbranch_vccnz P_pdone")
if SLEEP: e(f"s_sleep {SLEEP}")
e("s_branch P_poll")
e("P_master:")
e(f"v_lshlrev_b32 v{TM+4}, 7, v1")
e(f"v_cmp_le_u32 s[48:49], {G1-192}, v1")
e("P_mpoll:")
for k in range(4):
    e(f"s_mov_b32 s{sT0}, {ARR+k*8192}")
    e(f"buffer_load_dword v{40+k}, v{TM+4}, s[44:47], s{sT0} offen sc1")
e(f"s_sub_u32 s{sT1}, s{sT1}, 1")
e("s_cbranch_scc1 P_mdone")
e("s_waitcnt vmcnt(0)")
e("v_and_b32 v40, v40, v41")
e("v_cmp_eq_u32 vcc, 1, v43")
e("v_and_b32 v40, v40, v42")
e("s_or_b64 s[50:51], vcc, s[48:49]")
e("v_cmp_eq_u32 vcc, 1, v40")
e("s_and_b64 vcc, vcc, s[50:51]")
e("s_cmp_eq_u64 vcc, -1")
e("s_cbranch_scc0 P_mpoll")
e("P_mdone:")
e(f"v_lshlrev_b32 v{TM+4}, 7, v1")
for k in range(4):
    e(f"s_mov_b32 s{sT0}, {k*8192}")
    e(f"buffer_store_dword v2, v{TM+4}, s[44:47], s{sT0} offen sc1")
e("P_pdone:")
e("s_mov_b64 exec, -1")
e("P_nopoll:")
NPF2=0
if PF0 and PFPOS==1: prefetch(); NPF2=1
for mt in range(4):
    e(f"v_cvt_pk_bf16_f32 v{QB+mt*2}, v{ACC+mt*4}, v{ACC+mt*4+1}")
    e(f"v_cvt_pk_bf16_f32 v{QB+mt*2+1}, v{ACC+mt*4+2}, v{ACC+mt*4+3}")
for i in range(16): e(f"v_mov_b32 v{ACC+i}, 0")
srd(36, 18, 0x20000, XO_OFF)
e(f"s_mul_i32 s{sT0}, s2, {SLOTB}")
e(f"s_add_u32 s{sT1}, s{sT0}, 16384")
e("s_barrier")
stamp(4)
e(f"buffer_load_dwordx4 {v(Ee,4)}, v3, s[24:27], s{sT0} offen sc1")
e(f"s_cmp_ge_u32 s{sW}, 14")
e("s_cbranch_scc1 G_xo")
e(f"buffer_load_dwordx4 {v(Ee+4,4)}, v3, s[24:27], s{sT1} offen sc1")
e(f"v_mov_b32 v3, {L_HIST}")
e("s_waitcnt vmcnt(0)")
e("s_branch G_batch")
e("G_xo:")
e(f"v_subrev_u32 v{TM}, {896*16}, v3")
e(f"buffer_load_dwordx4 {v(Rr,4)}, v{TM}, s[36:39], 0 offen sc1")
e(f"s_movk_i32 s{sT1}, {G1*2}")
e(f"v_lshrrev_b32 v{TM}, 2, v{TM}")
e(f"v_mov_b32 v3, {L_HIST}")
e("s_waitcnt vmcnt(0)")
for k in range(4): rawconv(v(Rr+k), v(Ee+4+k), sT1, v(TM), k)
e("G_batch:")
for k in range(8):
    e(f"v_cmp_gt_i32 s[{52+2*k}:{53+2*k}], 0, v{Ee+k}")
    e(f"v_lshrrev_b32 v{Bb+k}, 22, v{Ee+k}")
    e(f"v_and_or_b32 v{Bb+k}, v{Bb+k}, s{sM1FC}, v3")
for k in range(8):
    e(f"s_mov_b64 exec, s[{52+2*k}:{53+2*k}]")
    e(f"ds_add_rtn_u32 v{Rr+k}, v{Bb+k}, v2")
e("s_mov_b64 exec, -1")
e(f"v_lshl_add_u32 v{TM}, v1, 3, v3")
e(f"s_cmp_lg_u32 s{sSTATE}, 0")
e("s_cbranch_scc1 G_nooc")
e(f"v_lshlrev_b32 v{TM+1}, 4, v1")
e(f"s_mov_b32 s{sT0}, {OC_OFF-XO_OFF}")
e(f"buffer_load_dwordx4 {v(OC4,4)}, v{TM+1}, s[36:39], s{sT0} offen sc1")
if PF0 and PFPOS==2:
    srd(28, 4, PF0*128)
    e(f"s_lshr_b32 s{sT0}, s2, 3")
    e(f"s_lshl_b32 s{sT0}, s{sT0}, 17")
    e(f"v_lshlrev_b32 v{PFV}, 7, v0")
    e(f"buffer_load_dword v{PFV+1}, v{PFV}, s[28:31], s{sT0} offen")
e("G_nooc:")
e(f"s_waitcnt lgkmcnt(0)")
e("s_barrier")
stamp(5)
c0,c1,s_,tot,vv,inc = P,P+1,P+2,P+3,TM+1,TM+2
e(f"ds_read_b64 {v(c0,2)}, v{TM}")
e(f"v_and_b32 v{TM+3}, 3, v1")
e(f"v_cmp_eq_u32 vcc, 3, v{TM+3}")
e("s_waitcnt lgkmcnt(0)")
e(f"v_add_u32 v{s_}, v{c0}, v{c1}")
e("s_nop 1")
e(f"v_add_u32_dpp v{tot}, v{s_}, v{s_} quad_perm:[1,0,3,2] row_mask:0xf bank_mask:0xf")
e("s_nop 1")
e(f"v_add_u32_dpp v{tot}, v{tot}, v{tot} quad_perm:[2,3,0,1] row_mask:0xf bank_mask:0xf")
e(f"v_sub_u32 v{TM+3}, 0, v{tot}")
e(f"v_and_b32 v{TM+3}, 31, v{TM+3}")
e(f"v_cndmask_b32 v{TM+3}, 0, v{TM+3}, vcc")
e(f"v_add_u32 v{vv}, v{s_}, v{TM+3}")
e(f"v_mov_b32 v{inc}, v{vv}")
for sh in (1,2,4,8):
    e("s_nop 1")
    e(f"v_add_u32_dpp v{inc}, v{inc}, v{inc} row_shr:{sh} row_mask:0xf bank_mask:0xf bound_ctrl:0")
e("s_nop 1")
e(f"v_add_u32_dpp v{inc}, v{inc}, v{inc} row_bcast:15 row_mask:0xa bank_mask:0xf")
e("s_nop 1")
e(f"v_add_u32_dpp v{inc}, v{inc}, v{inc} row_bcast:31 row_mask:0xc bank_mask:0xf")
e(f"s_lshl_b32 s{sT1}, s{sW}, 2")
e(f"v_sub_u32 v{vv}, v{inc}, v{vv}")
e(f"v_readlane_b32 s{sT0}, v{inc}, 63")
e(f"v_readlane_b32 s{sCNT}, v{tot}, s{sT1}")
e(f"v_readlane_b32 s{sST}, v{vv}, s{sT1}")
e(f"v_add_u32 v{c1}, v{vv}, v{c0}")
e(f"v_mov_b32 v{TM+3}, {L_LIST}")
e(f"v_lshl_add_u32 v{c0}, v{vv}, 2, v{TM+3}")
e(f"v_lshl_add_u32 v{c1}, v{c1}, 2, v{TM+3}")
e(f"s_cmp_gt_u32 s{sT0}, {CAP}")
e("s_cbranch_scc1 G_split")
e(f"ds_write_b64 v{TM}, {v(c0,2)} offset:512")
e(f"s_add_u32 s{sT0}, s{sST}, s{sCNT}")
e(f"s_add_u32 s{sREM}, s{sCNT}, 31")
e(f"s_lshr_b32 s{sREM}, s{sREM}, 5")
e(f"s_lshl_b32 s{sT1}, s{sREM}, 5")
e(f"s_sub_u32 s{sT1}, s{sT1}, s{sCNT}")
e(f"v_add_u32 v{TM+4}, s{sT0}, v1")
e(f"v_lshl_add_u32 v{TM+4}, v{TM+4}, 2, v{TM+3}")
e(f"v_mov_b32 v{TM+5}, {0x7ffff8 if OOBPAD else 0x78}")
e(f"v_cmp_gt_u32 vcc, s{sT1}, v1")
e("s_and_saveexec_b64 s[84:85], vcc")
e(f"ds_write_b32 v{TM+4}, v{TM+5}")
e("s_mov_b64 exec, -1")
e("s_waitcnt lgkmcnt(0)")
for k in range(8): e(f"ds_read_b32 v{Aa+k}, v{Bb+k} offset:512")
e(f"s_lshl_b32 s{sT0}, s{sST}, 2")
e(f"s_add_u32 s{sT0}, s{sT0}, {L_LIST}")
e(f"v_lshrrev_b32 v{VEN}, 3, v1")
e(f"v_lshlrev_b32 v{VEN}, 4, v{VEN}")
e(f"v_add_u32 v{VEN}, s{sT0}, v{VEN}")
e(f"v_and_b32 v{VED}, 7, v1")
e(f"v_bfe_u32 v{TM+4}, v1, 3, 1")
e(f"v_lshl_add_u32 v{VED}, v{VED}, 2, v{TM+4}")
e(f"v_lshlrev_b32 v{VED}, 2, v{VED}")
e(f"v_add_u32 v{VED}, s{sT0}, v{VED}")
for k in range(8):
    e(f"s_waitcnt lgkmcnt({7 if k else 7})" if False else f"s_waitcnt lgkmcnt(7)")
    e(f"v_lshl_add_u32 v{Aa+k}, v{Rr+k}, 2, v{Aa+k}")
    e(f"s_mov_b64 exec, s[{52+2*k}:{53+2*k}]")
    e(f"ds_write_b32 v{Aa+k}, v{Ee+k}")
    e("s_mov_b64 exec, -1")
e("s_waitcnt lgkmcnt(0)")
e("s_barrier")
stamp(6)
def dma(buf, en):
    e(f"s_add_u32 m0, s{sBUFB}, {buf*4096}")
    for i in range(4):
        e(f"v_and_or_b32 v{TM+i}, v{en+i}, s{sMSRC}, v{VLO}")
        e(f"buffer_load_dwordx4 v{TM+i}, s[20:23], 0 offen lds")
        if i<3: e("s_add_u32 m0, m0, 1024")
e(f"s_cmp_eq_u32 s{sREM}, 0")
e("s_cbranch_scc1 G_next")
if PRIO: e("s_setprio 3")
e(f"ds_read_b128 {v(EN,4)}, v{VEN}")
e(f"ds_read_b128 {v(P,4)}, v{VEN} offset:128")
e(f"ds_read2_b32 {v(ED,2)}, v{VED} offset0:0 offset1:2")
e("s_waitcnt lgkmcnt(2)")
dma(0,EN)
e(f"s_cmp_lt_u32 s{sREM}, 2")
e("s_waitcnt lgkmcnt(0)")
e("s_cbranch_scc1 G_loop")
dma(1,P)
e("G_loop:")
def tile(buf):
    L=f"G_t{buf}"
    if PRIO:
        for j,(th,p) in enumerate(((5,2),(3,1),(1,0)) if PRIO==1 else ((6,2),(4,1),(2,0))):
            e(f"s_cmp_lg_u32 s{sREM}, {th}")
            e(f"s_cbranch_scc1 {L}p{j}")
            e(f"s_setprio {p}")
            e(f"{L}p{j}:")
    e(f"v_and_or_b32 v{TM+4}, v{ED}, s{sM78}, v{VQT}")
    e(f"v_and_or_b32 v{TM+5}, v{ED+1}, s{sM78}, v{VQT}")
    e(f"ds_read_b64 {v(OH,2)}, v{TM+4}")
    e(f"ds_read_b64 {v(OH+2,2)}, v{TM+5}")
    e(f"ds_read_b128 {v(EN,4)}, v{VEN} offset:{256+buf*128}")
    e(f"ds_read2_b32 {v(ED,2)}, v{VED} offset0:{32+buf*32} offset1:{34+buf*32}")
    e(f"s_cmp_lg_u32 s{sREM}, 1")
    e("s_waitcnt lgkmcnt(2)")
    e(f"v_mfma_f32_16x16x16_bf16 {v(LG,4)}, {v(OH,2)}, {v(MB,2)}, 0")
    e(f"v_mfma_f32_16x16x16_bf16 {v(LG+4,4)}, {v(OH+2,2)}, {v(MB,2)}, 0")
    e("s_waitcnt vmcnt(4)")
    e(f"s_cbranch_scc1 {L}a")
    e("s_waitcnt vmcnt(0)")
    e(f"{L}a:")
    for T in range(2):
        for s in range(2):
            e(f"ds_read_b128 {v(XA+T*8+s*4,4)}, v{AA+s} offset:{buf*4096+T*2048}")
    for t in range(4):
        for h in range(2):
            e(f"ds_read_b64_tr_b16 {v(XT+t*4+h*2,2)}, v{AT+t} offset:{buf*4096+h*2048}")
    e("s_waitcnt lgkmcnt(11)")
    e(f"v_mfma_f32_16x16x32_bf16 {v(LG,4)}, {v(XA,4)}, {v(QB,4)}, {v(LG,4)}")
    e("s_waitcnt lgkmcnt(10)")
    e(f"v_mfma_f32_16x16x32_bf16 {v(LG,4)}, {v(XA+4,4)}, {v(QB+4,4)}, {v(LG,4)}")
    e("s_waitcnt lgkmcnt(9)")
    e(f"v_mfma_f32_16x16x32_bf16 {v(LG+4,4)}, {v(XA+8,4)}, {v(QB,4)}, {v(LG+4,4)}")
    e("s_waitcnt lgkmcnt(8)")
    e(f"v_mfma_f32_16x16x32_bf16 {v(LG+4,4)}, {v(XA+12,4)}, {v(QB+4,4)}, {v(LG+4,4)}")
    e(f"s_cmp_lt_u32 s{sREM}, 3")
    e("s_waitcnt lgkmcnt(0)")
    e(f"s_cbranch_scc1 {L}b")
    dma(buf,EN)
    e(f"{L}b:")
    e("s_nop 5")
    for i in range(8): e(f"v_mul_f32 v{LG+i}, s{sC}, v{LG+i}")
    if not EXP&2:
      for i in range(8): e(f"v_exp_f32 v{LG+i}, v{LG+i}")
      for i in range(8): e(f"v_add_f32 v{LG+i}, 1.0, v{LG+i}")
      for i in range(8): e(f"v_rcp_f32 v{LG+i}, v{LG+i}")
    if buf==1:
        e(f"v_add_u32 v{VEN}, 256, v{VEN}")
        e(f"v_add_u32 v{VED}, 256, v{VED}")
    else: e("s_nop 0")
    for i in range(4): e(f"v_cvt_pk_bf16_f32 v{P+i}, v{LG+2*i}, v{LG+2*i+1}")
    e(f"s_sub_u32 s{sREM}, s{sREM}, 1")
    e(f"s_cmp_eq_u32 s{sREM}, 0")
    for t in range(4):
        e(f"v_mfma_f32_16x16x32_bf16 {v(ACC+t*4,4)}, {v(XT+t*4,4)}, {v(P,4)}, {v(ACC+t*4,4)}")
tile(0)
e("s_cbranch_scc1 G_next")
tile(1)
e("s_cbranch_scc0 G_loop")
e("G_next:")
stamp(7)
e(f"s_cmp_eq_u32 s{sSTATE}, 1")
e("s_cbranch_scc1 G_half2")
e(f"s_cmp_eq_u32 s{sSTATE}, 3")
e("s_cbranch_scc1 G_have")
e(f"s_mov_b32 s{sSTATE}, 3")
e(f"v_cmp_gt_u32 s[84:85], {G1//4}, v1")
e("s_waitcnt vmcnt(0)")
for k in range(4): e(f"v_cmp_ne_u32 s[{44+2*k}:{45+2*k}], 0, v{OC4+k}")
for k in range(4): e(f"s_and_b64 s[{44+2*k}:{45+2*k}], s[{44+2*k}:{45+2*k}], s[84:85]")
e("G_have:")
for k in range(4):
    e(f"s_ff1_i32_b64 s{sOW}, s[{44+2*k}:{45+2*k}]")
    e(f"s_cmp_lg_i32 s{sOW}, -1")
    e(f"s_cbranch_scc1 G_f{k}")
e("s_branch G_epi")
for k in range(4):
    e(f"G_f{k}:")
    e(f"s_bitset0_b64 s[{44+2*k}:{45+2*k}], s{sOW}")
    e(f"v_readlane_b32 s{sOW+4}, v{OC4+k}, s{sOW}")
    e(f"s_lshl_b32 s{sOW}, s{sOW}, 2")
    e(f"s_add_u32 s{sOW}, s{sOW}, {k}")
    e("s_branch G_ovl")
e("G_ovl:")
e(f"s_mul_i32 s{sT0}, s{sOW}, {CH*4}")
e(f"v_lshlrev_b32 v{TM}, 4, v0")
e(f"buffer_load_dwordx4 {v(Rr,4)}, v{TM}, s[40:43], s{sT0} offen sc1")
e(f"v_lshlrev_b32 v{TM}, 2, v0")
e("s_waitcnt vmcnt(0)")
for k in range(4): rawconv(v(Rr+k), v(Ee+k), sOW+4, v(TM), k)
for k in range(4): e(f"v_mov_b32 v{Ee+4+k}, 0")
e("s_branch G_again")
e("G_half2:")
for k in range(4):
    e(f"v_mov_b32 v{Ee+k}, v{SV+k}")
    e(f"v_mov_b32 v{Ee+4+k}, 0")
e(f"s_mov_b32 s{sSTATE}, 2")
e("s_branch G_again")
e("G_split:")
for k in range(4):
    e(f"v_mov_b32 v{SV+k}, v{Ee+4+k}")
    e(f"v_mov_b32 v{Ee+4+k}, 0")
e(f"s_mov_b32 s{sSTATE}, 1")
e("G_again:")
e("s_waitcnt lgkmcnt(0)")
e("s_barrier")
e(f"v_mov_b32 v{P}, 0\nv_mov_b32 v{P+1}, 0")
e(f"v_lshl_add_u32 v{TM}, v1, 3, v3")
e(f"ds_write_b64 v{TM}, {v(P,2)}")
e("s_waitcnt lgkmcnt(0)")
e("s_barrier")
e("s_branch G_batch")
e("G_epi:")
WV=40; BH=72; BL=80; DO=88
e(f"v_lshrrev_b32 v{DO}, 2, v1")
e(f"v_lshlrev_b32 v{DO}, 7, v{DO}")
e(f"v_and_b32 v{DO+1}, 3, v1")
e(f"v_lshl_add_u32 v{DO}, v{DO+1}, 5, v{DO}")
e(f"v_add_u32 v{DO}, {L_WV}, v{DO}")
for mt in range(4):
    for u in range(4):
        e(f"ds_read_b64_tr_b16 {v(WV+mt*8+u*2,2)}, v{DO} offset:{u*2048+mt*8}")
for i in range(8):
    e(f"v_cvt_pk_bf16_f32 v{BH+i}, v{ACC+2*i}, v{ACC+2*i+1}")
    e(f"v_lshlrev_b32 v{QB}, 16, v{BH+i}")
    e(f"v_and_b32 v{QB+1}, 0xffff0000, v{BH+i}")
    e(f"v_sub_f32 v{QB}, v{ACC+2*i}, v{QB}")
    e(f"v_sub_f32 v{QB+1}, v{ACC+2*i+1}, v{QB+1}")
    e(f"v_cvt_pk_bf16_f32 v{BL+i}, v{QB}, v{QB+1}")
e(f"v_and_b32 v{QB+2}, 15, v1")
e(f"v_lshrrev_b32 v{QB+3}, 4, v1")
e(f"v_lshlrev_b32 v{QB+4}, 7, v{QB+2}")
e(f"v_lshl_add_u32 v{QB+4}, v{QB+3}, 5, v{QB+4}")
e(f"v_cmp_gt_u32 vcc, {GS}, v{QB+2}")
e("s_waitcnt lgkmcnt(0)")
for B,h,z in ((BL,0,1),(BL+4,4,0),(BH,0,0),(BH+4,4,0)):
    for mt in range(4):
        e(f"v_mfma_f32_16x16x32_bf16 {v(DO+mt*4,4)}, {v(WV+mt*8+h,4)}, {v(B,4)}, {'0' if z else v(DO+mt*4,4)}")
e("s_nop 7")
for i in range(8): e(f"v_cvt_pk_bf16_f32 v{ACC+i}, v{DO+2*i}, v{DO+2*i+1}")
e("s_and_saveexec_b64 s[84:85], vcc")
e(f"buffer_store_dwordx4 {v(ACC,4)}, v{QB+4}, s[32:35], s{sNODE} offen")
e(f"buffer_store_dwordx4 {v(ACC+4,4)}, v{QB+4}, s[32:35], s{sNODE} offen offset:16")
stamp_out()
e("G_end:")
e("s_endpgm")
e('.section .rodata,"a"')
e(f""".p2align 6
.amdhsa_kernel {KN}
  .amdhsa_next_free_vgpr 112
  .amdhsa_next_free_sgpr 100
  .amdhsa_accum_offset 112
  .amdhsa_group_segment_fixed_size 0
  .amdhsa_kernarg_size 64
  .amdhsa_user_sgpr_count 2
  .amdhsa_user_sgpr_kernarg_segment_ptr 1
  .amdhsa_system_sgpr_workgroup_id_x 1
.end_amdhsa_kernel""")
dst = sys.argv[1] if len(sys.argv)>1 else 'gather_scatter__kernel_systems_refs_featgraph__graph.s'
open(dst,'w').write('\n'.join(out)+'\n')
```

```python
import sys, os
N=50000; E=800000
G1=240; CH=3336
GS=13; NB=241
SLOTB=G1*128; SLOT_BYTES=NB*SLOTB
GO_OFF=0x7d0000; ARR=0x8000
XO_OFF=0x7f0000
OC_OFF=0x800000
OV_OFF=0x810000
L_LIST=131072; CAP=5760
L_HIST=L_LIST+CAP*4; L_BASE=L_HIST+512; L_T=L_BASE+512; L_WV=L_T+512
L_IMG=32768; L_CNT=65536
assert L_HIST%512==0 and L_T%128==0 and L_WV+8192==163840
STAMP=int(os.environ.get('STAMP','0')); ST_OFF=0x1000000
PF0=int(os.environ.get('PF0','0')); PFPOS=int(os.environ.get('PFPOS','0'))
OOBPAD=int(os.environ.get('OOBPAD','0')); PRIO=int(os.environ.get('PRIO','0'))
EXP=int(os.environ.get('EXP','0'))
CPF=int(os.environ.get('CPF','0'))
DLY=os.environ.get('DLY','')
SLEEP=int(os.environ.get('SLEEP','4'))
KN="gather_scatter__kernel_systems_refs_featgraph__graph_kernel"
out=[]
def e(s): out.append(s)
def v(i,n=1): return f"v{i}" if n==1 else f"v[{i}:{i+n-1}]"
def stamp(k):
    if not STAMP: return
    e("s_memrealtime s[96:97]")
    e("s_waitcnt lgkmcnt(0)")
    if k==0:
        for j in range(1,8): e(f"s_mov_b32 s{88+j}, 0")
        e(f"s_mov_b32 s{88+k}, s96")
    else:
        e(f"s_cmp_eq_u32 s{88+k}, 0")
        e(f"s_cselect_b32 s{88+k}, s96, s{88+k}")
def delay(tag):
    if tag not in DLY: return
    e("s_memrealtime s[96:97]")
    e("s_waitcnt lgkmcnt(0)")
    e("s_add_u32 s98, s96, 500")
    e(f"D_{tag}:")
    e("s_sleep 2")
    e("s_memrealtime s[96:97]")
    e("s_waitcnt lgkmcnt(0)")
    e("s_sub_u32 s99, s96, s98")
    e("s_cmp_lt_i32 s99, 0")
    e(f"s_cbranch_scc1 D_{tag}")
def abs_start():
    if 'z' not in DLY: return
    e("s_memrealtime s[96:97]")
    e("s_waitcnt lgkmcnt(0)")
    e("s_add_u32 s98, s96, 4000")
def abs_end():
    if 'z' not in DLY: return
    e("D_z:")
    e("s_sleep 2")
    e("s_memrealtime s[96:97]")
    e("s_waitcnt lgkmcnt(0)")
    e("s_sub_u32 s99, s96, s98")
    e("s_cmp_lt_i32 s99, 0")
    e(f"s_cbranch_scc1 D_z")
def stamp_out():
    if not STAMP: return
    if STAMP==3:
        e("s_waitcnt vmcnt(0)")
        e("s_memrealtime s[96:97]")
        e("s_mov_b64 exec, 1")
        srd(28, 16, 256)
        e("v_mov_b32 v2, 0")
        e(f"s_lshl_b32 s3, s2, 4")
        e(f"s_add_u32 s3, s3, s{sW}")
        for k in range(8): e(f"v_mov_b32 v{4+k}, s{88+k}")
        e("s_waitcnt lgkmcnt(0)")
        e("v_mov_b32 v12, s96")
        e(f"s_cmp_eq_u32 s3, {100*16+15}")
        e("s_cbranch_scc0 S_a")
        e("buffer_store_dwordx4 v[4:7], v2, s[28:31], 0 offen offset:8")
        e("buffer_store_dwordx4 v[8:11], v2, s[28:31], 0 offen offset:24")
        e("buffer_store_dword v12, v2, s[28:31], 0 offen offset:40")
        e("S_a:")
        e(f"s_cmp_eq_u32 s3, {240*16}")
        e("s_cbranch_scc0 S_b")
        e("buffer_store_dwordx2 v[7:8], v2, s[28:31], 0 offen offset:44" if 0 else "v_mov_b32 v14, v7\nv_mov_b32 v15, v8\nbuffer_store_dwordx2 v[14:15], v2, s[28:31], 0 offen offset:44")
        e("S_b:")
        e(f"s_cmp_eq_u32 s3, {37*16+0}")
        e("s_cbranch_scc0 S_c")
        e("v_mov_b32 v14, v4\nv_mov_b32 v15, v11\nv_mov_b32 v16, v12\nbuffer_store_dwordx3 v[14:16], v2, s[28:31], 0 offen offset:52")
        e("S_c:")
        return
    if STAMP==2:
        e("s_waitcnt vmcnt(0)")
        e("s_memrealtime s[96:97]")
        e("s_mov_b64 exec, 1")
        srd(28, 16, 256)
        e("v_mov_b32 v2, 0")
        e("s_not_b32 s3, s88")
        e("v_mov_b32 v3, s3")
        e("buffer_atomic_umax v3, v2, s[28:31], 0 offen offset:8")
        e("s_not_b32 s3, s92")
        e("v_mov_b32 v12, s3")
        e("buffer_atomic_umax v12, v2, s[28:31], 0 offen offset:12")
        for k in range(8):
            e(f"v_mov_b32 v{4+k}, s{88+k}")
            e(f"buffer_atomic_umax v{4+k}, v2, s[28:31], 0 offen offset:{16+4*k}")
        e("s_waitcnt lgkmcnt(0)")
        e("v_mov_b32 v13, s96")
        e("buffer_atomic_umax v13, v2, s[28:31], 0 offen offset:48")
        return
    e("s_mov_b64 exec, 1")
    e(f"s_add_u32 s96, s18, {ST_OFF}")
    e("s_addc_u32 s97, s19, 0")
    e("s_mov_b32 s98, 0x100000\ns_mov_b32 s99, 0x00020000")
    e("v_lshrrev_b32 v2, 6, v0")
    e("s_lshl_b32 s3, s2, 4")
    e("v_add_u32 v2, s3, v2")
    e("v_lshlrev_b32 v2, 5, v2")
    for k in range(8): e(f"v_mov_b32 v{4+k}, s{88+k}")
    e("buffer_store_dwordx4 v[4:7], v2, s[96:99], 0 offen")
    e("buffer_store_dwordx4 v[8:11], v2, s[96:99], 0 offen offset:16")
def srd(d, lo, size, off=0):
    if off:
        e(f"s_add_u32 s{d}, s{lo}, {off}"); e(f"s_addc_u32 s{d+1}, s{lo+1}, 0")
    else:
        e(f"s_mov_b32 s{d}, s{lo}"); e(f"s_mov_b32 s{d+1}, s{lo+1}")
    e(f"s_mov_b32 s{d+2}, {size}"); e(f"s_mov_b32 s{d+3}, 0x00020000")
def entry(dst, src, ent, gg, t1, t2):
    e(f"v_mul_u32_u24 {gg}, 40330, {dst}")
    e(f"v_lshrrev_b32 {gg}, 19, {gg}")
    e(f"v_mad_i32_i24 {t1}, {gg}, -13, {dst}")
    e(f"v_lshl_or_b32 {ent}, {src}, 7, s{sSIGN}")
    e(f"v_lshl_or_b32 {ent}, {t1}, 3, {ent}")
    e(f"v_lshrrev_b32 {t1}, 13, {src}")
    e(f"v_and_b32 {t2}, 15, {gg}")
    e(f"v_lshl_or_b32 {t1}, {t2}, 3, {t1}")
    e(f"v_lshl_or_b32 {ent}, {t1}, 24, {ent}")
def rawconv(raw, ent, cnt_s=None, idx=None, k=0):
    e(f"v_lshrrev_b32 v{TM+1}, 16, {raw}")
    e(f"v_and_b32 v{TM+2}, 0xffff, {raw}")
    entry(f"v{TM+1}", f"v{TM+2}", ent, f"v{TM+3}", f"v{TM+4}", f"v{TM+5}")
    e(f"v_lshrrev_b32 v{TM+3}, 4, v{TM+3}")
    e(f"v_cmp_eq_u32 vcc, s2, v{TM+3}")
    if cnt_s is not None:
        e(f"v_add_u32 v{TM+4}, {k}, {idx}")
        e(f"v_cmp_gt_u32 s[84:85], s{cnt_s}, v{TM+4}")
        e("s_and_b64 vcc, vcc, s[84:85]")
    e("s_nop 1")
    e(f"v_cndmask_b32 {ent}, 0, {ent}, vcc")

for l in open('gather_scatter__kernel_systems_refs_featgraph__graph.s.ref').read().split('\n'):
    if l.startswith('; @launch'): continue
    if l.startswith(';'): e(l)
    else: break
e(f"; @launch grid=({NB},1,1) block=(1024,1,1) lds=163840")
e('.amdgcn_target "amdgcn-amd-amdhsa--gfx950"\n.text')
ACC=4; QB=20; MB=28; AT=30; AA=34; VLO=36; VQT=37; VEN=38; VED=39
XA=40; XT=56; OH=72; LG=76; P=84; EN=88; ED=92; TM=94; SV=100; OC4=104; PFV=108
Ee=40; Rr=48; Bb=56; Aa=64
sW=68; sST=69; sCNT=70; sREM=71; sSTATE=72; sMSRC=73; sM78=74; sC=75; sT0=76; sT1=77; sBUFB=78; sSIGN=79; sM1FC=80; sNODE=81; sOW=82; sEOFF=83; sGO=87
e(f".globl {KN}\n.p2align 8\n.type {KN},@function\n{KN}:")
e(f"s_cmp_ge_u32 s2, {NB}")
e("s_cbranch_scc1 G_end")
if CPF:
    e("s_getpc_b64 s[4:5]")
    e("v_lshlrev_b32 v1, 6, v0")
    e(f"v_min_u32 v1, G_end-{KN}-16, v1")
    e("v_cmp_gt_u32 vcc, 0x80, v0")
    e("s_and_saveexec_b64 s[6:7], vcc")
    e("s_cbranch_execz G_nocpf")
    e("global_load_dword v110, v1, s[4:5]")
    e("G_nocpf:")
    e("s_mov_b64 exec, -1")
delay("a")
abs_start()
stamp(0)
e("s_load_dwordx16 s[4:19], s[0:1], 0")
e("v_lshrrev_b32 v2, 6, v0")
e("v_and_b32 v1, 63, v0")
e(f"v_readfirstlane_b32 s{sW}, v2")
e(f"s_mov_b32 s{sMSRC}, {0x1ff80 if EXP&1 else 0x7fff80}")
e(f"s_movk_i32 s{sM78}, 0x78")
e(f"s_mov_b32 s{sC}, 0xbe38aa3b")
e(f"s_mov_b32 s{sSIGN}, 0x80000000")
e(f"s_movk_i32 s{sM1FC}, 0x1fc")
e(f"s_mov_b32 s{sSTATE}, 0")
e(f"v_lshlrev_b32 v2, 4, v1")
e(f"v_lshlrev_b32 v3, 4, v0")
e(f"s_mul_i32 s{sEOFF}, s2, {CH*4}")
e(f"s_sub_u32 s{sT0}, {E*4}, s{sEOFF}")
e(f"s_max_i32 s{sT0}, s{sT0}, 0")
e(f"s_min_u32 s{sT0}, s{sT0}, {CH*4}")
e(f"v_cmp_gt_u32 s[52:53], s{sT0}, v3")
for k in range(4): e(f"v_mov_b32 v{P+k}, 0")
e("s_waitcnt lgkmcnt(0)")
srd(28, 6, E*4); srd(36, 8, E*4)
D_=40; S_=44; EN_=48; BK=52; RK=56
e("s_mov_b64 exec, s[52:53]")
e("s_cbranch_execz P_noload")
e(f"buffer_load_dwordx4 {v(D_,4)}, v3, s[36:39], s{sEOFF} offen")
e(f"buffer_load_dwordx4 {v(S_,4)}, v3, s[28:31], s{sEOFF} offen")
e("P_noload:")
e("s_mov_b64 exec, -1")
e(f"ds_write_b128 v3, {v(P,4)} offset:{L_IMG}")
e(f"ds_write_b128 v3, {v(P,4)} offset:{L_IMG+16384}")
e(f"v_lshlrev_b32 v{TM+3}, 3, v1")
e(f"v_and_b32 v{TM}, 15, v1")
e(f"v_lshrrev_b32 v{TM+1}, 4, v1")
e(f"s_cmp_eq_u32 s{sW}, 0")
e("s_cbranch_scc0 G_i1")
e(f"v_add_u32 v{TM+4}, {L_HIST}, v{TM+3}")
e(f"ds_write_b64 v{TM+4}, {v(P,2)}")
e(f"v_add_u32 v{TM+4}, {L_CNT}, v2")
e(f"ds_write_b128 v{TM+4}, {v(P,4)}")
e(f"v_mov_b32 v{TM+4}, {L_CNT+1024}")
e(f"v_mov_b32 v{EN}, -1\nv_mov_b32 v{EN+1}, -1")
e(f"ds_write_b64 v{TM+4}, {v(EN,2)}")
e("G_i1:")
e(f"v_lshlrev_b32 v{TM+4}, 2, v{TM+1}")
e(f"v_sub_u32 v{TM+4}, v{TM}, v{TM+4}")
e(f"v_mov_b32 v{P+2}, 0x3f80\nv_mov_b32 v{P+3}, 0x3f800000")
for r,(d0,d1) in enumerate([(0,1),(2,3)]):
    e(f"v_cmp_eq_u32 vcc, {d0}, v{TM+4}")
    e(f"v_cmp_eq_u32 s[46:47], {d1}, v{TM+4}")
    e(f"v_mov_b32 v{MB+r}, 0xf000f000")
    e(f"v_mov_b32 v{TM+5}, 0xf0000000")
    e(f"v_cndmask_b32 v{P+r}, 0, v{P+2}, vcc")
    e(f"v_cndmask_b32 v{P+r}, v{P+r}, v{P+3}, s[46:47]")
    e(f"v_cndmask_b32 v{MB+r}, v{MB+r}, v{TM+5}, vcc")
    e(f"v_mov_b32 v{TM+5}, 0x0000f000")
    e(f"v_cndmask_b32 v{MB+r}, v{MB+r}, v{TM+5}, s[46:47]")
e(f"s_cmp_eq_u32 s{sW}, 1")
e("s_cbranch_scc0 G_i2")
e(f"v_add_u32 v{TM+4}, {L_T}, v{TM+3}")
e(f"ds_write_b64 v{TM+4}, {v(P,2)}")
e("G_i2:")
srd(20, 4, N*128); srd(24, 18, SLOT_BYTES); srd(40, 18, G1*CH*4, OV_OFF); srd(32, 14, N*128)
e("s_waitcnt lgkmcnt(0)")
e("s_barrier")
stamp(1)
srd(44, 18, ARR+G1*128, GO_OFF)
srd(28, 16, 256)
e(f"s_lshl_b32 s{sGO}, s2, 7")
e(f"s_cmp_lg_u32 s{sW}, 0")
e("s_cbranch_scc1 P_nors")
e(f"v_mov_b32 v{TM+6}, 0")
e(f"s_cmp_ge_u32 s2, {G1}")
e("s_cbranch_scc1 P_mrs")
e("s_mov_b64 exec, 1")
e(f"buffer_store_dword v{TM+6}, v{TM+6}, s[44:47], s{sGO} offen sc1")
e("s_branch P_rsd")
e("P_mrs:")
e(f"v_lshlrev_b32 v{TM+7}, 7, v1")
for k in range(4):
    e(f"s_mov_b32 s{sT0}, {ARR+k*8192}")
    e(f"buffer_store_dword v{TM+6}, v{TM+7}, s[44:47], s{sT0} offen sc1")
e(f"v_mov_b32 v{TM+7}, 1")
e("s_mov_b64 exec, 1")
e("s_waitcnt vmcnt(0)")
e(f"buffer_store_dword v{TM+7}, v{TM+6}, s[28:31], 0 offen sc1")
e("P_rsd:")
e("s_mov_b64 exec, -1")
e("P_nors:")
e(f"s_cmp_ge_u32 s{sW}, 8")
e("s_cselect_b32 s36, s12, s10")
e("s_cselect_b32 s37, s13, s11")
e("s_mov_b32 s38, 8192\ns_mov_b32 s39, 0x00020000")
e(f"s_cselect_b32 s{sT0}, {L_WV}, 0")
e(f"s_and_b32 s{sT1}, s{sW}, 7")
e(f"s_lshl_b32 s{sT1}, s{sT1}, 10")
e(f"s_add_u32 m0, s{sT0}, s{sT1}")
e(f"s_lshl_b32 s{sNODE}, s2, 4")
e(f"buffer_load_dwordx4 v2, s[36:39], s{sT1} offen lds")
e(f"s_add_u32 s{sNODE}, s{sNODE}, s{sW}")
e(f"s_mul_i32 s{sNODE}, s{sNODE}, {GS*128}")
e(f"v_lshlrev_b32 v{TM+2}, 7, v{TM}")
e(f"v_lshl_add_u32 v{TM+2}, v{TM+1}, 4, v{TM+2}")
e(f"buffer_load_dwordx4 {v(72,4)}, v{TM+2}, s[20:23], s{sNODE} offen")
e(f"buffer_load_dwordx4 {v(76,4)}, v{TM+2}, s[20:23], s{sNODE} offen offset:64")
def prefetch():
    srd(36, 4, PF0*128)
    e(f"s_lshr_b32 s{sT0}, s2, 3")
    e(f"s_lshl_b32 s{sT0}, s{sT0}, 17")
    e(f"v_lshlrev_b32 v{PFV}, 7, v0")
    e(f"buffer_load_dword v{PFV+1}, v{PFV}, s[36:39], s{sT0} offen")
NPF=0
if PF0 and PFPOS==0: prefetch(); NPF=1
e(f"v_mov_b32 v2, 1")
e(f"v_mov_b32 v{TM+5}, {L_CNT}")
e("s_mov_b64 exec, s[52:53]")
e("s_cbranch_execz P_copy")
e(f"s_waitcnt vmcnt({3+NPF})")
for k in range(4):
    entry(v(D_+k), v(S_+k), v(EN_+k), v(BK+k), v(TM+2), v(TM+3))
    e(f"v_lshrrev_b32 v{BK+k}, 4, v{BK+k}")
    e(f"v_lshl_add_u32 v{TM+2}, v{BK+k}, 2, v{TM+5}")
    e(f"ds_add_rtn_u32 v{RK+k}, v{TM+2}, v2")
for k in range(4):
    e(f"s_waitcnt lgkmcnt({3-k})")
    e(f"v_add_u32 v{TM+2}, v{RK+k}, v{BK+k}")
    e(f"v_and_b32 v{TM+2}, 31, v{TM+2}")
    e(f"v_lshlrev_b32 v{TM+2}, 2, v{TM+2}")
    e(f"v_lshl_or_b32 v{TM+2}, v{BK+k}, 7, v{TM+2}")
    e(f"v_cmp_gt_u32 vcc, 32, v{RK+k}")
    e(f"s_and_saveexec_b64 s[50:51], vcc")
    e(f"ds_write_b32 v{TM+2}, v{EN_+k} offset:{L_IMG}")
    e(f"s_mov_b64 exec, s[50:51]")
e(f"v_max3_u32 v{TM+2}, v{RK}, v{RK+1}, v{RK+2}")
e(f"v_max_u32 v{TM+2}, v{TM+2}, v{RK+3}")
e(f"v_cmp_lt_u32 vcc, 31, v{TM+2}")
e("s_cbranch_vccz P_copy")
for k in range(4):
    e(f"v_cmp_lt_u32 vcc, 31, v{RK+k}")
    e(f"s_and_saveexec_b64 s[50:51], vcc")
    e(f"s_cbranch_execz P_ov{k}")
    e(f"ds_add_rtn_u32 v{TM+2}, v{TM+5}, v2 offset:1020")
    e(f"v_lshl_or_b32 v{TM+3}, v{D_+k}, 16, v{S_+k}")
    e(f"s_waitcnt lgkmcnt(0)")
    e(f"v_lshlrev_b32 v{TM+2}, 2, v{TM+2}")
    e(f"v_cmp_gt_u32 vcc, 8, v{TM+2}")
    e(f"v_add_u32 v{TM+4}, v{TM+5}, v{TM+2}")
    e(f"s_and_saveexec_b64 s[48:49], vcc")
    e(f"ds_write_b32 v{TM+4}, v{TM+3} offset:1024")
    e(f"s_andn2_b64 exec, s[48:49], exec")
    e(f"s_cbranch_execz P_ov{k}")
    e(f"v_subrev_u32 v{TM+2}, 8, v{TM+2}")
    e(f"buffer_store_dword v{TM+3}, v{TM+2}, s[40:43], s{sEOFF} offen sc1")
    e(f"s_waitcnt vmcnt(0)")
    e(f"P_ov{k}:")
    e(f"s_mov_b64 exec, s[50:51]")
e("P_copy:")
e("s_mov_b64 exec, -1")
e(f"v_lshrrev_b32 v{TM+2}, 3, v0")
e(f"v_mul_u32_u24 v{TM+2}, {SLOTB}, v{TM+2}")
e(f"v_and_b32 v{TM+3}, 7, v0")
e(f"v_lshl_add_u32 v{TM+2}, v{TM+3}, 4, v{TM+2}")
e(f"s_lshl_b32 s{sT0}, s2, 7")
e(f"s_add_u32 s{sT1}, s{sT0}, {128*SLOTB}")
e(f"s_waitcnt vmcnt({2+NPF}) lgkmcnt(0)")
e("s_barrier")
stamp(2)
e(f"s_cmp_ge_u32 s2, {G1}")
e("s_cbranch_scc1 P_nost")
e(f"s_cmp_lg_u32 s{sW}, 0")
e("s_cbranch_scc1 P_nord")
e("v_mov_b32 v111, 0")
e("buffer_load_dword v110, v111, s[28:31], 0 offen sc1")
e("P_nord:")
e(f"ds_read_b128 {v(40,4)}, v3 offset:{L_IMG}")
e(f"ds_read_b128 {v(44,4)}, v3 offset:{L_IMG+16384}")
e(f"ds_read_b32 v48, v{TM+5} offset:1020")
e(f"ds_read_b64 {v(50,2)}, v{TM+5} offset:1024")
e("s_waitcnt lgkmcnt(3)")
e(f"buffer_store_dwordx4 {v(40,4)}, v{TM+2}, s[24:27], s{sT0} offen sc1")
e("s_waitcnt lgkmcnt(2)")
e(f"buffer_store_dwordx4 {v(44,4)}, v{TM+2}, s[24:27], s{sT1} offen sc1")
e("v_cmp_eq_u32 vcc, 0, v0")
e("s_and_saveexec_b64 s[50:51], vcc")
e("s_cbranch_execz P_st2")
srd(36, 18, 0x20000, XO_OFF)
e(f"s_lshl_b32 s{sT0}, s2, 3")
e(f"s_lshl_b32 s{sT1}, s2, 2")
e(f"s_add_u32 s{sT1}, s{sT1}, {OC_OFF-XO_OFF}")
e("v_mov_b32 v49, 0")
e("s_waitcnt lgkmcnt(0)")
e("v_max_u32 v48, 2, v48")
e("v_subrev_u32 v48, 2, v48")
e(f"buffer_store_dwordx2 {v(50,2)}, v49, s[36:39], s{sT0} offen sc1")
e(f"buffer_store_dword v48, v49, s[36:39], s{sT1} offen sc1")
e("P_st2:")
e("s_mov_b64 exec, -1")
e("P_nost:")
e(f"s_lshl_b32 s{sBUFB}, s{sW}, 13")
e(f"v_lshlrev_b32 v{VQT}, 7, v{TM+1}")
e(f"v_add_u32 v{VQT}, {L_T}, v{VQT}")
e(f"v_and_b32 v{TM+4}, 7, v1")
e(f"v_lshlrev_b32 v{TM+5}, 1, v{TM+1}")
e(f"v_xor_b32 v{VLO}, v{TM+4}, v{TM+5}")
e(f"v_lshlrev_b32 v{VLO}, 4, v{VLO}")
e(f"v_and_b32 v{TM+4}, 6, v{TM}")
e(f"v_xor_b32 v{TM+4}, v{TM+4}, v{TM+1}")
e(f"v_lshlrev_b32 v{TM+4}, 4, v{TM+4}")
e(f"v_lshl_add_u32 v{AA}, v{TM}, 7, v{TM+4}")
e(f"v_add_u32 v{AA}, s{sBUFB}, v{AA}")
e(f"v_xor_b32 v{AA+1}, 64, v{AA}")
e(f"v_lshrrev_b32 v{TM+4}, 2, v1")
e(f"v_lshlrev_b32 v{TM+4}, 7, v{TM+4}")
e(f"v_and_b32 v{TM+5}, 3, v1")
e(f"v_lshl_add_u32 v{TM+4}, v{TM+5}, 3, v{TM+4}")
e(f"v_bfe_u32 v{TM+5}, v1, 3, 2")
e(f"v_lshl_add_u32 v{AT}, v{TM+5}, 5, v{TM+4}")
e(f"v_add_u32 v{AT}, s{sBUFB}, v{AT}")
for t in range(1,4): e(f"v_xor_b32 v{AT+t}, {t*32}, v{AT}")
e(f"v_bfe_u32 v{TM+4}, v1, 2, 2")
e(f"v_lshl_add_u32 v{TM+4}, v{TM+1}, 3, v{TM+4}")
e(f"v_lshlrev_b32 v{TM+4}, 7, v{TM+4}")
e(f"v_and_b32 v{TM+5}, 3, v1")
e(f"v_lshl_add_u32 v{TM+4}, v{TM+5}, 4, v{TM+4}")
WQ=[56,64,84,100]
for mt in range(4):
    for s in range(2):
        for h in range(2):
            e(f"ds_read_b64_tr_b16 {v(WQ[mt]+s*4+h*2,2)}, v{TM+4} offset:{s*4096+h*512+(mt//2)*64+(mt%2)*8}")
e("s_waitcnt vmcnt(0)")
for mt in range(4):
    e(f"s_waitcnt lgkmcnt({12-4*mt})")
    e(f"v_mfma_f32_16x16x32_bf16 {v(ACC+mt*4,4)}, {v(WQ[mt],4)}, {v(72,4)}, 0")
    e(f"v_mfma_f32_16x16x32_bf16 {v(ACC+mt*4,4)}, {v(WQ[mt]+4,4)}, {v(76,4)}, {v(ACC+mt*4,4)}")
e("s_barrier")
stamp(3)
e(f"s_cmp_lg_u32 s{sW}, 0")
e("s_cbranch_scc1 P_nopoll")
e(f"s_mov_b32 s{sT1}, 0x40000")
e(f"s_cmp_ge_u32 s2, {G1}")
e("s_cbranch_scc1 P_master")
e("s_mov_b64 exec, 1")
e(f"v_mov_b32 v{TM+4}, 0")
e(f"v_cmp_eq_u32 vcc, 1, v110")
e("s_cbranch_vccnz P_arr")
e("P_rpoll:")
e(f"buffer_load_dword v{TM+5}, v{TM+4}, s[28:31], 0 offen sc1")
e(f"s_sub_u32 s{sT1}, s{sT1}, 1")
e("s_cbranch_scc1 P_pdone")
e("s_waitcnt vmcnt(0)")
e(f"v_cmp_eq_u32 vcc, 1, v{TM+5}")
e("s_cbranch_vccz P_rpoll")
e("P_arr:")
e(f"s_add_u32 s{sT0}, s{sGO}, {ARR}")
e(f"buffer_store_dword v2, v{TM+4}, s[44:47], s{sT0} offen sc1")
e("P_poll:")
e(f"buffer_load_dword v{TM+5}, v{TM+4}, s[44:47], s{sGO} offen sc1")
e(f"s_sub_u32 s{sT1}, s{sT1}, 1")
e("s_cbranch_scc1 P_pdone")
e("s_waitcnt vmcnt(0)")
e(f"v_cmp_eq_u32 vcc, 1, v{TM+5}")
e("s_cbranch_vccnz P_pdone")
if SLEEP: e(f"s_sleep {SLEEP}")
e("s_branch P_poll")
e("P_master:")
e(f"v_lshlrev_b32 v{TM+4}, 7, v1")
e(f"v_cmp_le_u32 s[48:49], {G1-192}, v1")
e("P_mpoll:")
for k in range(4):
    e(f"s_mov_b32 s{sT0}, {ARR+k*8192}")
    e(f"buffer_load_dword v{40+k}, v{TM+4}, s[44:47], s{sT0} offen sc1")
e(f"s_sub_u32 s{sT1}, s{sT1}, 1")
e("s_cbranch_scc1 P_mdone")
e("s_waitcnt vmcnt(0)")
e("v_and_b32 v40, v40, v41")
e("v_cmp_eq_u32 vcc, 1, v43")
e("v_and_b32 v40, v40, v42")
e("s_or_b64 s[50:51], vcc, s[48:49]")
e("v_cmp_eq_u32 vcc, 1, v40")
e("s_and_b64 vcc, vcc, s[50:51]")
e("s_cmp_eq_u64 vcc, -1")
e("s_cbranch_scc0 P_mpoll")
e("P_mdone:")
e(f"v_lshlrev_b32 v{TM+4}, 7, v1")
for k in range(4):
    e(f"s_mov_b32 s{sT0}, {k*8192}")
    e(f"buffer_store_dword v2, v{TM+4}, s[44:47], s{sT0} offen sc1")
e("P_pdone:")
e("s_mov_b64 exec, -1")
e("P_nopoll:")
NPF2=0
if PF0 and PFPOS==1: prefetch(); NPF2=1
for mt in range(4):
    e(f"v_cvt_pk_bf16_f32 v{QB+mt*2}, v{ACC+mt*4}, v{ACC+mt*4+1}")
    e(f"v_cvt_pk_bf16_f32 v{QB+mt*2+1}, v{ACC+mt*4+2}, v{ACC+mt*4+3}")
for i in range(16): e(f"v_mov_b32 v{ACC+i}, 0")
srd(36, 18, 0x20000, XO_OFF)
e(f"s_mul_i32 s{sT0}, s2, {SLOTB}")
e(f"s_add_u32 s{sT1}, s{sT0}, 16384")
e("s_barrier")
delay("b")
stamp(4)
e(f"buffer_load_dwordx4 {v(Ee,4)}, v3, s[24:27], s{sT0} offen sc1")
e(f"s_cmp_ge_u32 s{sW}, 14")
e("s_cbranch_scc1 G_xo")
e(f"buffer_load_dwordx4 {v(Ee+4,4)}, v3, s[24:27], s{sT1} offen sc1")
e(f"v_mov_b32 v3, {L_HIST}")
e("s_waitcnt vmcnt(0)")
e("s_branch G_batch")
e("G_xo:")
e(f"v_subrev_u32 v{TM}, {896*16}, v3")
e(f"buffer_load_dwordx4 {v(Rr,4)}, v{TM}, s[36:39], 0 offen sc1")
e(f"s_movk_i32 s{sT1}, {G1*2}")
e(f"v_lshrrev_b32 v{TM}, 2, v{TM}")
e(f"v_mov_b32 v3, {L_HIST}")
e("s_waitcnt vmcnt(0)")
for k in range(4): rawconv(v(Rr+k), v(Ee+4+k), sT1, v(TM), k)
e("G_batch:")
for k in range(8):
    e(f"v_cmp_gt_i32 s[{52+2*k}:{53+2*k}], 0, v{Ee+k}")
    e(f"v_lshrrev_b32 v{Bb+k}, 22, v{Ee+k}")
    e(f"v_and_or_b32 v{Bb+k}, v{Bb+k}, s{sM1FC}, v3")
for k in range(8):
    e(f"s_mov_b64 exec, s[{52+2*k}:{53+2*k}]")
    e(f"ds_add_rtn_u32 v{Rr+k}, v{Bb+k}, v2")
e("s_mov_b64 exec, -1")
e(f"v_lshl_add_u32 v{TM}, v1, 3, v3")
e(f"s_cmp_lg_u32 s{sSTATE}, 0")
e("s_cbranch_scc1 G_nooc")
e(f"v_lshlrev_b32 v{TM+1}, 4, v1")
e(f"s_mov_b32 s{sT0}, {OC_OFF-XO_OFF}")
e(f"buffer_load_dwordx4 {v(OC4,4)}, v{TM+1}, s[36:39], s{sT0} offen sc1")
if PF0 and PFPOS==2:
    srd(28, 4, PF0*128)
    e(f"s_lshr_b32 s{sT0}, s2, 3")
    e(f"s_lshl_b32 s{sT0}, s{sT0}, 17")
    e(f"v_lshlrev_b32 v{PFV}, 7, v0")
    e(f"buffer_load_dword v{PFV+1}, v{PFV}, s[28:31], s{sT0} offen")
e("G_nooc:")
e(f"s_waitcnt lgkmcnt(0)")
e("s_barrier")
stamp(5)
c0,c1,s_,tot,vv,inc = P,P+1,P+2,P+3,TM+1,TM+2
e(f"ds_read_b64 {v(c0,2)}, v{TM}")
e(f"v_and_b32 v{TM+3}, 3, v1")
e(f"v_cmp_eq_u32 vcc, 3, v{TM+3}")
e("s_waitcnt lgkmcnt(0)")
e(f"v_add_u32 v{s_}, v{c0}, v{c1}")
e("s_nop 1")
e(f"v_add_u32_dpp v{tot}, v{s_}, v{s_} quad_perm:[1,0,3,2] row_mask:0xf bank_mask:0xf")
e("s_nop 1")
e(f"v_add_u32_dpp v{tot}, v{tot}, v{tot} quad_perm:[2,3,0,1] row_mask:0xf bank_mask:0xf")
e(f"v_sub_u32 v{TM+3}, 0, v{tot}")
e(f"v_and_b32 v{TM+3}, 31, v{TM+3}")
e(f"v_cndmask_b32 v{TM+3}, 0, v{TM+3}, vcc")
e(f"v_add_u32 v{vv}, v{s_}, v{TM+3}")
e(f"v_mov_b32 v{inc}, v{vv}")
for sh in (1,2,4,8):
    e("s_nop 1")
    e(f"v_add_u32_dpp v{inc}, v{inc}, v{inc} row_shr:{sh} row_mask:0xf bank_mask:0xf bound_ctrl:0")
e("s_nop 1")
e(f"v_add_u32_dpp v{inc}, v{inc}, v{inc} row_bcast:15 row_mask:0xa bank_mask:0xf")
e("s_nop 1")
e(f"v_add_u32_dpp v{inc}, v{inc}, v{inc} row_bcast:31 row_mask:0xc bank_mask:0xf")
e(f"s_lshl_b32 s{sT1}, s{sW}, 2")
e(f"v_sub_u32 v{vv}, v{inc}, v{vv}")
e(f"v_readlane_b32 s{sT0}, v{inc}, 63")
e(f"v_readlane_b32 s{sCNT}, v{tot}, s{sT1}")
e(f"v_readlane_b32 s{sST}, v{vv}, s{sT1}")
e(f"v_add_u32 v{c1}, v{vv}, v{c0}")
e(f"v_mov_b32 v{TM+3}, {L_LIST}")
e(f"v_lshl_add_u32 v{c0}, v{vv}, 2, v{TM+3}")
e(f"v_lshl_add_u32 v{c1}, v{c1}, 2, v{TM+3}")
e(f"s_cmp_gt_u32 s{sT0}, {CAP}")
e("s_cbranch_scc1 G_split")
e(f"ds_write_b64 v{TM}, {v(c0,2)} offset:512")
e(f"s_add_u32 s{sT0}, s{sST}, s{sCNT}")
e(f"s_add_u32 s{sREM}, s{sCNT}, 31")
e(f"s_lshr_b32 s{sREM}, s{sREM}, 5")
e(f"s_lshl_b32 s{sT1}, s{sREM}, 5")
e(f"s_sub_u32 s{sT1}, s{sT1}, s{sCNT}")
e(f"v_add_u32 v{TM+4}, s{sT0}, v1")
e(f"v_lshl_add_u32 v{TM+4}, v{TM+4}, 2, v{TM+3}")
e(f"v_mov_b32 v{TM+5}, {0x7ffff8 if OOBPAD else 0x78}")
e(f"v_cmp_gt_u32 vcc, s{sT1}, v1")
e("s_and_saveexec_b64 s[84:85], vcc")
e(f"ds_write_b32 v{TM+4}, v{TM+5}")
e("s_mov_b64 exec, -1")
e("s_waitcnt lgkmcnt(0)")
for k in range(8): e(f"ds_read_b32 v{Aa+k}, v{Bb+k} offset:512")
e(f"s_lshl_b32 s{sT0}, s{sST}, 2")
e(f"s_add_u32 s{sT0}, s{sT0}, {L_LIST}")
e(f"v_lshrrev_b32 v{VEN}, 3, v1")
e(f"v_lshlrev_b32 v{VEN}, 4, v{VEN}")
e(f"v_add_u32 v{VEN}, s{sT0}, v{VEN}")
e(f"v_and_b32 v{VED}, 7, v1")
e(f"v_bfe_u32 v{TM+4}, v1, 3, 1")
e(f"v_lshl_add_u32 v{VED}, v{VED}, 2, v{TM+4}")
e(f"v_lshlrev_b32 v{VED}, 2, v{VED}")
e(f"v_add_u32 v{VED}, s{sT0}, v{VED}")
for k in range(8):
    e(f"s_waitcnt lgkmcnt({7 if k else 7})" if False else f"s_waitcnt lgkmcnt(7)")
    e(f"v_lshl_add_u32 v{Aa+k}, v{Rr+k}, 2, v{Aa+k}")
    e(f"s_mov_b64 exec, s[{52+2*k}:{53+2*k}]")
    e(f"ds_write_b32 v{Aa+k}, v{Ee+k}")
    e("s_mov_b64 exec, -1")
e("s_waitcnt lgkmcnt(0)")
e("s_barrier")
stamp(6)
def dma(buf, en):
    e(f"s_add_u32 m0, s{sBUFB}, {buf*4096}")
    for i in range(4):
        e(f"v_and_or_b32 v{TM+i}, v{en+i}, s{sMSRC}, v{VLO}")
        e(f"buffer_load_dwordx4 v{TM+i}, s[20:23], 0 offen lds")
        if i<3: e("s_add_u32 m0, m0, 1024")
e(f"s_cmp_eq_u32 s{sREM}, 0")
e("s_cbranch_scc1 G_next")
if PRIO: e("s_setprio 3")
e(f"ds_read_b128 {v(EN,4)}, v{VEN}")
e(f"ds_read_b128 {v(P,4)}, v{VEN} offset:128")
e(f"ds_read2_b32 {v(ED,2)}, v{VED} offset0:0 offset1:2")
e("s_waitcnt lgkmcnt(2)")
dma(0,EN)
e(f"s_cmp_lt_u32 s{sREM}, 2")
e("s_waitcnt lgkmcnt(0)")
e("s_cbranch_scc1 G_loop")
dma(1,P)
e("G_loop:")
def tile(buf):
    L=f"G_t{buf}"
    if PRIO:
        for j,(th,p) in enumerate(((5,2),(3,1),(1,0)) if PRIO==1 else ((6,2),(4,1),(2,0))):
            e(f"s_cmp_lg_u32 s{sREM}, {th}")
            e(f"s_cbranch_scc1 {L}p{j}")
            e(f"s_setprio {p}")
            e(f"{L}p{j}:")
    e(f"v_and_or_b32 v{TM+4}, v{ED}, s{sM78}, v{VQT}")
    e(f"v_and_or_b32 v{TM+5}, v{ED+1}, s{sM78}, v{VQT}")
    e(f"ds_read_b64 {v(OH,2)}, v{TM+4}")
    e(f"ds_read_b64 {v(OH+2,2)}, v{TM+5}")
    e(f"ds_read_b128 {v(EN,4)}, v{VEN} offset:{256+buf*128}")
    e(f"ds_read2_b32 {v(ED,2)}, v{VED} offset0:{32+buf*32} offset1:{34+buf*32}")
    e(f"s_cmp_lg_u32 s{sREM}, 1")
    e("s_waitcnt lgkmcnt(2)")
    e(f"v_mfma_f32_16x16x16_bf16 {v(LG,4)}, {v(OH,2)}, {v(MB,2)}, 0")
    e(f"v_mfma_f32_16x16x16_bf16 {v(LG+4,4)}, {v(OH+2,2)}, {v(MB,2)}, 0")
    e("s_waitcnt vmcnt(4)")
    e(f"s_cbranch_scc1 {L}a")
    e("s_waitcnt vmcnt(0)")
    e(f"{L}a:")
    for T in range(2):
        for s in range(2):
            e(f"ds_read_b128 {v(XA+T*8+s*4,4)}, v{AA+s} offset:{buf*4096+T*2048}")
    for t in range(4):
        for h in range(2):
            e(f"ds_read_b64_tr_b16 {v(XT+t*4+h*2,2)}, v{AT+t} offset:{buf*4096+h*2048}")
    e("s_waitcnt lgkmcnt(11)")
    e(f"v_mfma_f32_16x16x32_bf16 {v(LG,4)}, {v(XA,4)}, {v(QB,4)}, {v(LG,4)}")
    e("s_waitcnt lgkmcnt(10)")
    e(f"v_mfma_f32_16x16x32_bf16 {v(LG,4)}, {v(XA+4,4)}, {v(QB+4,4)}, {v(LG,4)}")
    e("s_waitcnt lgkmcnt(9)")
    e(f"v_mfma_f32_16x16x32_bf16 {v(LG+4,4)}, {v(XA+8,4)}, {v(QB,4)}, {v(LG+4,4)}")
    e("s_waitcnt lgkmcnt(8)")
    e(f"v_mfma_f32_16x16x32_bf16 {v(LG+4,4)}, {v(XA+12,4)}, {v(QB+4,4)}, {v(LG+4,4)}")
    e(f"s_cmp_lt_u32 s{sREM}, 3")
    e("s_waitcnt lgkmcnt(0)")
    e(f"s_cbranch_scc1 {L}b")
    dma(buf,EN)
    e(f"{L}b:")
    e("s_nop 5")
    for i in range(8): e(f"v_mul_f32 v{LG+i}, s{sC}, v{LG+i}")
    if not EXP&2:
      for i in range(8): e(f"v_exp_f32 v{LG+i}, v{LG+i}")
      for i in range(8): e(f"v_add_f32 v{LG+i}, 1.0, v{LG+i}")
      for i in range(8): e(f"v_rcp_f32 v{LG+i}, v{LG+i}")
    if buf==1:
        e(f"v_add_u32 v{VEN}, 256, v{VEN}")
        e(f"v_add_u32 v{VED}, 256, v{VED}")
    else: e("s_nop 0")
    for i in range(4): e(f"v_cvt_pk_bf16_f32 v{P+i}, v{LG+2*i}, v{LG+2*i+1}")
    e(f"s_sub_u32 s{sREM}, s{sREM}, 1")
    e(f"s_cmp_eq_u32 s{sREM}, 0")
    for t in range(4):
        e(f"v_mfma_f32_16x16x32_bf16 {v(ACC+t*4,4)}, {v(XT+t*4,4)}, {v(P,4)}, {v(ACC+t*4,4)}")
tile(0)
e("s_cbranch_scc1 G_next")
tile(1)
e("s_cbranch_scc0 G_loop")
e("G_next:")
stamp(7)
e(f"s_cmp_eq_u32 s{sSTATE}, 1")
e("s_cbranch_scc1 G_half2")
e(f"s_cmp_eq_u32 s{sSTATE}, 3")
e("s_cbranch_scc1 G_have")
e(f"s_mov_b32 s{sSTATE}, 3")
e(f"v_cmp_gt_u32 s[84:85], {G1//4}, v1")
e("s_waitcnt vmcnt(0)")
for k in range(4): e(f"v_cmp_ne_u32 s[{44+2*k}:{45+2*k}], 0, v{OC4+k}")
for k in range(4): e(f"s_and_b64 s[{44+2*k}:{45+2*k}], s[{44+2*k}:{45+2*k}], s[84:85]")
e("G_have:")
for k in range(4):
    e(f"s_ff1_i32_b64 s{sOW}, s[{44+2*k}:{45+2*k}]")
    e(f"s_cmp_lg_i32 s{sOW}, -1")
    e(f"s_cbranch_scc1 G_f{k}")
e("s_branch G_epi")
for k in range(4):
    e(f"G_f{k}:")
    e(f"s_bitset0_b64 s[{44+2*k}:{45+2*k}], s{sOW}")
    e(f"v_readlane_b32 s{sOW+4}, v{OC4+k}, s{sOW}")
    e(f"s_lshl_b32 s{sOW}, s{sOW}, 2")
    e(f"s_add_u32 s{sOW}, s{sOW}, {k}")
    e("s_branch G_ovl")
e("G_ovl:")
e(f"s_mul_i32 s{sT0}, s{sOW}, {CH*4}")
e(f"v_lshlrev_b32 v{TM}, 4, v0")
e(f"buffer_load_dwordx4 {v(Rr,4)}, v{TM}, s[40:43], s{sT0} offen sc1")
e(f"v_lshlrev_b32 v{TM}, 2, v0")
e("s_waitcnt vmcnt(0)")
for k in range(4): rawconv(v(Rr+k), v(Ee+k), sOW+4, v(TM), k)
for k in range(4): e(f"v_mov_b32 v{Ee+4+k}, 0")
e("s_branch G_again")
e("G_half2:")
for k in range(4):
    e(f"v_mov_b32 v{Ee+k}, v{SV+k}")
    e(f"v_mov_b32 v{Ee+4+k}, 0")
e(f"s_mov_b32 s{sSTATE}, 2")
e("s_branch G_again")
e("G_split:")
for k in range(4):
    e(f"v_mov_b32 v{SV+k}, v{Ee+4+k}")
    e(f"v_mov_b32 v{Ee+4+k}, 0")
e(f"s_mov_b32 s{sSTATE}, 1")
e("G_again:")
e("s_waitcnt lgkmcnt(0)")
e("s_barrier")
e(f"v_mov_b32 v{P}, 0\nv_mov_b32 v{P+1}, 0")
e(f"v_lshl_add_u32 v{TM}, v1, 3, v3")
e(f"ds_write_b64 v{TM}, {v(P,2)}")
e("s_waitcnt lgkmcnt(0)")
e("s_barrier")
e("s_branch G_batch")
e("G_epi:")
WV=40; BH=72; BL=80; DO=88
e(f"v_lshrrev_b32 v{DO}, 2, v1")
e(f"v_lshlrev_b32 v{DO}, 7, v{DO}")
e(f"v_and_b32 v{DO+1}, 3, v1")
e(f"v_lshl_add_u32 v{DO}, v{DO+1}, 5, v{DO}")
e(f"v_add_u32 v{DO}, {L_WV}, v{DO}")
for mt in range(4):
    for u in range(4):
        e(f"ds_read_b64_tr_b16 {v(WV+mt*8+u*2,2)}, v{DO} offset:{u*2048+mt*8}")
for i in range(8):
    e(f"v_cvt_pk_bf16_f32 v{BH+i}, v{ACC+2*i}, v{ACC+2*i+1}")
    e(f"v_lshlrev_b32 v{QB}, 16, v{BH+i}")
    e(f"v_and_b32 v{QB+1}, 0xffff0000, v{BH+i}")
    e(f"v_sub_f32 v{QB}, v{ACC+2*i}, v{QB}")
    e(f"v_sub_f32 v{QB+1}, v{ACC+2*i+1}, v{QB+1}")
    e(f"v_cvt_pk_bf16_f32 v{BL+i}, v{QB}, v{QB+1}")
e(f"v_and_b32 v{QB+2}, 15, v1")
e(f"v_lshrrev_b32 v{QB+3}, 4, v1")
e(f"v_lshlrev_b32 v{QB+4}, 7, v{QB+2}")
e(f"v_lshl_add_u32 v{QB+4}, v{QB+3}, 5, v{QB+4}")
e(f"v_cmp_gt_u32 vcc, {GS}, v{QB+2}")
e("s_waitcnt lgkmcnt(0)")
for B,h,z in ((BL,0,1),(BL+4,4,0),(BH,0,0),(BH+4,4,0)):
    for mt in range(4):
        e(f"v_mfma_f32_16x16x32_bf16 {v(DO+mt*4,4)}, {v(WV+mt*8+h,4)}, {v(B,4)}, {'0' if z else v(DO+mt*4,4)}")
e("s_nop 7")
for i in range(8): e(f"v_cvt_pk_bf16_f32 v{ACC+i}, v{DO+2*i}, v{DO+2*i+1}")
e("s_and_saveexec_b64 s[84:85], vcc")
e(f"buffer_store_dwordx4 {v(ACC,4)}, v{QB+4}, s[32:35], s{sNODE} offen")
e(f"buffer_store_dwordx4 {v(ACC+4,4)}, v{QB+4}, s[32:35], s{sNODE} offen offset:16")
delay("c")
abs_end()
stamp_out()
e("G_end:")
e("s_endpgm")
e('.section .rodata,"a"')
e(f""".p2align 6
.amdhsa_kernel {KN}
  .amdhsa_next_free_vgpr 112
  .amdhsa_next_free_sgpr 100
  .amdhsa_accum_offset 112
  .amdhsa_group_segment_fixed_size 0
  .amdhsa_kernarg_size 64
  .amdhsa_user_sgpr_count 2
  .amdhsa_user_sgpr_kernarg_segment_ptr 1
  .amdhsa_system_sgpr_workgroup_id_x 1
.end_amdhsa_kernel""")
dst = sys.argv[1] if len(sys.argv)>1 else 'gather_scatter__kernel_systems_refs_featgraph__graph.s'
open(dst,'w').write('\n'.join(out)+'\n')
```

```python
import sys
N=50000; E=800000
G1=250; CH=3200
GS=13
NB=241
SLOTB=G1*128
SLOT_BYTES=NB*SLOTB
OC_OFF=0x800000
OV_OFF=0x810000
L_LIST=131072; CAP=5760
L_HIST=L_LIST+CAP*4; L_BASE=L_HIST+512; L_T=L_BASE+512; L_WV=L_T+512
assert L_HIST%512==0 and L_T%128==0 and L_WV+8192==163840
out=[]
import os
STAMP=int(os.environ.get('STAMP','0'))
ST_OFF=0x1000000
K1ST=os.environ.get('K1ST','')
K1PF=int(os.environ.get('K1PF','0'))
PF0=int(os.environ.get('PF0','0'))
CPF=int(os.environ.get('CPF','0'))
PF1=int(os.environ.get('PF1','0'))

def stamp(k):
    if not STAMP: return
    e("s_memrealtime s[96:97]")
    e("s_waitcnt lgkmcnt(0)")
    if k==0:
        for j in range(1,8): e(f"s_mov_b32 s{88+j}, 0")
        e(f"s_mov_b32 s{88+k}, s96")
    else:
        e(f"s_cmp_eq_u32 s{88+k}, 0")
        e(f"s_cselect_b32 s{88+k}, s96, s{88+k}")
def stamp_out(koff):
    if not STAMP: return
    e("s_mov_b64 exec, 1")
    e(f"s_add_u32 s96, s18, {ST_OFF+koff}")
    e("s_addc_u32 s97, s19, 0")
    e("s_mov_b32 s98, 0x100000\ns_mov_b32 s99, 0x00020000")
    e("v_lshrrev_b32 v2, 6, v0")
    e("s_lshl_b32 s3, s2, 4")
    e("v_add_u32 v2, s3, v2")
    e("v_lshlrev_b32 v2, 5, v2")
    for k in range(8): e(f"v_mov_b32 v{4+k}, s{88+k}")
    e("buffer_store_dwordx4 v[4:7], v2, s[96:99], 0 offen")
    e("buffer_store_dwordx4 v[8:11], v2, s[96:99], 0 offen offset:16")
def e(s): out.append(s)
def srd(d, lo, size, off=0):
    if off:
        e(f"s_add_u32 s{d}, s{lo}, {off}")
        e(f"s_addc_u32 s{d+1}, s{lo+1}, 0")
    else:
        e(f"s_mov_b32 s{d}, s{lo}")
        e(f"s_mov_b32 s{d+1}, s{lo+1}")
    e(f"s_mov_b32 s{d+2}, {size}")
    e(f"s_mov_b32 s{d+3}, 0x00020000")
def entry(dst, src, ent, gg, t1, t2, sSIGN):
    e(f"v_mul_u32_u24 {gg}, 40330, {dst}")
    e(f"v_lshrrev_b32 {gg}, 19, {gg}")
    e(f"v_mad_i32_i24 {t1}, {gg}, -13, {dst}")
    e(f"v_lshl_or_b32 {ent}, {src}, 7, {sSIGN}")
    e(f"v_lshl_or_b32 {ent}, {t1}, 3, {ent}")
    e(f"v_lshrrev_b32 {t1}, 13, {src}")
    e(f"v_and_b32 {t2}, 15, {gg}")
    e(f"v_lshl_or_b32 {t1}, {t2}, 3, {t1}")
    e(f"v_lshl_or_b32 {ent}, {t1}, 24, {ent}")

hdr = open('gather_scatter__kernel_systems_refs_featgraph__graph.s.ref').read().split('\n')
for l in hdr:
    if l.startswith('; @launch') or l.startswith('; Override') or l.startswith('; grid='): continue
    if l.startswith(';'): e(l)
    else: break
e(f"; @launch kernel=part_kernel grid=({G1},1,1) block=(1024,1,1) lds=33792")
e(f"; @launch kernel=gath_kernel grid=({NB},1,1) block=(1024,1,1) lds=163840")
e('.amdgcn_target "amdgcn-amd-amdhsa--gfx950"')
e(".text")
e(".globl part_kernel\n.p2align 8\n.type part_kernel,@function\npart_kernel:")
e(f"s_cmp_ge_u32 s2, {G1}")
e("s_cbranch_scc1 P_end")
if CPF:
    e("s_getpc_b64 s[4:5]")
    e("v_and_b32 v1, 63, v0")
    e("v_lshlrev_b32 v1, 7, v1")
    e("v_min_u32 v1, G_end-part_kernel-16, v1")
    e("global_load_dword v27, v1, s[4:5]")
stamp(0)
e("s_load_dwordx16 s[4:19], s[0:1], 0")
e("v_lshlrev_b32 v1, 4, v0")
e("v_mov_b32 v20, 0\nv_mov_b32 v21, 0\nv_mov_b32 v22, 0\nv_mov_b32 v23, 0")
e(f"s_mul_i32 s40, s2, {CH*4}")
e("s_mov_b32 s41, 0x80000000")
e("s_waitcnt lgkmcnt(0)")
srd(20, 6, E*4); srd(24, 8, E*4)
e(f"v_cmp_gt_u32 s[42:43], {CH//4}, v0" if CH//4<=64 else f"s_movk_i32 s44, {CH//4}\nv_cmp_gt_u32 s[42:43], s44, v0")
e("s_mov_b64 exec, s[42:43]")
e("s_cbranch_execz P_noload")
e("buffer_load_dwordx4 v[4:7], v1, s[24:27], s40 offen")
e("buffer_load_dwordx4 v[8:11], v1, s[20:23], s40 offen")
e("P_noload:")
if K1PF:
    e("s_not_b64 exec, s[42:43]")
    e("s_cbranch_execz P_nopf")
    srd(48, 4, N*128)
    e(f"s_mul_i32 s45, s2, {224*128}")
    e(f"v_subrev_u32 v26, {CH//4}, v0")
    e("v_lshlrev_b32 v26, 7, v26")
    e("buffer_load_dword v27, v26, s[48:51], s45 offen")
    e("P_nopf:")
e("s_mov_b64 exec, -1")
e("ds_write_b128 v1, v[20:23]")
e("ds_write_b128 v1, v[20:23] offset:16384")
e("v_cmp_gt_u32 vcc, 64, v0")
e("s_and_saveexec_b64 s[46:47], vcc")
e("ds_write_b128 v1, v[20:23] offset:32768")
e("s_mov_b64 exec, -1")
srd(28, 18, SLOT_BYTES); srd(32, 18, G1*CH*4, OV_OFF); srd(36, 18, G1*4, OC_OFF)
e("v_mov_b32 v2, 1")
e("s_waitcnt lgkmcnt(0)")
e("s_barrier")
e("s_mov_b64 exec, s[42:43]")
stamp(1)
e("s_cbranch_execz P_copy")
e("s_waitcnt vmcnt(0)")
stamp(2)
for k in range(4):
    entry(f"v{4+k}", f"v{8+k}", f"v{12+k}", f"v{16+k}", "v24", "v25", "s41")
    e(f"v_lshrrev_b32 v{16+k}, 4, v{16+k}")
    e(f"v_lshlrev_b32 v24, 2, v{16+k}")
    e(f"ds_add_rtn_u32 v{20+k}, v24, v2 offset:32768")
for k in range(4):
    e(f"s_waitcnt lgkmcnt({3-k})")
    e(f"v_add_u32 v24, v{20+k}, v{16+k}")
    e(f"v_and_b32 v24, 31, v24")
    e(f"v_lshlrev_b32 v24, 2, v24")
    e(f"v_lshl_or_b32 v24, v{16+k}, 7, v24")
    e(f"v_cmp_gt_u32 vcc, 32, v{20+k}")
    e(f"s_and_saveexec_b64 s[46:47], vcc")
    e(f"ds_write_b32 v24, v{12+k}")
    e(f"s_mov_b64 exec, s[46:47]")
e("v_max3_u32 v24, v20, v21, v22")
e("v_max_u32 v24, v24, v23")
e("v_cmp_lt_u32 vcc, 31, v24")
e("s_cbranch_vccz P_copy")
e("v_mov_b32 v26, 33788")
for k in range(4):
    e(f"v_cmp_lt_u32 vcc, 31, v{20+k}")
    e(f"s_and_saveexec_b64 s[46:47], vcc")
    e(f"s_cbranch_execz P_ov{k}")
    e(f"ds_add_rtn_u32 v24, v26, v2")
    e(f"v_lshl_or_b32 v25, v{4+k}, 16, v{8+k}")
    e(f"s_waitcnt lgkmcnt(0)")
    e(f"v_lshlrev_b32 v24, 2, v24")
    e(f"buffer_store_dword v25, v24, s[32:35], s40 offen")
    e(f"s_waitcnt vmcnt(0)")
    e(f"P_ov{k}:")
    e(f"s_mov_b64 exec, s[46:47]")
e("P_copy:")
e("s_mov_b64 exec, -1")
e("v_lshrrev_b32 v24, 3, v0")
e(f"v_mul_u32_u24 v24, {SLOTB}, v24")
e("v_and_b32 v25, 7, v0")
e("v_lshl_add_u32 v24, v25, 4, v24")
e("s_lshl_b32 s48, s2, 7")
e("v_add_u32 v24, s48, v24")
e(f"v_add_u32 v25, {128*SLOTB}, v24")
e("v_mov_b32 v26, 33788")
e("s_waitcnt lgkmcnt(0)")
e("s_barrier")
stamp(3)
e("ds_read_b128 v[4:7], v1")
e("ds_read_b128 v[8:11], v1 offset:16384")
e("ds_read_b32 v12, v26")
e("s_waitcnt lgkmcnt(2)")
e("buffer_store_dwordx4 v[4:7], v24, s[28:31], 0 offen "+K1ST)
e("s_waitcnt lgkmcnt(1)")
e("buffer_store_dwordx4 v[8:11], v25, s[28:31], 0 offen "+K1ST)
e("v_cmp_eq_u32 vcc, 0, v0")
e("s_and_saveexec_b64 s[46:47], vcc")
e("s_cbranch_execz P_fin")
e("s_lshl_b32 s48, s2, 2")
e("v_mov_b32 v13, s48")
e("s_waitcnt lgkmcnt(0)")
e("buffer_store_dword v12, v13, s[36:39], 0 offen")
e("P_fin:")
if STAMP: e("s_waitcnt vmcnt(0)")
stamp(4)
stamp_out(0)
e("P_end:")
e("s_endpgm")
ACC=4; QB=20; MB=28; AT=30; AA=34; VLO=36; VQT=37; VEN=38; VED=39
XA=40; XT=56; OH=72; LG=76; P=84; EN=88; ED=92; TM=94; SV=100
Ee=40; Rr=48; Bb=56; Aa=64
sW=68; sST=69; sCNT=70; sREM=71; sSTATE=72; sMSRC=73; sM78=74; sC=75; sT0=76; sT1=77; sBUFB=78; sSIGN=79; sM1FC=80; sNODE=81; sOW=82; sQD=83; NPF=1 if PF0 else 0; OC4=104; sPFC=3
def v(i,n=1): return f"v{i}" if n==1 else f"v[{i}:{i+n-1}]"
e(".globl gath_kernel\n.p2align 8\n.type gath_kernel,@function\ngath_kernel:")
e(f"s_cmp_ge_u32 s2, {NB}")
e("s_cbranch_scc1 G_end")
if CPF:
    e("s_getpc_b64 s[4:5]")
    e("v_and_b32 v1, 63, v0")
    e("v_lshlrev_b32 v1, 7, v1")
    e("v_min_u32 v1, G_end-gath_kernel-16, v1")
    e("global_load_dword v110, v1, s[4:5]")
stamp(0)
e("s_load_dwordx16 s[4:19], s[0:1], 0")
e("v_lshrrev_b32 v2, 6, v0")
e("v_and_b32 v1, 63, v0")
e(f"v_readfirstlane_b32 s{sW}, v2")
e(f"s_mov_b32 s{sMSRC}, 0x7fff80")
e(f"s_movk_i32 s{sM78}, 0x78")
e(f"s_mov_b32 s{sC}, 0xbe38aa3b")
e(f"s_mov_b32 s{sSIGN}, 0x80000000")
e(f"s_movk_i32 s{sM1FC}, 0x1fc")
e(f"s_mov_b32 s{sSTATE}, 0")
e(f"s_mov_b32 s{sQD}, 0")
e(f"s_mov_b32 s{sPFC}, {PF1}")
e(f"v_lshlrev_b32 v2, 4, v1")
e(f"v_lshlrev_b32 v3, 4, v0")
e("s_waitcnt lgkmcnt(0)")
srd(24, 18, SLOT_BYTES)
e(f"s_mul_i32 s{sT0}, s2, {SLOTB}")
e(f"buffer_load_dwordx4 {v(Ee,4)}, v3, s[24:27], s{sT0} offen")
for k in range(4): e(f"v_mov_b32 v{Ee+4+k}, 0")
e(f"s_movk_i32 s{sT1}, {SLOTB//16-1024}")
e(f"v_cmp_gt_u32 vcc, s{sT1}, v0")
e(f"s_add_u32 s{sT0}, s{sT0}, 16384")
e("s_and_saveexec_b64 s[46:47], vcc")
e("s_cbranch_execz G_l2")
e(f"buffer_load_dwordx4 {v(Ee+4,4)}, v3, s[24:27], s{sT0} offen")
e("G_l2:")
e("s_mov_b64 exec, -1")
e(f"s_cmp_ge_u32 s{sW}, 8")
e("s_cselect_b32 s28, s12, s10")
e("s_cselect_b32 s29, s13, s11")
e("s_mov_b32 s30, 8192\ns_mov_b32 s31, 0x00020000")
e(f"s_cselect_b32 s{sT0}, {L_WV}, 0")
e(f"s_and_b32 s{sT1}, s{sW}, 7")
e(f"s_lshl_b32 s{sT1}, s{sT1}, 10")
e(f"s_add_u32 m0, s{sT0}, s{sT1}")
e("s_nop 0")
e(f"buffer_load_dwordx4 v2, s[28:31], s{sT1} offen lds")
srd(20, 4, N*128)
e(f"s_lshl_b32 s{sNODE}, s2, 4")
e(f"s_add_u32 s{sNODE}, s{sNODE}, s{sW}")
e(f"s_mul_i32 s{sNODE}, s{sNODE}, {GS*128}")
e(f"v_and_b32 v{TM}, 15, v1")
e(f"v_lshrrev_b32 v{TM+1}, 4, v1")
e(f"v_lshlrev_b32 v{TM+2}, 7, v{TM}")
e(f"v_lshl_add_u32 v{TM+2}, v{TM+1}, 4, v{TM+2}")
e(f"buffer_load_dwordx4 {v(72,4)}, v{TM+2}, s[20:23], s{sNODE} offen")
e(f"buffer_load_dwordx4 {v(76,4)}, v{TM+2}, s[20:23], s{sNODE} offen offset:64")
srd(36, 18, G1*4, OC_OFF)
e(f"buffer_load_dwordx4 {v(OC4,4)}, v2, s[36:39], 0 offen")
if PF0:
    srd(28, 4, PF0*128)
    e(f"s_lshr_b32 s{sT0}, s2, 3")
    e(f"s_lshl_b32 s{sT0}, s{sT0}, 17")
    e(f"v_lshlrev_b32 v{OC4+4}, 7, v0")
    e(f"v_add_u32 v{OC4+4}, s{sT0}, v{OC4+4}")
    e(f"buffer_load_dword v{OC4+5}, v{OC4+4}, s[28:31], 0 offen")

srd(32, 14, N*128); srd(40, 18, G1*CH*4, OV_OFF)
e(f"v_lshlrev_b32 v{TM+3}, 3, v1")
e(f"s_cmp_eq_u32 s{sW}, 0")
e("s_cbranch_scc0 G_i1")
e(f"v_mov_b32 v{P}, 0\nv_mov_b32 v{P+1}, 0")
e(f"v_add_u32 v{TM+4}, {L_HIST}, v{TM+3}")
e(f"ds_write_b64 v{TM+4}, {v(P,2)}")
e("G_i1:")
e(f"v_lshlrev_b32 v{TM+4}, 2, v{TM+1}")
e(f"v_sub_u32 v{TM+4}, v{TM}, v{TM+4}")
e(f"v_mov_b32 v{P+2}, 0x3f80\nv_mov_b32 v{P+3}, 0x3f800000")
for r,(d0,d1) in enumerate([(0,1),(2,3)]):
    e(f"v_cmp_eq_u32 vcc, {d0}, v{TM+4}")
    e(f"v_cmp_eq_u32 s[46:47], {d1}, v{TM+4}")
    e("s_nop 1")
    e(f"v_cndmask_b32 v{P+r}, 0, v{P+2}, vcc")
    e(f"v_cndmask_b32 v{P+r}, v{P+r}, v{P+3}, s[46:47]")
    e(f"v_mov_b32 v{MB+r}, 0xf000f000")
    e(f"v_mov_b32 v{TM+5}, 0xf0000000")
    e(f"v_cndmask_b32 v{MB+r}, v{MB+r}, v{TM+5}, vcc")
    e(f"v_mov_b32 v{TM+5}, 0x0000f000")
    e(f"v_cndmask_b32 v{MB+r}, v{MB+r}, v{TM+5}, s[46:47]")
e(f"s_cmp_eq_u32 s{sW}, 1")
e("s_cbranch_scc0 G_i2")
e(f"v_add_u32 v{TM+4}, {L_T}, v{TM+3}")
e(f"ds_write_b64 v{TM+4}, {v(P,2)}")
e("G_i2:")
e(f"s_lshl_b32 s{sBUFB}, s{sW}, 13")
e(f"v_lshlrev_b32 v{VQT}, 7, v{TM+1}")
e(f"v_add_u32 v{VQT}, {L_T}, v{VQT}")
e(f"v_and_b32 v{TM+4}, 7, v1")
e(f"v_lshlrev_b32 v{TM+5}, 1, v{TM+1}")
e(f"v_xor_b32 v{VLO}, v{TM+4}, v{TM+5}")
e(f"v_lshlrev_b32 v{VLO}, 4, v{VLO}")
e(f"v_and_b32 v{TM+4}, 6, v{TM}")
e(f"v_xor_b32 v{TM+4}, v{TM+4}, v{TM+1}")
e(f"v_lshlrev_b32 v{TM+4}, 4, v{TM+4}")
e(f"v_lshl_add_u32 v{AA}, v{TM}, 7, v{TM+4}")
e(f"v_add_u32 v{AA}, s{sBUFB}, v{AA}")
e(f"v_xor_b32 v{AA+1}, 64, v{AA}")
e(f"v_lshrrev_b32 v{TM+4}, 2, v1")
e(f"v_lshlrev_b32 v{TM+4}, 7, v{TM+4}")
e(f"v_and_b32 v{TM+5}, 3, v1")
e(f"v_lshl_add_u32 v{TM+4}, v{TM+5}, 3, v{TM+4}")
e(f"v_bfe_u32 v{TM+5}, v1, 3, 2")
e(f"v_lshl_add_u32 v{AT}, v{TM+5}, 5, v{TM+4}")
e(f"v_add_u32 v{AT}, s{sBUFB}, v{AT}")
for t in range(1,4): e(f"v_xor_b32 v{AT+t}, {t*32}, v{AT}")
e(f"v_mov_b32 v2, 1")
e(f"v_mov_b32 v3, {L_HIST}")
e("s_waitcnt lgkmcnt(0)")
e("s_barrier")
stamp(1)
e(f"s_waitcnt vmcnt({NPF+4})")
stamp(2)
e("G_batch:")
for k in range(8):
    e(f"v_cmp_gt_i32 s[{52+2*k}:{53+2*k}], 0, v{Ee+k}")
    e(f"v_lshrrev_b32 v{Bb+k}, 22, v{Ee+k}")
    e(f"v_and_or_b32 v{Bb+k}, v{Bb+k}, s{sM1FC}, v3")
for k in range(8):
    e(f"s_mov_b64 exec, s[{52+2*k}:{53+2*k}]")
    e(f"ds_add_rtn_u32 v{Rr+k}, v{Bb+k}, v2")
e("s_mov_b64 exec, -1")
e(f"v_lshl_add_u32 v{TM}, v1, 3, v3")
e(f"s_waitcnt vmcnt({NPF}) lgkmcnt(0)")
e("s_barrier")
stamp(3)
c0,c1,s_,tot,vv,inc = P,P+1,P+2,P+3,TM+1,TM+2
e(f"ds_read_b64 {v(c0,2)}, v{TM}")
e(f"v_and_b32 v{TM+3}, 3, v1")
e(f"v_cmp_eq_u32 vcc, 3, v{TM+3}")
e("s_waitcnt lgkmcnt(0)")
e(f"v_add_u32 v{s_}, v{c0}, v{c1}")
e("s_nop 1")
e(f"v_add_u32_dpp v{tot}, v{s_}, v{s_} quad_perm:[1,0,3,2] row_mask:0xf bank_mask:0xf")
e("s_nop 1")
e(f"v_add_u32_dpp v{tot}, v{tot}, v{tot} quad_perm:[2,3,0,1] row_mask:0xf bank_mask:0xf")
e(f"v_sub_u32 v{TM+3}, 0, v{tot}")
e(f"v_and_b32 v{TM+3}, 31, v{TM+3}")
e(f"v_cndmask_b32 v{TM+3}, 0, v{TM+3}, vcc")
e(f"v_add_u32 v{vv}, v{s_}, v{TM+3}")
e(f"v_mov_b32 v{inc}, v{vv}")
for sh in (1,2,4,8):
    e("s_nop 1")
    e(f"v_add_u32_dpp v{inc}, v{inc}, v{inc} row_shr:{sh} row_mask:0xf bank_mask:0xf bound_ctrl:0")
e("s_nop 1")
e(f"v_add_u32_dpp v{inc}, v{inc}, v{inc} row_bcast:15 row_mask:0xa bank_mask:0xf")
e("s_nop 1")
e(f"v_add_u32_dpp v{inc}, v{inc}, v{inc} row_bcast:31 row_mask:0xc bank_mask:0xf")
e(f"s_lshl_b32 s{sT1}, s{sW}, 2")
e(f"v_sub_u32 v{vv}, v{inc}, v{vv}")
e(f"v_readlane_b32 s{sT0}, v{inc}, 63")
e(f"v_readlane_b32 s{sCNT}, v{tot}, s{sT1}")
e(f"v_readlane_b32 s{sST}, v{vv}, s{sT1}")
e(f"v_add_u32 v{c1}, v{vv}, v{c0}")
e(f"v_mov_b32 v{TM+3}, {L_LIST}")
e(f"v_lshl_add_u32 v{c0}, v{vv}, 2, v{TM+3}")
e(f"v_lshl_add_u32 v{c1}, v{c1}, 2, v{TM+3}")
e(f"s_cmp_gt_u32 s{sT0}, {CAP}")
e("s_cbranch_scc1 G_split")
e(f"ds_write_b64 v{TM}, {v(c0,2)} offset:512")
e(f"s_add_u32 s{sT0}, s{sST}, s{sCNT}")
e(f"s_add_u32 s{sREM}, s{sCNT}, 31")
e(f"s_lshr_b32 s{sREM}, s{sREM}, 5")
e(f"s_lshl_b32 s{sT1}, s{sREM}, 5")
e(f"s_sub_u32 s{sT1}, s{sT1}, s{sCNT}")
e(f"v_add_u32 v{TM+4}, s{sT0}, v1")
e(f"v_lshl_add_u32 v{TM+4}, v{TM+4}, 2, v{TM+3}")
e(f"v_mov_b32 v{TM+5}, 0x78")
e(f"v_cmp_gt_u32 vcc, s{sT1}, v1")
e("s_and_saveexec_b64 s[84:85], vcc")
e(f"ds_write_b32 v{TM+4}, v{TM+5}")
e("s_mov_b64 exec, -1")
e("s_waitcnt lgkmcnt(0)")
for k in range(8): e(f"ds_read_b32 v{Aa+k}, v{Bb+k} offset:512")
e(f"s_lshl_b32 s{sT0}, s{sST}, 2")
e(f"s_add_u32 s{sT0}, s{sT0}, {L_LIST}")
e(f"v_lshrrev_b32 v{VEN}, 3, v1")
e(f"v_lshlrev_b32 v{VEN}, 4, v{VEN}")
e(f"v_add_u32 v{VEN}, s{sT0}, v{VEN}")
e(f"v_and_b32 v{VED}, 7, v1")
e(f"v_bfe_u32 v{TM+4}, v1, 3, 1")
e(f"v_lshl_add_u32 v{VED}, v{VED}, 2, v{TM+4}")
e(f"v_lshlrev_b32 v{VED}, 2, v{VED}")
e(f"v_add_u32 v{VED}, s{sT0}, v{VED}")
e("s_waitcnt lgkmcnt(0)")
for k in range(8):
    e(f"v_lshl_add_u32 v{Aa+k}, v{Rr+k}, 2, v{Aa+k}")
for k in range(8):
    e(f"s_mov_b64 exec, s[{52+2*k}:{53+2*k}]")
    e(f"ds_write_b32 v{Aa+k}, v{Ee+k}")
e("s_mov_b64 exec, -1")
e(f"s_cmp_lg_u32 s{sQD}, 0")
e("s_cbranch_scc1 G_noq")
e(f"s_mov_b32 s{sQD}, 1")
e(f"v_lshrrev_b32 v{TM+1}, 4, v1")
e(f"v_bfe_u32 v{TM+4}, v1, 2, 2")
e(f"v_lshl_add_u32 v{TM+4}, v{TM+1}, 3, v{TM+4}")
e(f"v_lshlrev_b32 v{TM+4}, 7, v{TM+4}")
e(f"v_and_b32 v{TM+5}, 3, v1")
e(f"v_lshl_add_u32 v{TM+4}, v{TM+5}, 4, v{TM+4}")
WF=[84,48]
def qreads(mt, base):
    for s in range(2):
        for h in range(2):
            e(f"ds_read_b64_tr_b16 {v(base+s*4+h*2,2)}, v{TM+4} offset:{s*4096+h*512+(mt//2)*64+(mt%2)*8}")
qreads(0,WF[0]); qreads(1,WF[1])
for mt in range(4):
    b=WF[mt%2]
    e("s_waitcnt lgkmcnt(4)" if mt<3 else "s_waitcnt lgkmcnt(0)")
    e(f"v_mfma_f32_16x16x32_bf16 {v(ACC+mt*4,4)}, {v(b,4)}, {v(72,4)}, 0")
    e(f"v_mfma_f32_16x16x32_bf16 {v(ACC+mt*4,4)}, {v(b+4,4)}, {v(76,4)}, {v(ACC+mt*4,4)}")
    if mt<2: qreads(mt+2,b)
for k in range(4): e(f"v_cmp_ne_u32 s[{44+2*k}:{45+2*k}], 0, v{OC4+k}")
e("s_nop 4")
for mt in range(4):
    e(f"v_cvt_pk_bf16_f32 v{QB+mt*2}, v{ACC+mt*4}, v{ACC+mt*4+1}")
    e(f"v_cvt_pk_bf16_f32 v{QB+mt*2+1}, v{ACC+mt*4+2}, v{ACC+mt*4+3}")
for i in range(16): e(f"v_mov_b32 v{ACC+i}, 0")
e("G_noq:")
e("s_waitcnt lgkmcnt(0)")
e("s_barrier")
stamp(4)
def dma(buf, en):
    e(f"s_add_u32 m0, s{sBUFB}, {buf*4096}")
    for i in range(4):
        e(f"v_and_or_b32 v{TM+i}, v{en+i}, s{sMSRC}, v{VLO}")
        e(f"buffer_load_dwordx4 v{TM+i}, s[20:23], 0 offen lds")
        if i<3: e("s_add_u32 m0, m0, 1024")
e(f"s_cmp_eq_u32 s{sREM}, 0")
e("s_cbranch_scc1 G_next")
e(f"ds_read_b128 {v(EN,4)}, v{VEN}")
e(f"ds_read_b128 {v(P,4)}, v{VEN} offset:128")
e(f"ds_read2_b32 {v(ED,2)}, v{VED} offset0:0 offset1:2")
e("s_waitcnt lgkmcnt(2)")
dma(0,EN)
e(f"s_cmp_lt_u32 s{sREM}, 2")
e("s_waitcnt lgkmcnt(0)")
e("s_cbranch_scc1 G_loop")
dma(1,P)
e("G_loop:")
def tile(buf):
    L=f"G_t{buf}"
    e(f"v_and_or_b32 v{TM+4}, v{ED}, s{sM78}, v{VQT}")
    e(f"v_and_or_b32 v{TM+5}, v{ED+1}, s{sM78}, v{VQT}")
    e(f"s_cmp_lg_u32 s{sREM}, 1")
    e("s_waitcnt vmcnt(4)")
    e(f"s_cbranch_scc1 {L}a")
    e("s_waitcnt vmcnt(0)")
    e(f"{L}a:")
    e(f"ds_read_b64 {v(OH,2)}, v{TM+4}")
    e(f"ds_read_b64 {v(OH+2,2)}, v{TM+5}")
    for T in range(2):
        for s in range(2):
            e(f"ds_read_b128 {v(XA+T*8+s*4,4)}, v{AA+s} offset:{buf*4096+T*2048}")
    for t in range(4):
        for h in range(2):
            e(f"ds_read_b64_tr_b16 {v(XT+t*4+h*2,2)}, v{AT+t} offset:{buf*4096+h*2048}")
    e(f"ds_read_b128 {v(EN,4)}, v{VEN} offset:{256+buf*128}")
    e("s_waitcnt lgkmcnt(13)")
    e(f"v_mfma_f32_16x16x16_bf16 {v(LG,4)}, {v(OH,2)}, {v(MB,2)}, 0")
    e(f"v_mfma_f32_16x16x16_bf16 {v(LG+4,4)}, {v(OH+2,2)}, {v(MB,2)}, 0")
    e(f"ds_read2_b32 {v(ED,2)}, v{VED} offset0:{32+buf*32} offset1:{34+buf*32}")
    e("s_nop 2")
    e("s_waitcnt lgkmcnt(13)")
    e(f"v_mfma_f32_16x16x32_bf16 {v(LG,4)}, {v(XA,4)}, {v(QB,4)}, {v(LG,4)}")
    e("s_waitcnt lgkmcnt(12)")
    e(f"v_mfma_f32_16x16x32_bf16 {v(LG,4)}, {v(XA+4,4)}, {v(QB+4,4)}, {v(LG,4)}")
    e("s_waitcnt lgkmcnt(11)")
    e(f"v_mfma_f32_16x16x32_bf16 {v(LG+4,4)}, {v(XA+8,4)}, {v(QB,4)}, {v(LG+4,4)}")
    e("s_waitcnt lgkmcnt(10)")
    e(f"v_mfma_f32_16x16x32_bf16 {v(LG+4,4)}, {v(XA+12,4)}, {v(QB+4,4)}, {v(LG+4,4)}")
    e(f"s_cmp_lt_u32 s{sREM}, 3")
    e("s_waitcnt lgkmcnt(0)")
    e(f"s_cbranch_scc1 {L}b")
    if PF1:
        e(f"s_sub_u32 s{sPFC}, s{sPFC}, 1")
        e(f"s_cmp_lg_u32 s{sPFC}, 0")
        e(f"s_cbranch_scc1 {L}c")
        e(f"s_mov_b32 s{sT0}, {PF0*128}")
        e(f"buffer_load_dword v{OC4+5}, v{OC4+4}, s[20:23], s{sT0} offen")
        e(f"{L}c:")
    dma(buf,EN)
    e(f"{L}b:")
    e("s_nop 5")
    for i in range(8): e(f"v_mul_f32 v{LG+i}, s{sC}, v{LG+i}")
    for i in range(8): e(f"v_exp_f32 v{LG+i}, v{LG+i}")
    for i in range(8): e(f"v_add_f32 v{LG+i}, 1.0, v{LG+i}")
    for i in range(8): e(f"v_rcp_f32 v{LG+i}, v{LG+i}")
    if buf==1:
        e(f"v_add_u32 v{VEN}, 256, v{VEN}")
        e(f"v_add_u32 v{VED}, 256, v{VED}")
    else: e("s_nop 0")
    for i in range(4): e(f"v_cvt_pk_bf16_f32 v{P+i}, v{LG+2*i}, v{LG+2*i+1}")
    e(f"s_sub_u32 s{sREM}, s{sREM}, 1")
    e(f"s_cmp_eq_u32 s{sREM}, 0")
    for t in range(4):
        e(f"v_mfma_f32_16x16x32_bf16 {v(ACC+t*4,4)}, {v(XT+t*4,4)}, {v(P,4)}, {v(ACC+t*4,4)}")
tile(0)
e("s_cbranch_scc1 G_next")
tile(1)
e("s_cbranch_scc0 G_loop")
e("G_next:")
stamp(7)
e(f"s_cmp_eq_u32 s{sSTATE}, 1")
e("s_cbranch_scc1 G_half2")
for k in range(4):
    e(f"s_ff1_i32_b64 s{sOW}, s[{44+2*k}:{45+2*k}]")
    e(f"s_cmp_lg_i32 s{sOW}, -1")
    e(f"s_cbranch_scc1 G_f{k}")
e("s_branch G_epi")
for k in range(4):
    e(f"G_f{k}:")
    e(f"s_bitset0_b64 s[{44+2*k}:{45+2*k}], s{sOW}")
    e(f"s_lshl_b32 s{sOW}, s{sOW}, 2")
    e(f"s_add_u32 s{sOW}, s{sOW}, {k}")
    e("s_branch G_ovl")
e("G_ovl:")
e(f"s_lshl_b32 s{sT0}, s{sOW}, 2")
e(f"s_add_u32 s86, s18, {OC_OFF}")
e(f"s_addc_u32 s87, s19, 0")
e(f"s_load_dword s{sT1}, s[86:87], s{sT0}")
e(f"s_mul_i32 s{sT0}, s{sOW}, {CH*4}")
e(f"v_lshlrev_b32 v{TM}, 4, v0")
e(f"buffer_load_dwordx4 {v(Rr,4)}, v{TM}, s[40:43], s{sT0} offen")
e(f"v_lshlrev_b32 v{TM}, 2, v0")
e("s_waitcnt vmcnt(0) lgkmcnt(0)")
for k in range(4):
    e(f"v_lshrrev_b32 v{TM+1}, 16, v{Rr+k}")
    e(f"v_and_b32 v{TM+2}, 0xffff, v{Rr+k}")
    entry(f"v{TM+1}", f"v{TM+2}", f"v{Ee+k}", f"v{TM+3}", f"v{TM+4}", f"v{TM+5}", f"s{sSIGN}")
    e(f"v_lshrrev_b32 v{TM+3}, 4, v{TM+3}")
    e(f"v_cmp_eq_u32 vcc, s2, v{TM+3}")
    e(f"v_add_u32 v{TM+4}, {k}, v{TM}")
    e(f"v_cmp_gt_u32 s[84:85], s{sT1}, v{TM+4}")
    e("s_and_b64 vcc, vcc, s[84:85]")
    e("s_nop 1")
    e(f"v_cndmask_b32 v{Ee+k}, 0, v{Ee+k}, vcc")
for k in range(4): e(f"v_mov_b32 v{Ee+4+k}, 0")
e("s_branch G_again")
e("G_half2:")
for k in range(4):
    e(f"v_mov_b32 v{Ee+k}, v{SV+k}")
    e(f"v_mov_b32 v{Ee+4+k}, 0")
e(f"s_mov_b32 s{sSTATE}, 2")
e("s_branch G_again")
e("G_split:")
for k in range(4):
    e(f"v_mov_b32 v{SV+k}, v{Ee+4+k}")
    e(f"v_mov_b32 v{Ee+4+k}, 0")
e(f"s_mov_b32 s{sSTATE}, 1")
e("G_again:")
e("s_waitcnt lgkmcnt(0)")
e("s_barrier")
e(f"v_mov_b32 v{P}, 0\nv_mov_b32 v{P+1}, 0")
e(f"v_lshl_add_u32 v{TM}, v1, 3, v3")
e(f"ds_write_b64 v{TM}, {v(P,2)}")
e("s_waitcnt lgkmcnt(0)")
e("s_barrier")
e("s_branch G_batch")
e("G_epi:")
stamp(5)
WV=40; BH=72; BL=80; DO=88
e(f"v_lshrrev_b32 v{DO}, 2, v1")
e(f"v_lshlrev_b32 v{DO}, 7, v{DO}")
e(f"v_and_b32 v{DO+1}, 3, v1")
e(f"v_lshl_add_u32 v{DO}, v{DO+1}, 5, v{DO}")
e(f"v_add_u32 v{DO}, {L_WV}, v{DO}")
for mt in range(4):
    for u in range(4):
        e(f"ds_read_b64_tr_b16 {v(WV+mt*8+u*2,2)}, v{DO} offset:{u*2048+mt*8}")
e("s_nop 4")
for i in range(8):
    e(f"v_cvt_pk_bf16_f32 v{BH+i}, v{ACC+2*i}, v{ACC+2*i+1}")
    e(f"v_lshlrev_b32 v{QB}, 16, v{BH+i}")
    e(f"v_and_b32 v{QB+1}, 0xffff0000, v{BH+i}")
    e(f"v_sub_f32 v{QB}, v{ACC+2*i}, v{QB}")
    e(f"v_sub_f32 v{QB+1}, v{ACC+2*i+1}, v{QB+1}")
    e(f"v_cvt_pk_bf16_f32 v{BL+i}, v{QB}, v{QB+1}")
e(f"v_and_b32 v{QB+2}, 15, v1")
e(f"v_lshrrev_b32 v{QB+3}, 4, v1")
e(f"v_lshlrev_b32 v{QB+4}, 7, v{QB+2}")
e(f"v_lshl_add_u32 v{QB+4}, v{QB+3}, 5, v{QB+4}")
e(f"v_cmp_gt_u32 vcc, {GS}, v{QB+2}")
e("s_waitcnt lgkmcnt(0)")
for mt in range(4):
    e(f"v_mfma_f32_16x16x32_bf16 {v(DO+mt*4,4)}, {v(WV+mt*8,4)}, {v(BL,4)}, 0")
for mt in range(4):
    e(f"v_mfma_f32_16x16x32_bf16 {v(DO+mt*4,4)}, {v(WV+mt*8+4,4)}, {v(BL+4,4)}, {v(DO+mt*4,4)}")
for mt in range(4):
    e(f"v_mfma_f32_16x16x32_bf16 {v(DO+mt*4,4)}, {v(WV+mt*8,4)}, {v(BH,4)}, {v(DO+mt*4,4)}")
for mt in range(4):
    e(f"v_mfma_f32_16x16x32_bf16 {v(DO+mt*4,4)}, {v(WV+mt*8+4,4)}, {v(BH+4,4)}, {v(DO+mt*4,4)}")
e("s_nop 7")
for i in range(8): e(f"v_cvt_pk_bf16_f32 v{ACC+i}, v{DO+2*i}, v{DO+2*i+1}")
e("s_and_saveexec_b64 s[84:85], vcc")
e(f"buffer_store_dwordx4 {v(ACC,4)}, v{QB+4}, s[32:35], s{sNODE} offen")
e(f"buffer_store_dwordx4 {v(ACC+4,4)}, v{QB+4}, s[32:35], s{sNODE} offen offset:16")
if STAMP: e("s_waitcnt vmcnt(0)")
stamp(6)
stamp_out(0x100000)
e("G_end:")
e("s_endpgm")
e('.section .rodata,"a"')
for name,nv in (("part_kernel",28),("gath_kernel",112)):
    e(f""".p2align 6
.amdhsa_kernel {name}
  .amdhsa_next_free_vgpr {nv}
  .amdhsa_next_free_sgpr 100
  .amdhsa_accum_offset {nv}
  .amdhsa_group_segment_fixed_size 0
  .amdhsa_kernarg_size 64
  .amdhsa_user_sgpr_count 2
  .amdhsa_user_sgpr_kernarg_segment_ptr 1
  .amdhsa_system_sgpr_workgroup_id_x 1
.end_amdhsa_kernel""")
dst = sys.argv[1] if len(sys.argv)>1 else 'gather_scatter__kernel_systems_refs_featgraph__graph.s'
open(dst,'w').write('\n'.join(out)+'\n')
```

```python
import sys, os
N=50000; E=800000
G1=240; CH=3336
GS=13; NB=241
SLOTB=G1*128; SLOT_BYTES=NB*SLOTB
GO_OFF=0x7d0000; ARR=0x8000
XO_OFF=0x7f0000
OC_OFF=0x800000
OV_OFF=0x810000
L_LIST=131072; CAP=5760
L_HIST=L_LIST+CAP*4; L_BASE=L_HIST+512; L_T=L_BASE+512; L_WV=L_T+512
L_IMG=32768; L_CNT=65536
assert L_HIST%512==0 and L_T%128==0 and L_WV+8192==163840
STAMP=int(os.environ.get('STAMP','0')); ST_OFF=0x1000000
PF0=int(os.environ.get('PF0','0')); PFPOS=int(os.environ.get('PFPOS','0'))
OOBPAD=int(os.environ.get('OOBPAD','0')); PRIO=int(os.environ.get('PRIO','0'))
EXP=int(os.environ.get('EXP','0'))
CPF=int(os.environ.get('CPF','0'))
DLY=os.environ.get('DLY','')
FOLD=int(os.environ.get('FOLD','0')); MP=int(os.environ.get('MP','1'))
ORDER=int(os.environ.get('ORDER','1'))
SLEEP=int(os.environ.get('SLEEP','4'))
KN="gather_scatter__kernel_systems_refs_featgraph__graph_kernel"
out=[]
def e(s): out.append(s)
def v(i,n=1): return f"v{i}" if n==1 else f"v[{i}:{i+n-1}]"
def stamp(k):
    if not STAMP: return
    e("s_memrealtime s[96:97]")
    e("s_waitcnt lgkmcnt(0)")
    if k==0:
        for j in range(1,8): e(f"s_mov_b32 s{88+j}, 0")
        e(f"s_mov_b32 s{88+k}, s96")
    else:
        e(f"s_cmp_eq_u32 s{88+k}, 0")
        e(f"s_cselect_b32 s{88+k}, s96, s{88+k}")
def delay(tag):
    if tag not in DLY: return
    e("s_memrealtime s[96:97]")
    e("s_waitcnt lgkmcnt(0)")
    e("s_add_u32 s98, s96, 500")
    e(f"D_{tag}:")
    e("s_sleep 2")
    e("s_memrealtime s[96:97]")
    e("s_waitcnt lgkmcnt(0)")
    e("s_sub_u32 s99, s96, s98")
    e("s_cmp_lt_i32 s99, 0")
    e(f"s_cbranch_scc1 D_{tag}")
def abs_start():
    if 'z' not in DLY: return
    e("s_memrealtime s[96:97]")
    e("s_waitcnt lgkmcnt(0)")
    e("s_add_u32 s98, s96, 4000")
def abs_end():
    if 'z' not in DLY: return
    e("D_z:")
    e("s_sleep 2")
    e("s_memrealtime s[96:97]")
    e("s_waitcnt lgkmcnt(0)")
    e("s_sub_u32 s99, s96, s98")
    e("s_cmp_lt_i32 s99, 0")
    e(f"s_cbranch_scc1 D_z")
def stamp_out():
    if not STAMP: return
    if STAMP==3:
        e("s_waitcnt vmcnt(0)")
        e("s_memrealtime s[96:97]")
        e("s_mov_b64 exec, 1")
        srd(28, 16, 256)
        e("v_mov_b32 v2, 0")
        e(f"s_lshl_b32 s3, s2, 4")
        e(f"s_add_u32 s3, s3, s{sW}")
        for k in range(8): e(f"v_mov_b32 v{4+k}, s{88+k}")
        e("s_waitcnt lgkmcnt(0)")
        e("v_mov_b32 v12, s96")
        e(f"s_cmp_eq_u32 s3, {100*16+15}")
        e("s_cbranch_scc0 S_a")
        e("buffer_store_dwordx4 v[4:7], v2, s[28:31], 0 offen offset:8")
        e("buffer_store_dwordx4 v[8:11], v2, s[28:31], 0 offen offset:24")
        e("buffer_store_dword v12, v2, s[28:31], 0 offen offset:40")
        e("S_a:")
        e(f"s_cmp_eq_u32 s3, {240*16}")
        e("s_cbranch_scc0 S_b")
        e("buffer_store_dwordx2 v[7:8], v2, s[28:31], 0 offen offset:44" if 0 else "v_mov_b32 v14, v7\nv_mov_b32 v15, v8\nbuffer_store_dwordx2 v[14:15], v2, s[28:31], 0 offen offset:44")
        e("S_b:")
        e(f"s_cmp_eq_u32 s3, {37*16+0}")
        e("s_cbranch_scc0 S_c")
        e("v_mov_b32 v14, v4\nv_mov_b32 v15, v11\nv_mov_b32 v16, v12\nbuffer_store_dwordx3 v[14:16], v2, s[28:31], 0 offen offset:52")
        e("S_c:")
        return
    if STAMP==2:
        e("s_waitcnt vmcnt(0)")
        e("s_memrealtime s[96:97]")
        e("s_mov_b64 exec, 1")
        srd(28, 16, 256)
        e("v_mov_b32 v2, 0")
        e("s_not_b32 s3, s88")
        e("v_mov_b32 v3, s3")
        e("buffer_atomic_umax v3, v2, s[28:31], 0 offen offset:8")
        e("s_not_b32 s3, s92")
        e("v_mov_b32 v12, s3")
        e("buffer_atomic_umax v12, v2, s[28:31], 0 offen offset:12")
        for k in range(8):
            e(f"v_mov_b32 v{4+k}, s{88+k}")
            e(f"buffer_atomic_umax v{4+k}, v2, s[28:31], 0 offen offset:{16+4*k}")
        e("s_waitcnt lgkmcnt(0)")
        e("v_mov_b32 v13, s96")
        e("buffer_atomic_umax v13, v2, s[28:31], 0 offen offset:48")
        return
    e("s_mov_b64 exec, 1")
    e(f"s_add_u32 s96, s18, {ST_OFF}")
    e("s_addc_u32 s97, s19, 0")
    e("s_mov_b32 s98, 0x100000\ns_mov_b32 s99, 0x00020000")
    e("v_lshrrev_b32 v2, 6, v0")
    e("s_lshl_b32 s3, s2, 4")
    e("v_add_u32 v2, s3, v2")
    e("v_lshlrev_b32 v2, 5, v2")
    for k in range(8): e(f"v_mov_b32 v{4+k}, s{88+k}")
    e("buffer_store_dwordx4 v[4:7], v2, s[96:99], 0 offen")
    e("buffer_store_dwordx4 v[8:11], v2, s[96:99], 0 offen offset:16")
def srd(d, lo, size, off=0):
    if off:
        e(f"s_add_u32 s{d}, s{lo}, {off}"); e(f"s_addc_u32 s{d+1}, s{lo+1}, 0")
    else:
        e(f"s_mov_b32 s{d}, s{lo}"); e(f"s_mov_b32 s{d+1}, s{lo+1}")
    e(f"s_mov_b32 s{d+2}, {size}"); e(f"s_mov_b32 s{d+3}, 0x00020000")
def entry(dst, src, ent, gg, t1, t2):
    e(f"v_mul_u32_u24 {gg}, 40330, {dst}")
    e(f"v_lshrrev_b32 {gg}, 19, {gg}")
    e(f"v_mad_i32_i24 {t1}, {gg}, -13, {dst}")
    e(f"v_lshl_or_b32 {ent}, {src}, 7, s{sSIGN}")
    e(f"v_lshl_or_b32 {ent}, {t1}, 3, {ent}")
    e(f"v_lshrrev_b32 {t1}, 13, {src}")
    e(f"v_and_b32 {t2}, 15, {gg}")
    e(f"v_lshl_or_b32 {t1}, {t2}, 3, {t1}")
    e(f"v_lshl_or_b32 {ent}, {t1}, 24, {ent}")
def rawconv(raw, ent, cnt_s=None, idx=None, k=0):
    e(f"v_lshrrev_b32 v{TM+1}, 16, {raw}")
    e(f"v_and_b32 v{TM+2}, 0xffff, {raw}")
    entry(f"v{TM+1}", f"v{TM+2}", ent, f"v{TM+3}", f"v{TM+4}", f"v{TM+5}")
    e(f"v_lshrrev_b32 v{TM+3}, 4, v{TM+3}")
    e(f"v_cmp_eq_u32 vcc, s2, v{TM+3}")
    if cnt_s is not None:
        e(f"v_add_u32 v{TM+4}, {k}, {idx}")
        e(f"v_cmp_gt_u32 s[84:85], s{cnt_s}, v{TM+4}")
        e("s_and_b64 vcc, vcc, s[84:85]")
    e("s_nop 1")
    e(f"v_cndmask_b32 {ent}, 0, {ent}, vcc")

for l in open('gather_scatter__kernel_systems_refs_featgraph__graph.s.ref').read().split('\n'):
    if l.startswith('; @launch'): continue
    if l.startswith(';'): e(l)
    else: break
e(f"; @launch grid=({NB},1,1) block=(1024,1,1) lds=163840")
e('.amdgcn_target "amdgcn-amd-amdhsa--gfx950"\n.text')
BG=0x7000 if FOLD else 0xf000
BIGP=BG*0x10001; BIGH=BG<<16; BIGL=BG
ACC=4; QB=20; MB=28; AT=30; AA=34; VLO=36; VQT=37; VEN=38; VED=39
XA=40; XT=56; OH=72; LG=76; P=84; EN=88; ED=92; TM=94; SV=100; OC4=104; PFV=108
Ee=40; Rr=48; Bb=56; Aa=64
sW=68; sST=69; sCNT=70; sREM=71; sSTATE=72; sMSRC=73; sM78=74; sC=75; sT0=76; sT1=77; sBUFB=78; sSIGN=79; sM1FC=80; sNODE=81; sOW=82; sEOFF=83; sGO=87
e(f".globl {KN}\n.p2align 8\n.type {KN},@function\n{KN}:")
e(f"s_cmp_ge_u32 s2, {NB}")
e("s_cbranch_scc1 G_end")
if CPF:
    e("s_getpc_b64 s[4:5]")
    e("v_lshlrev_b32 v1, 6, v0")
    e(f"v_min_u32 v1, G_end-{KN}-16, v1")
    e("v_cmp_gt_u32 vcc, 0x80, v0")
    e("s_and_saveexec_b64 s[6:7], vcc")
    e("s_cbranch_execz G_nocpf")
    e("global_load_dword v110, v1, s[4:5]")
    e("G_nocpf:")
    e("s_mov_b64 exec, -1")
delay("a")
abs_start()
stamp(0)
e("s_load_dwordx16 s[4:19], s[0:1], 0")
e("v_lshrrev_b32 v2, 6, v0")
e("v_and_b32 v1, 63, v0")
e(f"v_readfirstlane_b32 s{sW}, v2")
e(f"s_mov_b32 s{sMSRC}, {0x1ff80 if EXP&1 else 0x7fff80}")
e(f"s_movk_i32 s{sM78}, 0x78")
e(f"s_mov_b32 s{sC}, 0xbe38aa3b")
e(f"s_mov_b32 s{sSIGN}, 0x80000000")
e(f"s_movk_i32 s{sM1FC}, 0x1fc")
e(f"s_mov_b32 s{sSTATE}, 0")
e(f"v_lshlrev_b32 v2, 4, v1")
e(f"v_lshlrev_b32 v3, 4, v0")
e(f"s_mul_i32 s{sEOFF}, s2, {CH*4}")
e(f"s_sub_u32 s{sT0}, {E*4}, s{sEOFF}")
e(f"s_max_i32 s{sT0}, s{sT0}, 0")
e(f"s_min_u32 s{sT0}, s{sT0}, {CH*4}")
e(f"v_cmp_gt_u32 s[52:53], s{sT0}, v3")
for k in range(4): e(f"v_mov_b32 v{P+k}, 0")
e("s_waitcnt lgkmcnt(0)")
srd(28, 6, E*4); srd(36, 8, E*4)
D_=40; S_=44; EN_=48; BK=52; RK=56
e("s_mov_b64 exec, s[52:53]")
e("s_cbranch_execz P_noload")
e(f"buffer_load_dwordx4 {v(D_,4)}, v3, s[36:39], s{sEOFF} offen")
e(f"buffer_load_dwordx4 {v(S_,4)}, v3, s[28:31], s{sEOFF} offen")
e("P_noload:")
e("s_mov_b64 exec, -1")
e(f"ds_write_b128 v3, {v(P,4)} offset:{L_IMG}")
e(f"ds_write_b128 v3, {v(P,4)} offset:{L_IMG+16384}")
e(f"v_lshlrev_b32 v{TM+3}, 3, v1")
e(f"v_and_b32 v{TM}, 15, v1")
e(f"v_lshrrev_b32 v{TM+1}, 4, v1")
e(f"s_cmp_eq_u32 s{sW}, 0")
e("s_cbranch_scc0 G_i1")
e(f"v_add_u32 v{TM+4}, {L_HIST}, v{TM+3}")
e(f"ds_write_b64 v{TM+4}, {v(P,2)}")
e(f"v_add_u32 v{TM+4}, {L_CNT}, v2")
e(f"ds_write_b128 v{TM+4}, {v(P,4)}")
e(f"v_mov_b32 v{TM+4}, {L_CNT+1024}")
e(f"v_mov_b32 v{EN}, -1\nv_mov_b32 v{EN+1}, -1")
e(f"ds_write_b64 v{TM+4}, {v(EN,2)}")
e("G_i1:")
e(f"v_lshlrev_b32 v{TM+4}, 2, v{TM+1}")
e(f"v_sub_u32 v{TM+4}, v{TM}, v{TM+4}")
e(f"v_mov_b32 v{P+2}, 0x3f80\nv_mov_b32 v{P+3}, 0x3f800000")
for r,(d0,d1) in enumerate([(0,1),(2,3)]):
    e(f"v_cmp_eq_u32 vcc, {d0}, v{TM+4}")
    e(f"v_cmp_eq_u32 s[46:47], {d1}, v{TM+4}")
    e(f"v_mov_b32 v{MB+r}, {BIGP}")
    e(f"v_mov_b32 v{TM+5}, {BIGH}")
    e(f"v_cndmask_b32 v{P+r}, 0, v{P+2}, vcc")
    e(f"v_cndmask_b32 v{P+r}, v{P+r}, v{P+3}, s[46:47]")
    e(f"v_cndmask_b32 v{MB+r}, v{MB+r}, v{TM+5}, vcc")
    e(f"v_mov_b32 v{TM+5}, {BIGL}")
    e(f"v_cndmask_b32 v{MB+r}, v{MB+r}, v{TM+5}, s[46:47]")
e(f"s_cmp_eq_u32 s{sW}, 1")
e("s_cbranch_scc0 G_i2")
e(f"v_add_u32 v{TM+4}, {L_T}, v{TM+3}")
e(f"ds_write_b64 v{TM+4}, {v(P,2)}")
e("G_i2:")
srd(20, 4, N*128); srd(24, 18, SLOT_BYTES); srd(40, 18, G1*CH*4, OV_OFF); srd(32, 14, N*128)
e("s_waitcnt lgkmcnt(0)")
e("s_barrier")
stamp(1)
srd(44, 18, ARR+G1*128, GO_OFF)
srd(28, 16, 256)
e(f"s_lshl_b32 s{sGO}, s2, 7")
e(f"s_cmp_lg_u32 s{sW}, 0")
e("s_cbranch_scc1 P_nors")
e(f"v_mov_b32 v{TM+6}, 0")
e(f"s_cmp_ge_u32 s2, {G1}")
e("s_cbranch_scc1 P_mrs")
e("s_mov_b64 exec, 1")
e(f"buffer_store_dword v{TM+6}, v{TM+6}, s[44:47], s{sGO} offen sc1")
e("s_branch P_rsd")
e("P_mrs:")
e(f"v_lshlrev_b32 v{TM+7}, 7, v1")
for k in range(4):
    e(f"s_mov_b32 s{sT0}, {ARR+k*8192}")
    e(f"buffer_store_dword v{TM+6}, v{TM+7}, s[44:47], s{sT0} offen sc1")
e(f"v_mov_b32 v{TM+7}, 1")
e("s_mov_b64 exec, 1")
e("s_waitcnt vmcnt(0)")
e(f"buffer_store_dword v{TM+7}, v{TM+6}, s[28:31], 0 offen sc1")
e("P_rsd:")
e("s_mov_b64 exec, -1")
e("P_nors:")
e(f"s_lshl_b32 s{sNODE}, s2, 4")
e(f"s_add_u32 s{sNODE}, s{sNODE}, s{sW}")
e(f"s_mul_i32 s{sNODE}, s{sNODE}, {GS*128}")
def prefetch():
    srd(36, 4, PF0*128)
    e(f"s_lshr_b32 s{sT0}, s2, 3")
    e(f"s_lshl_b32 s{sT0}, s{sT0}, 17")
    e(f"v_lshlrev_b32 v{PFV}, 7, v0")
    e(f"buffer_load_dword v{PFV+1}, v{PFV}, s[36:39], s{sT0} offen")
NPF=0
if PF0 and PFPOS==0: prefetch(); NPF=1
e(f"v_mov_b32 v2, 1")
e(f"v_mov_b32 v{TM+5}, {L_CNT}")
e("s_mov_b64 exec, s[52:53]")
e("s_cbranch_execz P_copy")
e(f"s_waitcnt vmcnt(0)")
for k in range(4):
    entry(v(D_+k), v(S_+k), v(EN_+k), v(BK+k), v(TM+2), v(TM+3))
    e(f"v_lshrrev_b32 v{BK+k}, 4, v{BK+k}")
    e(f"v_lshl_add_u32 v{TM+2}, v{BK+k}, 2, v{TM+5}")
    e(f"ds_add_rtn_u32 v{RK+k}, v{TM+2}, v2")
for k in range(4):
    e(f"s_waitcnt lgkmcnt({3-k})")
    e(f"v_add_u32 v{TM+2}, v{RK+k}, v{BK+k}")
    e(f"v_and_b32 v{TM+2}, 31, v{TM+2}")
    e(f"v_lshlrev_b32 v{TM+2}, 2, v{TM+2}")
    e(f"v_lshl_or_b32 v{TM+2}, v{BK+k}, 7, v{TM+2}")
    e(f"v_cmp_gt_u32 vcc, 32, v{RK+k}")
    e(f"s_and_saveexec_b64 s[50:51], vcc")
    e(f"ds_write_b32 v{TM+2}, v{EN_+k} offset:{L_IMG}")
    e(f"s_mov_b64 exec, s[50:51]")
e(f"v_max3_u32 v{TM+2}, v{RK}, v{RK+1}, v{RK+2}")
e(f"v_max_u32 v{TM+2}, v{TM+2}, v{RK+3}")
e(f"v_cmp_lt_u32 vcc, 31, v{TM+2}")
e("s_cbranch_vccz P_copy")
for k in range(4):
    e(f"v_cmp_lt_u32 vcc, 31, v{RK+k}")
    e(f"s_and_saveexec_b64 s[50:51], vcc")
    e(f"s_cbranch_execz P_ov{k}")
    e(f"ds_add_rtn_u32 v{TM+2}, v{TM+5}, v2 offset:1020")
    e(f"v_lshl_or_b32 v{TM+3}, v{D_+k}, 16, v{S_+k}")
    e(f"s_waitcnt lgkmcnt(0)")
    e(f"v_lshlrev_b32 v{TM+2}, 2, v{TM+2}")
    e(f"v_cmp_gt_u32 vcc, 8, v{TM+2}")
    e(f"v_add_u32 v{TM+4}, v{TM+5}, v{TM+2}")
    e(f"s_and_saveexec_b64 s[48:49], vcc")
    e(f"ds_write_b32 v{TM+4}, v{TM+3} offset:1024")
    e(f"s_andn2_b64 exec, s[48:49], exec")
    e(f"s_cbranch_execz P_ov{k}")
    e(f"v_subrev_u32 v{TM+2}, 8, v{TM+2}")
    e(f"buffer_store_dword v{TM+3}, v{TM+2}, s[40:43], s{sEOFF} offen sc1")
    e(f"s_waitcnt vmcnt(0)")
    e(f"P_ov{k}:")
    e(f"s_mov_b64 exec, s[50:51]")
e("P_copy:")
e("s_mov_b64 exec, -1")
e(f"v_lshrrev_b32 v{TM+2}, 3, v0")
e(f"v_mul_u32_u24 v{TM+2}, {SLOTB}, v{TM+2}")
e(f"v_and_b32 v{TM+3}, 7, v0")
e(f"v_lshl_add_u32 v{TM+2}, v{TM+3}, 4, v{TM+2}")
e(f"s_lshl_b32 s{sT0}, s2, 7")
e(f"s_add_u32 s{sT1}, s{sT0}, {128*SLOTB}")
e(f"s_waitcnt lgkmcnt(0)")
e("s_barrier")
stamp(2)
e(f"s_cmp_ge_u32 s2, {G1}")
e("s_cbranch_scc1 P_nost")
e(f"s_cmp_lg_u32 s{sW}, 0")
e("s_cbranch_scc1 P_nord")
e("v_mov_b32 v111, 0")
e("buffer_load_dword v110, v111, s[28:31], 0 offen sc1")
e("P_nord:")
e(f"ds_read_b128 {v(40,4)}, v3 offset:{L_IMG}")
e(f"ds_read_b128 {v(44,4)}, v3 offset:{L_IMG+16384}")
e(f"ds_read_b32 v48, v{TM+5} offset:1020")
e(f"ds_read_b64 {v(50,2)}, v{TM+5} offset:1024")
e("s_waitcnt lgkmcnt(3)")
e(f"buffer_store_dwordx4 {v(40,4)}, v{TM+2}, s[24:27], s{sT0} offen sc1")
e("s_waitcnt lgkmcnt(2)")
e(f"buffer_store_dwordx4 {v(44,4)}, v{TM+2}, s[24:27], s{sT1} offen sc1")
e("v_cmp_eq_u32 vcc, 0, v0")
e("s_and_saveexec_b64 s[50:51], vcc")
e("s_cbranch_execz P_st2")
srd(36, 18, 0x20000, XO_OFF)
e(f"s_lshl_b32 s{sT0}, s2, 3")
e(f"s_lshl_b32 s{sT1}, s2, 2")
e(f"s_add_u32 s{sT1}, s{sT1}, {OC_OFF-XO_OFF}")
e("v_mov_b32 v49, 0")
e("s_waitcnt lgkmcnt(0)")
e("v_max_u32 v48, 2, v48")
e("v_subrev_u32 v48, 2, v48")
e(f"buffer_store_dwordx2 {v(50,2)}, v49, s[36:39], s{sT0} offen sc1")
e(f"buffer_store_dword v48, v49, s[36:39], s{sT1} offen sc1")
e("P_st2:")
e("s_mov_b64 exec, -1")
e("P_nost:")
e(f"s_lshl_b32 s{sBUFB}, s{sW}, 13")
e(f"v_lshlrev_b32 v{VQT}, 7, v{TM+1}")
e(f"v_add_u32 v{VQT}, {L_T}, v{VQT}")
e(f"v_and_b32 v{TM+4}, 7, v1")
e(f"v_lshlrev_b32 v{TM+5}, 1, v{TM+1}")
e(f"v_xor_b32 v{VLO}, v{TM+4}, v{TM+5}")
e(f"v_lshlrev_b32 v{VLO}, 4, v{VLO}")
e(f"v_and_b32 v{TM+4}, 6, v{TM}")
e(f"v_xor_b32 v{TM+4}, v{TM+4}, v{TM+1}")
e(f"v_lshlrev_b32 v{TM+4}, 4, v{TM+4}")
e(f"v_lshl_add_u32 v{AA}, v{TM}, 7, v{TM+4}")
e(f"v_add_u32 v{AA}, s{sBUFB}, v{AA}")
e(f"v_xor_b32 v{AA+1}, 64, v{AA}")
e(f"v_lshrrev_b32 v{TM+4}, 2, v1")
e(f"v_lshlrev_b32 v{TM+4}, 7, v{TM+4}")
e(f"v_and_b32 v{TM+5}, 3, v1")
e(f"v_lshl_add_u32 v{TM+4}, v{TM+5}, 3, v{TM+4}")
e(f"v_bfe_u32 v{TM+5}, v1, 3, 2")
e(f"v_lshl_add_u32 v{AT}, v{TM+5}, 5, v{TM+4}")
e(f"v_add_u32 v{AT}, s{sBUFB}, v{AT}")
for t in range(1,4): e(f"v_xor_b32 v{AT+t}, {t*32}, v{AT}")
e("s_waitcnt vmcnt(0)")
e("s_barrier")
stamp(3)
e(f"s_mov_b32 s3, 0x40000")
e(f"s_cmp_lg_u32 s{sW}, 0")
e("s_cbranch_scc1 P_wx")
e(f"s_cmp_ge_u32 s2, {G1}")
e("s_cbranch_scc1 P_wx")
e("s_mov_b64 exec, 1")
e(f"v_mov_b32 v{TM+4}, 0")
e(f"v_cmp_eq_u32 vcc, 1, v110")
e("s_cbranch_vccnz P_arr")
e("P_rpoll:")
e(f"buffer_load_dword v{TM+5}, v{TM+4}, s[28:31], 0 offen sc1")
e(f"s_sub_u32 s3, s3, 1")
e("s_cbranch_scc1 P_arr")
e("s_waitcnt vmcnt(0)")
e(f"v_cmp_eq_u32 vcc, 1, v{TM+5}")
e("s_cbranch_vccz P_rpoll")
e("P_arr:")
e(f"s_add_u32 s{sT0}, s{sGO}, {ARR}")
e(f"buffer_store_dword v2, v{TM+4}, s[44:47], s{sT0} offen sc1")
e("s_mov_b64 exec, -1")
e("P_wx:")
e(f"s_cmp_ge_u32 s{sW}, 8")
e("s_cselect_b32 s36, s12, s10")
e("s_cselect_b32 s37, s13, s11")
e("s_mov_b32 s38, 8192\ns_mov_b32 s39, 0x00020000")
e(f"s_cselect_b32 s{sT0}, {L_WV}, 0")
e(f"s_and_b32 s{sT1}, s{sW}, 7")
e(f"s_lshl_b32 s{sT1}, s{sT1}, 10")
e(f"s_add_u32 m0, s{sT0}, s{sT1}")
e(f"v_lshlrev_b32 v{TM+3}, 4, v1")
e(f"buffer_load_dwordx4 v{TM+3}, s[36:39], s{sT1} offen lds")
e(f"v_lshlrev_b32 v{TM+2}, 7, v{TM}")
e(f"v_lshl_add_u32 v{TM+2}, v{TM+1}, 4, v{TM+2}")
for k in range(8): e(f"v_mov_b32 v{72+k}, 0")
e(f"v_cmp_gt_u32 vcc, {GS}, v{TM}")
e("s_mov_b64 exec, vcc")
e(f"buffer_load_dwordx4 {v(72,4)}, v{TM+2}, s[20:23], s{sNODE} offen")
e(f"buffer_load_dwordx4 {v(76,4)}, v{TM+2}, s[20:23], s{sNODE} offen offset:64")
e("s_mov_b64 exec, -1")
def qblock():
    e("v_lshrrev_b32 v109, 4, v1")
    e(f"v_bfe_u32 v110, v1, 2, 2")
    e(f"v_lshl_add_u32 v110, v109, 3, v110")
    e(f"v_lshlrev_b32 v110, 7, v110")
    e(f"v_and_b32 v111, 3, v1")
    e(f"v_lshl_add_u32 v110, v111, 4, v110")
    WQ=[56,64,84,100]
    TM4=110
    for mt in range(4):
        for s in range(2):
            for h in range(2):
                e(f"ds_read_b64_tr_b16 {v(WQ[mt]+s*4+h*2,2)}, v110 offset:{s*4096+h*512+(mt//2)*64+(mt%2)*8}")
    for mt in range(4):
        e(f"s_waitcnt lgkmcnt({12-4*mt})")
        e(f"v_mfma_f32_16x16x32_bf16 {v(ACC+mt*4,4)}, {v(WQ[mt],4)}, {v(72,4)}, 0")
        e(f"v_mfma_f32_16x16x32_bf16 {v(ACC+mt*4,4)}, {v(WQ[mt]+4,4)}, {v(76,4)}, {v(ACC+mt*4,4)}")
    e("s_nop 7")
    if FOLD:
        for i in range(16): e(f"v_mul_f32 v{ACC+i}, s{sC}, v{ACC+i}")
    for mt in range(4):
        e(f"v_cvt_pk_bf16_f32 v{QB+mt*2}, v{ACC+mt*4}, v{ACC+mt*4+1}")
        e(f"v_cvt_pk_bf16_f32 v{QB+mt*2+1}, v{ACC+mt*4+2}, v{ACC+mt*4+3}")
    for i in range(16): e(f"v_mov_b32 v{ACC+i}, 0")
if ORDER==2:
    e("s_waitcnt vmcnt(0)")
    e("s_barrier")
    qblock()
e(f"s_mov_b32 s{sT1}, 0x40000")
e(f"s_cmp_lg_u32 s{sW}, 0")
e("s_cbranch_scc1 P_nopoll")
e(f"s_cmp_ge_u32 s2, {G1}")
e("s_cbranch_scc1 P_master")
e("s_mov_b64 exec, 1")
e(f"v_mov_b32 v{TM+4}, 0")
e(f"buffer_load_dword v40, v{TM+4}, s[44:47], s{sGO} offen sc1")
e("P_poll:")
for r0,r1 in ((40,41),(41,40)):
    if SLEEP: e(f"s_sleep {SLEEP}")
    e(f"buffer_load_dword v{r1}, v{TM+4}, s[44:47], s{sGO} offen sc1")
    e("s_waitcnt vmcnt(1)")
    e(f"v_cmp_eq_u32 vcc, 1, v{r0}")
    e("s_cbranch_vccnz P_pdone")
e(f"s_sub_u32 s{sT1}, s{sT1}, 1")
e("s_cbranch_scc0 P_poll")
e("s_branch P_pdone")
e("P_master:")
e(f"v_lshlrev_b32 v{TM+4}, 7, v1")
e(f"v_cmp_le_u32 s[48:49], {G1-192}, v1")
def mround(r):
    for k in range(4):
        e(f"s_mov_b32 s{sT0}, {ARR+k*8192}")
        e(f"buffer_load_dword v{r+k}, v{TM+4}, s[44:47], s{sT0} offen sc1")
def mcheck(r):
    e("s_waitcnt vmcnt(4)")
    e(f"v_and_b32 v48, v{r}, v{r+1}")
    e(f"v_cmp_eq_u32 vcc, 1, v{r+3}")
    e(f"v_and_b32 v48, v48, v{r+2}")
    e("s_or_b64 s[50:51], vcc, s[48:49]")
    e("v_cmp_eq_u32 vcc, 1, v48")
    e("s_and_b64 vcc, vcc, s[50:51]")
    e("s_cmp_eq_u64 vcc, -1")
    e("s_cbranch_scc1 P_mdone")
mround(40)
e("P_mpoll:")
mround(44)
mcheck(40)
mround(40)
mcheck(44)
e(f"s_sub_u32 s{sT1}, s{sT1}, 1")
e("s_cbranch_scc0 P_mpoll")
e("P_mdone:")
e(f"v_lshlrev_b32 v{TM+4}, 7, v1")
for k in range(4):
    e(f"s_mov_b32 s{sT0}, {k*8192}")
    e(f"buffer_store_dword v2, v{TM+4}, s[44:47], s{sT0} offen sc1")
e("P_pdone:")
e("s_mov_b64 exec, -1")
e("P_nopoll:")
NPF2=0
if PF0 and PFPOS==1: prefetch(); NPF2=1
srd(36, 18, 0x20000, XO_OFF)
e(f"s_mul_i32 s{sT0}, s2, {SLOTB}")
e(f"s_add_u32 s{sT1}, s{sT0}, 16384")
e("s_waitcnt vmcnt(0)")
e("s_barrier")
delay("b")
stamp(4)
e(f"buffer_load_dwordx4 {v(Ee,4)}, v3, s[24:27], s{sT0} offen sc1")
e(f"s_cmp_ge_u32 s{sW}, 14")
e("s_cbranch_scc1 G_xo")
e(f"buffer_load_dwordx4 {v(Ee+4,4)}, v3, s[24:27], s{sT1} offen sc1")
e("s_branch G_q")
e("G_xo:")
e(f"v_subrev_u32 v{TM}, {896*16}, v3")
e(f"buffer_load_dwordx4 {v(Rr,4)}, v{TM}, s[36:39], 0 offen sc1")
e("G_q:")
if ORDER==1: qblock()
e(f"v_mov_b32 v3, {L_HIST}")
e(f"s_cmp_lt_u32 s{sW}, 14")
e("s_waitcnt vmcnt(0)")
e("s_cbranch_scc1 G_batch")
e(f"s_movk_i32 s{sT1}, {G1*2}")
e(f"v_lshrrev_b32 v{TM}, 2, v{TM}")
for k in range(4): rawconv(v(Rr+k), v(Ee+4+k), sT1, v(TM), k)
e("G_batch:")
for k in range(8):
    e(f"v_cmp_gt_i32 s[{52+2*k}:{53+2*k}], 0, v{Ee+k}")
    e(f"v_lshrrev_b32 v{Bb+k}, 22, v{Ee+k}")
    e(f"v_and_or_b32 v{Bb+k}, v{Bb+k}, s{sM1FC}, v3")
for k in range(8):
    e(f"s_mov_b64 exec, s[{52+2*k}:{53+2*k}]")
    e(f"ds_add_rtn_u32 v{Rr+k}, v{Bb+k}, v2")
e("s_mov_b64 exec, -1")
e(f"v_lshl_add_u32 v{TM}, v1, 3, v3")
e(f"s_cmp_lg_u32 s{sSTATE}, 0")
e("s_cbranch_scc1 G_nooc")
e(f"v_lshlrev_b32 v{TM+1}, 4, v1")
e(f"s_mov_b32 s{sT0}, {OC_OFF-XO_OFF}")
e(f"buffer_load_dwordx4 {v(OC4,4)}, v{TM+1}, s[36:39], s{sT0} offen sc1")
if PF0 and PFPOS==2:
    srd(28, 4, PF0*128)
    e(f"s_lshr_b32 s{sT0}, s2, 3")
    e(f"s_lshl_b32 s{sT0}, s{sT0}, 17")
    e(f"v_lshlrev_b32 v{PFV}, 7, v0")
    e(f"buffer_load_dword v{PFV+1}, v{PFV}, s[28:31], s{sT0} offen")
e("G_nooc:")
e(f"s_waitcnt lgkmcnt(0)")
e("s_barrier")
stamp(5)
c0,c1,s_,tot,vv,inc = P,P+1,P+2,P+3,TM+1,TM+2
e(f"ds_read_b64 {v(c0,2)}, v{TM}")
e(f"v_and_b32 v{TM+3}, 3, v1")
e(f"v_cmp_eq_u32 vcc, 3, v{TM+3}")
e("s_waitcnt lgkmcnt(0)")
e(f"v_add_u32 v{s_}, v{c0}, v{c1}")
e("s_nop 1")
e(f"v_add_u32_dpp v{tot}, v{s_}, v{s_} quad_perm:[1,0,3,2] row_mask:0xf bank_mask:0xf")
e("s_nop 1")
e(f"v_add_u32_dpp v{tot}, v{tot}, v{tot} quad_perm:[2,3,0,1] row_mask:0xf bank_mask:0xf")
e(f"v_sub_u32 v{TM+3}, 0, v{tot}")
e(f"v_and_b32 v{TM+3}, 31, v{TM+3}")
e(f"v_cndmask_b32 v{TM+3}, 0, v{TM+3}, vcc")
e(f"v_add_u32 v{vv}, v{s_}, v{TM+3}")
e(f"v_mov_b32 v{inc}, v{vv}")
for sh in (1,2,4,8):
    e("s_nop 1")
    e(f"v_add_u32_dpp v{inc}, v{inc}, v{inc} row_shr:{sh} row_mask:0xf bank_mask:0xf bound_ctrl:0")
e("s_nop 1")
e(f"v_add_u32_dpp v{inc}, v{inc}, v{inc} row_bcast:15 row_mask:0xa bank_mask:0xf")
e("s_nop 1")
e(f"v_add_u32_dpp v{inc}, v{inc}, v{inc} row_bcast:31 row_mask:0xc bank_mask:0xf")
e(f"s_lshl_b32 s{sT1}, s{sW}, 2")
e(f"v_sub_u32 v{vv}, v{inc}, v{vv}")
e(f"v_readlane_b32 s{sT0}, v{inc}, 63")
e(f"v_readlane_b32 s{sCNT}, v{tot}, s{sT1}")
e(f"v_readlane_b32 s{sST}, v{vv}, s{sT1}")
e(f"v_add_u32 v{c1}, v{vv}, v{c0}")
e(f"v_mov_b32 v{TM+3}, {L_LIST}")
e(f"v_lshl_add_u32 v{c0}, v{vv}, 2, v{TM+3}")
e(f"v_lshl_add_u32 v{c1}, v{c1}, 2, v{TM+3}")
e(f"s_cmp_gt_u32 s{sT0}, {CAP}")
e("s_cbranch_scc1 G_split")
e(f"ds_write_b64 v{TM}, {v(c0,2)} offset:512")
e(f"s_add_u32 s{sT0}, s{sST}, s{sCNT}")
e(f"s_add_u32 s{sREM}, s{sCNT}, 31")
e(f"s_lshr_b32 s{sREM}, s{sREM}, 5")
e(f"s_lshl_b32 s{sT1}, s{sREM}, 5")
e(f"s_sub_u32 s{sT1}, s{sT1}, s{sCNT}")
e(f"v_add_u32 v{TM+4}, s{sT0}, v1")
e(f"v_lshl_add_u32 v{TM+4}, v{TM+4}, 2, v{TM+3}")
e(f"v_mov_b32 v{TM+5}, {0x7ffff8 if OOBPAD else 0x78}")
e(f"v_cmp_gt_u32 vcc, s{sT1}, v1")
e("s_and_saveexec_b64 s[84:85], vcc")
e(f"ds_write_b32 v{TM+4}, v{TM+5}")
e("s_mov_b64 exec, -1")
e("s_waitcnt lgkmcnt(0)")
for k in range(8): e(f"ds_read_b32 v{Aa+k}, v{Bb+k} offset:512")
e(f"s_lshl_b32 s{sT0}, s{sST}, 2")
e(f"s_add_u32 s{sT0}, s{sT0}, {L_LIST}")
e(f"v_lshrrev_b32 v{VEN}, 3, v1")
e(f"v_lshlrev_b32 v{VEN}, 4, v{VEN}")
e(f"v_add_u32 v{VEN}, s{sT0}, v{VEN}")
e(f"v_and_b32 v{VED}, 7, v1")
e(f"v_bfe_u32 v{TM+4}, v1, 3, 1")
e(f"v_lshl_add_u32 v{VED}, v{VED}, 2, v{TM+4}")
e(f"v_lshlrev_b32 v{VED}, 2, v{VED}")
e(f"v_add_u32 v{VED}, s{sT0}, v{VED}")
for k in range(8):
    e(f"s_waitcnt lgkmcnt({7 if k else 7})" if False else f"s_waitcnt lgkmcnt(7)")
    e(f"v_lshl_add_u32 v{Aa+k}, v{Rr+k}, 2, v{Aa+k}")
    e(f"s_mov_b64 exec, s[{52+2*k}:{53+2*k}]")
    e(f"ds_write_b32 v{Aa+k}, v{Ee+k}")
    e("s_mov_b64 exec, -1")
e("s_waitcnt lgkmcnt(0)")
e("s_barrier")
stamp(6)
def dma(buf, en):
    e(f"s_add_u32 m0, s{sBUFB}, {buf*4096}")
    for i in range(4):
        e(f"v_and_or_b32 v{TM+i}, v{en+i}, s{sMSRC}, v{VLO}")
        e(f"buffer_load_dwordx4 v{TM+i}, s[20:23], 0 offen lds")
        if i<3: e("s_add_u32 m0, m0, 1024")
e(f"s_cmp_eq_u32 s{sREM}, 0")
e("s_cbranch_scc1 G_next")
if PRIO: e("s_setprio 3")
e(f"ds_read_b128 {v(EN,4)}, v{VEN}")
e(f"ds_read_b128 {v(P,4)}, v{VEN} offset:128")
e(f"ds_read2_b32 {v(ED,2)}, v{VED} offset0:0 offset1:2")
e("s_waitcnt lgkmcnt(2)")
dma(0,EN)
e(f"s_cmp_lt_u32 s{sREM}, 2")
e("s_waitcnt lgkmcnt(0)")
e("s_cbranch_scc1 G_loop")
dma(1,P)
e("G_loop:")
def tile(buf):
    L=f"G_t{buf}"
    if PRIO:
        for j,(th,p) in enumerate(((5,2),(3,1),(1,0)) if PRIO==1 else ((6,2),(4,1),(2,0))):
            e(f"s_cmp_lg_u32 s{sREM}, {th}")
            e(f"s_cbranch_scc1 {L}p{j}")
            e(f"s_setprio {p}")
            e(f"{L}p{j}:")
    e(f"v_and_or_b32 v{TM+4}, v{ED}, s{sM78}, v{VQT}")
    e(f"v_and_or_b32 v{TM+5}, v{ED+1}, s{sM78}, v{VQT}")
    e(f"ds_read_b64 {v(OH,2)}, v{TM+4}")
    e(f"ds_read_b64 {v(OH+2,2)}, v{TM+5}")
    e(f"ds_read_b128 {v(EN,4)}, v{VEN} offset:{256+buf*128}")
    e(f"ds_read2_b32 {v(ED,2)}, v{VED} offset0:{32+buf*32} offset1:{34+buf*32}")
    e(f"s_cmp_lg_u32 s{sREM}, 1")
    e("s_waitcnt lgkmcnt(2)")
    e(f"v_mfma_f32_16x16x16_bf16 {v(LG,4)}, {v(OH,2)}, {v(MB,2)}, 0")
    e(f"v_mfma_f32_16x16x16_bf16 {v(LG+4,4)}, {v(OH+2,2)}, {v(MB,2)}, 0")
    e("s_waitcnt vmcnt(4)")
    e(f"s_cbranch_scc1 {L}a")
    e("s_waitcnt vmcnt(0)")
    e(f"{L}a:")
    for T in range(2):
        for s in range(2):
            e(f"ds_read_b128 {v(XA+T*8+s*4,4)}, v{AA+s} offset:{buf*4096+T*2048}")
    for t in range(4):
        for h in range(2):
            e(f"ds_read_b64_tr_b16 {v(XT+t*4+h*2,2)}, v{AT+t} offset:{buf*4096+h*2048}")
    e("s_waitcnt lgkmcnt(11)")
    e(f"v_mfma_f32_16x16x32_bf16 {v(LG,4)}, {v(XA,4)}, {v(QB,4)}, {v(LG,4)}")
    e("s_waitcnt lgkmcnt(10)")
    e(f"v_mfma_f32_16x16x32_bf16 {v(LG,4)}, {v(XA+4,4)}, {v(QB+4,4)}, {v(LG,4)}")
    e("s_waitcnt lgkmcnt(9)")
    e(f"v_mfma_f32_16x16x32_bf16 {v(LG+4,4)}, {v(XA+8,4)}, {v(QB,4)}, {v(LG+4,4)}")
    e("s_waitcnt lgkmcnt(8)")
    e(f"v_mfma_f32_16x16x32_bf16 {v(LG+4,4)}, {v(XA+12,4)}, {v(QB+4,4)}, {v(LG+4,4)}")
    e(f"s_cmp_lt_u32 s{sREM}, 3")
    e("s_waitcnt lgkmcnt(0)")
    e(f"s_cbranch_scc1 {L}b")
    dma(buf,EN)
    e(f"{L}b:")
    e("s_nop 5")
    if not FOLD:
      for i in range(8): e(f"v_mul_f32 v{LG+i}, s{sC}, v{LG+i}")
    else: e("s_nop 3")
    if not EXP&2:
      for i in range(8): e(f"v_exp_f32 v{LG+i}, v{LG+i}")
      for i in range(8): e(f"v_add_f32 v{LG+i}, 1.0, v{LG+i}")
      for i in range(8): e(f"v_rcp_f32 v{LG+i}, v{LG+i}")
    if buf==1:
        e(f"v_add_u32 v{VEN}, 256, v{VEN}")
        e(f"v_add_u32 v{VED}, 256, v{VED}")
    else: e("s_nop 0")
    for i in range(4): e(f"v_cvt_pk_bf16_f32 v{P+i}, v{LG+2*i}, v{LG+2*i+1}")
    e(f"s_sub_u32 s{sREM}, s{sREM}, 1")
    e(f"s_cmp_eq_u32 s{sREM}, 0")
    for t in range(4):
        e(f"v_mfma_f32_16x16x32_bf16 {v(ACC+t*4,4)}, {v(XT+t*4,4)}, {v(P,4)}, {v(ACC+t*4,4)}")
tile(0)
e("s_cbranch_scc1 G_next")
tile(1)
e("s_cbranch_scc0 G_loop")
e("G_next:")
stamp(7)
e(f"s_cmp_eq_u32 s{sSTATE}, 1")
e("s_cbranch_scc1 G_half2")
e(f"s_cmp_eq_u32 s{sSTATE}, 3")
e("s_cbranch_scc1 G_have")
e(f"s_mov_b32 s{sSTATE}, 3")
e(f"v_cmp_gt_u32 s[84:85], {G1//4}, v1")
e("s_waitcnt vmcnt(0)")
for k in range(4): e(f"v_cmp_ne_u32 s[{44+2*k}:{45+2*k}], 0, v{OC4+k}")
for k in range(4): e(f"s_and_b64 s[{44+2*k}:{45+2*k}], s[{44+2*k}:{45+2*k}], s[84:85]")
e("G_have:")
for k in range(4):
    e(f"s_ff1_i32_b64 s{sOW}, s[{44+2*k}:{45+2*k}]")
    e(f"s_cmp_lg_i32 s{sOW}, -1")
    e(f"s_cbranch_scc1 G_f{k}")
e("s_branch G_epi")
for k in range(4):
    e(f"G_f{k}:")
    e(f"s_bitset0_b64 s[{44+2*k}:{45+2*k}], s{sOW}")
    e(f"v_readlane_b32 s{sOW+4}, v{OC4+k}, s{sOW}")
    e(f"s_lshl_b32 s{sOW}, s{sOW}, 2")
    e(f"s_add_u32 s{sOW}, s{sOW}, {k}")
    e("s_branch G_ovl")
e("G_ovl:")
e(f"s_mul_i32 s{sT0}, s{sOW}, {CH*4}")
e(f"v_lshlrev_b32 v{TM}, 4, v0")
e(f"buffer_load_dwordx4 {v(Rr,4)}, v{TM}, s[40:43], s{sT0} offen sc1")
e(f"v_lshlrev_b32 v{TM}, 2, v0")
e("s_waitcnt vmcnt(0)")
for k in range(4): rawconv(v(Rr+k), v(Ee+k), sOW+4, v(TM), k)
for k in range(4): e(f"v_mov_b32 v{Ee+4+k}, 0")
e("s_branch G_again")
e("G_half2:")
for k in range(4):
    e(f"v_mov_b32 v{Ee+k}, v{SV+k}")
    e(f"v_mov_b32 v{Ee+4+k}, 0")
e(f"s_mov_b32 s{sSTATE}, 2")
e("s_branch G_again")
e("G_split:")
for k in range(4):
    e(f"v_mov_b32 v{SV+k}, v{Ee+4+k}")
    e(f"v_mov_b32 v{Ee+4+k}, 0")
e(f"s_mov_b32 s{sSTATE}, 1")
e("G_again:")
e("s_waitcnt lgkmcnt(0)")
e("s_barrier")
e(f"v_mov_b32 v{P}, 0\nv_mov_b32 v{P+1}, 0")
e(f"v_lshl_add_u32 v{TM}, v1, 3, v3")
e(f"ds_write_b64 v{TM}, {v(P,2)}")
e("s_waitcnt lgkmcnt(0)")
e("s_barrier")
e("s_branch G_batch")
e("G_epi:")
WV=40; BH=72; BL=80; DO=88
e(f"v_lshrrev_b32 v{DO}, 2, v1")
e(f"v_lshlrev_b32 v{DO}, 7, v{DO}")
e(f"v_and_b32 v{DO+1}, 3, v1")
e(f"v_lshl_add_u32 v{DO}, v{DO+1}, 5, v{DO}")
e(f"v_add_u32 v{DO}, {L_WV}, v{DO}")
for mt in range(4):
    for u in range(4):
        e(f"ds_read_b64_tr_b16 {v(WV+mt*8+u*2,2)}, v{DO} offset:{u*2048+mt*8}")
for i in range(8):
    e(f"v_cvt_pk_bf16_f32 v{BH+i}, v{ACC+2*i}, v{ACC+2*i+1}")
    e(f"v_lshlrev_b32 v{QB}, 16, v{BH+i}")
    e(f"v_and_b32 v{QB+1}, 0xffff0000, v{BH+i}")
    e(f"v_sub_f32 v{QB}, v{ACC+2*i}, v{QB}")
    e(f"v_sub_f32 v{QB+1}, v{ACC+2*i+1}, v{QB+1}")
    e(f"v_cvt_pk_bf16_f32 v{BL+i}, v{QB}, v{QB+1}")
e(f"v_and_b32 v{QB+2}, 15, v1")
e(f"v_lshrrev_b32 v{QB+3}, 4, v1")
e(f"v_lshlrev_b32 v{QB+4}, 7, v{QB+2}")
e(f"v_lshl_add_u32 v{QB+4}, v{QB+3}, 5, v{QB+4}")
e(f"v_cmp_gt_u32 vcc, {GS}, v{QB+2}")
e("s_waitcnt lgkmcnt(0)")
for B,h,z in ((BL,0,1),(BL+4,4,0),(BH,0,0),(BH+4,4,0)):
    for mt in range(4):
        e(f"v_mfma_f32_16x16x32_bf16 {v(DO+mt*4,4)}, {v(WV+mt*8+h,4)}, {v(B,4)}, {'0' if z else v(DO+mt*4,4)}")
e("s_nop 7")
for i in range(8): e(f"v_cvt_pk_bf16_f32 v{ACC+i}, v{DO+2*i}, v{DO+2*i+1}")
e("s_and_saveexec_b64 s[84:85], vcc")
e(f"buffer_store_dwordx4 {v(ACC,4)}, v{QB+4}, s[32:35], s{sNODE} offen")
e(f"buffer_store_dwordx4 {v(ACC+4,4)}, v{QB+4}, s[32:35], s{sNODE} offen offset:16")
delay("c")
abs_end()
stamp_out()
e("G_end:")
e("s_endpgm")
e('.section .rodata,"a"')
e(f""".p2align 6
.amdhsa_kernel {KN}
  .amdhsa_next_free_vgpr 112
  .amdhsa_next_free_sgpr 100
  .amdhsa_accum_offset 112
  .amdhsa_group_segment_fixed_size 0
  .amdhsa_kernarg_size 64
  .amdhsa_user_sgpr_count 2
  .amdhsa_user_sgpr_kernarg_segment_ptr 1
  .amdhsa_system_sgpr_workgroup_id_x 1
.end_amdhsa_kernel""")
dst = sys.argv[1] if len(sys.argv)>1 else 'gather_scatter__kernel_systems_refs_featgraph__graph.s'
open(dst,'w').write('\n'.join(out)+'\n')
```

```python
import sys, os
N=50000; E=800000
G1=240; CH=3336
GS=13; NB=241
SLOTB=G1*128; SLOT_BYTES=NB*SLOTB
GO_OFF=0x7d0000; ARR=0x8000
XO_OFF=0x7f0000
OC_OFF=0x800000
OV_OFF=0x810000
L_LIST=131072; CAP=5760
L_HIST=L_LIST+CAP*4; L_BASE=L_HIST+512; L_T=L_BASE+512; L_WV=L_T+512
L_IMG=32768; L_CNT=65536
assert L_HIST%512==0 and L_T%128==0 and L_WV+8192==163840
STAMP=int(os.environ.get('STAMP','0')); ST_OFF=0x1000000
PF0=int(os.environ.get('PF0','0')); PFPOS=int(os.environ.get('PFPOS','0'))
OOBPAD=int(os.environ.get('OOBPAD','0')); PRIO=int(os.environ.get('PRIO','0'))
EXP=int(os.environ.get('EXP','0'))
CPF=int(os.environ.get('CPF','0'))
DLY=os.environ.get('DLY','')
FOLD=int(os.environ.get('FOLD','0')); MP=int(os.environ.get('MP','1'))
ORDER=int(os.environ.get('ORDER','1'))
OST=os.environ.get('OST','')
GF=os.environ.get('GF','')
RSH=int(os.environ.get('RSH','0'))
SLEEP=int(os.environ.get('SLEEP','4'))
KN="gather_scatter__kernel_systems_refs_featgraph__graph_kernel"
out=[]
def e(s): out.append(s)
def v(i,n=1): return f"v{i}" if n==1 else f"v[{i}:{i+n-1}]"
def stamp(k):
    if not STAMP: return
    e("s_memrealtime s[96:97]")
    e("s_waitcnt lgkmcnt(0)")
    if k==0:
        for j in range(1,8): e(f"s_mov_b32 s{88+j}, 0")
        e(f"s_mov_b32 s{88+k}, s96")
    else:
        e(f"s_cmp_eq_u32 s{88+k}, 0")
        e(f"s_cselect_b32 s{88+k}, s96, s{88+k}")
def delay(tag):
    if tag not in DLY: return
    e("s_memrealtime s[96:97]")
    e("s_waitcnt lgkmcnt(0)")
    e("s_add_u32 s98, s96, 500")
    e(f"D_{tag}:")
    e("s_sleep 2")
    e("s_memrealtime s[96:97]")
    e("s_waitcnt lgkmcnt(0)")
    e("s_sub_u32 s99, s96, s98")
    e("s_cmp_lt_i32 s99, 0")
    e(f"s_cbranch_scc1 D_{tag}")
def abs_start():
    if 'z' not in DLY: return
    e("s_memrealtime s[96:97]")
    e("s_waitcnt lgkmcnt(0)")
    e("s_add_u32 s98, s96, 4000")
def abs_end():
    if 'z' not in DLY: return
    e("D_z:")
    e("s_sleep 2")
    e("s_memrealtime s[96:97]")
    e("s_waitcnt lgkmcnt(0)")
    e("s_sub_u32 s99, s96, s98")
    e("s_cmp_lt_i32 s99, 0")
    e(f"s_cbranch_scc1 D_z")
def stamp_out():
    if not STAMP: return
    if STAMP==3:
        e("s_waitcnt vmcnt(0)")
        e("s_memrealtime s[96:97]")
        e("s_mov_b64 exec, 1")
        srd(28, 16, 256)
        e("v_mov_b32 v2, 0")
        e(f"s_lshl_b32 s3, s2, 4")
        e(f"s_add_u32 s3, s3, s{sW}")
        for k in range(8): e(f"v_mov_b32 v{4+k}, s{88+k}")
        e("s_waitcnt lgkmcnt(0)")
        e("v_mov_b32 v12, s96")
        e(f"s_cmp_eq_u32 s3, {100*16+15}")
        e("s_cbranch_scc0 S_a")
        e("buffer_store_dwordx4 v[4:7], v2, s[28:31], 0 offen offset:8")
        e("buffer_store_dwordx4 v[8:11], v2, s[28:31], 0 offen offset:24")
        e("buffer_store_dword v12, v2, s[28:31], 0 offen offset:40")
        e("S_a:")
        e(f"s_cmp_eq_u32 s3, {240*16}")
        e("s_cbranch_scc0 S_b")
        e("buffer_store_dwordx2 v[7:8], v2, s[28:31], 0 offen offset:44" if 0 else "v_mov_b32 v14, v7\nv_mov_b32 v15, v8\nbuffer_store_dwordx2 v[14:15], v2, s[28:31], 0 offen offset:44")
        e("S_b:")
        e(f"s_cmp_eq_u32 s3, {37*16+0}")
        e("s_cbranch_scc0 S_c")
        e("v_mov_b32 v14, v4\nv_mov_b32 v15, v11\nv_mov_b32 v16, v12\nbuffer_store_dwordx3 v[14:16], v2, s[28:31], 0 offen offset:52")
        e("S_c:")
        return
    if STAMP==2:
        e("s_waitcnt vmcnt(0)")
        e("s_memrealtime s[96:97]")
        e("s_mov_b64 exec, 1")
        srd(28, 16, 256)
        e("v_mov_b32 v2, 0")
        e("s_not_b32 s3, s88")
        e("v_mov_b32 v3, s3")
        e("buffer_atomic_umax v3, v2, s[28:31], 0 offen offset:8")
        e("s_not_b32 s3, s92")
        e("v_mov_b32 v12, s3")
        e("buffer_atomic_umax v12, v2, s[28:31], 0 offen offset:12")
        for k in range(8):
            e(f"v_mov_b32 v{4+k}, s{88+k}")
            e(f"buffer_atomic_umax v{4+k}, v2, s[28:31], 0 offen offset:{16+4*k}")
        e("s_waitcnt lgkmcnt(0)")
        e("v_mov_b32 v13, s96")
        e("buffer_atomic_umax v13, v2, s[28:31], 0 offen offset:48")
        return
    e("s_mov_b64 exec, 1")
    e(f"s_add_u32 s96, s18, {ST_OFF}")
    e("s_addc_u32 s97, s19, 0")
    e("s_mov_b32 s98, 0x100000\ns_mov_b32 s99, 0x00020000")
    e("v_lshrrev_b32 v2, 6, v0")
    e("s_lshl_b32 s3, s2, 4")
    e("v_add_u32 v2, s3, v2")
    e("v_lshlrev_b32 v2, 5, v2")
    for k in range(8): e(f"v_mov_b32 v{4+k}, s{88+k}")
    e("buffer_store_dwordx4 v[4:7], v2, s[96:99], 0 offen")
    e("buffer_store_dwordx4 v[8:11], v2, s[96:99], 0 offen offset:16")
def srd(d, lo, size, off=0):
    if off:
        e(f"s_add_u32 s{d}, s{lo}, {off}"); e(f"s_addc_u32 s{d+1}, s{lo+1}, 0")
    else:
        e(f"s_mov_b32 s{d}, s{lo}"); e(f"s_mov_b32 s{d+1}, s{lo+1}")
    e(f"s_mov_b32 s{d+2}, {size}"); e(f"s_mov_b32 s{d+3}, 0x00020000")
def entry(dst, src, ent, gg, t1, t2):
    e(f"v_mul_u32_u24 {gg}, 40330, {dst}")
    e(f"v_lshrrev_b32 {gg}, 19, {gg}")
    e(f"v_mad_i32_i24 {t1}, {gg}, -13, {dst}")
    e(f"v_lshl_or_b32 {ent}, {src}, 7, s{sSIGN}")
    e(f"v_lshl_or_b32 {ent}, {t1}, 3, {ent}")
    e(f"v_lshrrev_b32 {t1}, 13, {src}")
    e(f"v_and_b32 {t2}, 15, {gg}")
    e(f"v_lshl_or_b32 {t1}, {t2}, 3, {t1}")
    e(f"v_lshl_or_b32 {ent}, {t1}, 24, {ent}")
def rawconv(raw, ent, cnt_s=None, idx=None, k=0):
    e(f"v_lshrrev_b32 v{TM+1}, 16, {raw}")
    e(f"v_and_b32 v{TM+2}, 0xffff, {raw}")
    entry(f"v{TM+1}", f"v{TM+2}", ent, f"v{TM+3}", f"v{TM+4}", f"v{TM+5}")
    e(f"v_lshrrev_b32 v{TM+3}, 4, v{TM+3}")
    e(f"v_cmp_eq_u32 vcc, s2, v{TM+3}")
    if cnt_s is not None:
        e(f"v_add_u32 v{TM+4}, {k}, {idx}")
        e(f"v_cmp_gt_u32 s[84:85], s{cnt_s}, v{TM+4}")
        e("s_and_b64 vcc, vcc, s[84:85]")
    e("s_nop 1")
    e(f"v_cndmask_b32 {ent}, 0, {ent}, vcc")

for l in open('gather_scatter__kernel_systems_refs_featgraph__graph.s.ref').read().split('\n'):
    if l.startswith('; @launch'): continue
    if l.startswith(';'): e(l)
    else: break
e(f"; @launch grid=({NB},1,1) block=(1024,1,1) lds=163840")
e('.amdgcn_target "amdgcn-amd-amdhsa--gfx950"\n.text')
BG=0x7000 if FOLD else 0xf000
BIGP=BG*0x10001; BIGH=BG<<16; BIGL=BG
ACC=4; QB=20; MB=28; AT=30; AA=34; VLO=36; VQT=37; VEN=38; VED=39
XA=40; XT=56; OH=72; LG=76; P=84; EN=88; ED=92; TM=94; SV=100; OC4=104; PFV=108
Ee=40; Rr=48; Bb=56; Aa=64
sW=68; sST=69; sCNT=70; sREM=71; sSTATE=72; sMSRC=73; sM78=74; sC=75; sT0=76; sT1=77; sBUFB=78; sSIGN=79; sM1FC=80; sNODE=81; sOW=82; sEOFF=83; sGO=87
e(f".globl {KN}\n.p2align 8\n.type {KN},@function\n{KN}:")
e(f"s_cmp_ge_u32 s2, {NB}")
e("s_cbranch_scc1 G_end")
if CPF:
    e("s_getpc_b64 s[4:5]")
    e("v_lshlrev_b32 v1, 6, v0")
    e(f"v_min_u32 v1, G_end-{KN}-16, v1")
    e("v_cmp_gt_u32 vcc, 0x80, v0")
    e("s_and_saveexec_b64 s[6:7], vcc")
    e("s_cbranch_execz G_nocpf")
    e("global_load_dword v110, v1, s[4:5]")
    e("G_nocpf:")
    e("s_mov_b64 exec, -1")
delay("a")
abs_start()
stamp(0)
e("s_load_dwordx16 s[4:19], s[0:1], 0")
e("v_lshrrev_b32 v2, 6, v0")
e("v_and_b32 v1, 63, v0")
e(f"v_readfirstlane_b32 s{sW}, v2")
e(f"s_mov_b32 s{sMSRC}, {0x1ff80 if EXP&1 else 0x7fff80}")
e(f"s_movk_i32 s{sM78}, 0x78")
e(f"s_mov_b32 s{sC}, 0xbe38aa3b")
e(f"s_mov_b32 s{sSIGN}, 0x80000000")
e(f"s_movk_i32 s{sM1FC}, 0x1fc")
e(f"s_mov_b32 s{sSTATE}, 0")
e(f"v_lshlrev_b32 v2, 4, v1")
e(f"v_lshlrev_b32 v3, 4, v0")
e(f"s_mul_i32 s{sEOFF}, s2, {CH*4}")
e(f"s_sub_u32 s{sT0}, {E*4}, s{sEOFF}")
e(f"s_max_i32 s{sT0}, s{sT0}, 0")
e(f"s_min_u32 s{sT0}, s{sT0}, {CH*4}")
e(f"v_cmp_gt_u32 s[52:53], s{sT0}, v3")
for k in range(4): e(f"v_mov_b32 v{P+k}, 0")
e("s_waitcnt lgkmcnt(0)")
srd(28, 6, E*4); srd(36, 8, E*4)
D_=40; S_=44; EN_=48; BK=52; RK=56
e("s_mov_b64 exec, s[52:53]")
e("s_cbranch_execz P_noload")
e(f"buffer_load_dwordx4 {v(D_,4)}, v3, s[36:39], s{sEOFF} offen")
e(f"buffer_load_dwordx4 {v(S_,4)}, v3, s[28:31], s{sEOFF} offen")
e("P_noload:")
e("s_mov_b64 exec, -1")
e(f"ds_write_b128 v3, {v(P,4)} offset:{L_IMG}")
e(f"ds_write_b128 v3, {v(P,4)} offset:{L_IMG+16384}")
e(f"v_lshlrev_b32 v{TM+3}, 3, v1")
e(f"v_and_b32 v{TM}, 15, v1")
e(f"v_lshrrev_b32 v{TM+1}, 4, v1")
e(f"s_cmp_eq_u32 s{sW}, 0")
e("s_cbranch_scc0 G_i1")
e(f"v_add_u32 v{TM+4}, {L_HIST}, v{TM+3}")
e(f"ds_write_b64 v{TM+4}, {v(P,2)}")
e(f"v_add_u32 v{TM+4}, {L_CNT}, v2")
e(f"ds_write_b128 v{TM+4}, {v(P,4)}")
e(f"v_mov_b32 v{TM+4}, {L_CNT+1024}")
e(f"v_mov_b32 v{EN}, -1\nv_mov_b32 v{EN+1}, -1")
e(f"ds_write_b64 v{TM+4}, {v(EN,2)}")
e("G_i1:")
e(f"v_lshlrev_b32 v{TM+4}, 2, v{TM+1}")
e(f"v_sub_u32 v{TM+4}, v{TM}, v{TM+4}")
e(f"v_mov_b32 v{P+2}, 0x3f80\nv_mov_b32 v{P+3}, 0x3f800000")
for r,(d0,d1) in enumerate([(0,1),(2,3)]):
    e(f"v_cmp_eq_u32 vcc, {d0}, v{TM+4}")
    e(f"v_cmp_eq_u32 s[46:47], {d1}, v{TM+4}")
    e(f"v_mov_b32 v{MB+r}, {BIGP}")
    e(f"v_mov_b32 v{TM+5}, {BIGH}")
    e(f"v_cndmask_b32 v{P+r}, 0, v{P+2}, vcc")
    e(f"v_cndmask_b32 v{P+r}, v{P+r}, v{P+3}, s[46:47]")
    e(f"v_cndmask_b32 v{MB+r}, v{MB+r}, v{TM+5}, vcc")
    e(f"v_mov_b32 v{TM+5}, {BIGL}")
    e(f"v_cndmask_b32 v{MB+r}, v{MB+r}, v{TM+5}, s[46:47]")
e(f"s_cmp_eq_u32 s{sW}, 1")
e("s_cbranch_scc0 G_i2")
e(f"v_add_u32 v{TM+4}, {L_T}, v{TM+3}")
e(f"ds_write_b64 v{TM+4}, {v(P,2)}")
e("G_i2:")
srd(20, 4, N*128); srd(24, 18, SLOT_BYTES); srd(40, 18, G1*CH*4, OV_OFF); srd(32, 14, N*128)
e("s_waitcnt lgkmcnt(0)")
e("s_barrier")
stamp(1)
srd(44, 18, 8192, GO_OFF)
srd(28, 16, 256)
e(f"s_lshl_b32 s{sGO}, s2, 2")
e(f"s_cmp_lg_u32 s{sW}, 0")
e("s_cbranch_scc1 P_nors")
e(f"s_cmp_lt_u32 s2, {G1}")
e("s_cbranch_scc1 P_nors")
for k in range(4): e(f"v_mov_b32 v{100+k}, 0")
for k in range(8):
    e(f"s_movk_i32 s{sT0}, {k*1024}")
    e(f"buffer_store_dwordx4 v[100:103], v2, s[44:47], s{sT0} offen sc1")
e(f"v_mov_b32 v104, 1")
e("s_mov_b64 exec, 1")
e("s_waitcnt vmcnt(0)")
e(f"buffer_store_dword v104, v100, s[28:31], 0 offen sc1")
e("s_mov_b64 exec, -1")
e("P_nors:")
e(f"s_cmp_ge_u32 s{sW}, 8")
e("s_cselect_b32 s36, s12, s10")
e("s_cselect_b32 s37, s13, s11")
e("s_mov_b32 s38, 8192\ns_mov_b32 s39, 0x00020000")
e(f"s_cselect_b32 s{sT0}, {L_WV}, 0")
e(f"s_and_b32 s{sT1}, s{sW}, 7")
e(f"s_lshl_b32 s{sT1}, s{sT1}, 10")
e(f"s_add_u32 m0, s{sT0}, s{sT1}")
e(f"v_lshlrev_b32 v{TM+3}, 4, v1")
e(f"buffer_load_dwordx4 v{TM+3}, s[36:39], s{sT1} offen lds")
e(f"s_lshl_b32 s{sNODE}, s2, 4")
e(f"s_add_u32 s{sNODE}, s{sNODE}, s{sW}")
e(f"s_mul_i32 s{sNODE}, s{sNODE}, {GS*128}")
def prefetch():
    srd(36, 4, PF0*128)
    e(f"s_lshr_b32 s{sT0}, s2, 3")
    e(f"s_lshl_b32 s{sT0}, s{sT0}, 17")
    e(f"v_lshlrev_b32 v{PFV}, 7, v0")
    e(f"buffer_load_dword v{PFV+1}, v{PFV}, s[36:39], s{sT0} offen")
NPF=0
if PF0 and PFPOS==0: prefetch(); NPF=1
e(f"v_mov_b32 v2, 1")
e(f"v_mov_b32 v{TM+5}, {L_CNT}")
e("s_mov_b64 exec, s[52:53]")
e("s_cbranch_execz P_copy")
e(f"s_waitcnt vmcnt(1)")
for k in range(4):
    entry(v(D_+k), v(S_+k), v(EN_+k), v(BK+k), v(TM+2), v(TM+3))
    e(f"v_lshrrev_b32 v{BK+k}, 4, v{BK+k}")
    e(f"v_lshl_add_u32 v{TM+2}, v{BK+k}, 2, v{TM+5}")
    e(f"ds_add_rtn_u32 v{RK+k}, v{TM+2}, v2")
for k in range(4):
    e(f"s_waitcnt lgkmcnt({3-k})")
    e(f"v_add_u32 v{TM+2}, v{RK+k}, v{BK+k}")
    e(f"v_and_b32 v{TM+2}, 31, v{TM+2}")
    e(f"v_lshlrev_b32 v{TM+2}, 2, v{TM+2}")
    e(f"v_lshl_or_b32 v{TM+2}, v{BK+k}, 7, v{TM+2}")
    e(f"v_cmp_gt_u32 vcc, 32, v{RK+k}")
    e(f"s_and_saveexec_b64 s[50:51], vcc")
    e(f"ds_write_b32 v{TM+2}, v{EN_+k} offset:{L_IMG}")
    e(f"s_mov_b64 exec, s[50:51]")
e(f"v_max3_u32 v{TM+2}, v{RK}, v{RK+1}, v{RK+2}")
e(f"v_max_u32 v{TM+2}, v{TM+2}, v{RK+3}")
e(f"v_cmp_lt_u32 vcc, 31, v{TM+2}")
e("s_cbranch_vccz P_copy")
for k in range(4):
    e(f"v_cmp_lt_u32 vcc, 31, v{RK+k}")
    e(f"s_and_saveexec_b64 s[50:51], vcc")
    e(f"s_cbranch_execz P_ov{k}")
    e(f"ds_add_rtn_u32 v{TM+2}, v{TM+5}, v2 offset:1020")
    e(f"v_lshl_or_b32 v{TM+3}, v{D_+k}, 16, v{S_+k}")
    e(f"s_waitcnt lgkmcnt(0)")
    e(f"v_lshlrev_b32 v{TM+2}, 2, v{TM+2}")
    e(f"v_cmp_gt_u32 vcc, 8, v{TM+2}")
    e(f"v_add_u32 v{TM+4}, v{TM+5}, v{TM+2}")
    e(f"s_and_saveexec_b64 s[48:49], vcc")
    e(f"ds_write_b32 v{TM+4}, v{TM+3} offset:1024")
    e(f"s_andn2_b64 exec, s[48:49], exec")
    e(f"s_cbranch_execz P_ov{k}")
    e(f"v_subrev_u32 v{TM+2}, 8, v{TM+2}")
    e(f"buffer_store_dword v{TM+3}, v{TM+2}, s[40:43], s{sEOFF} offen sc1")
    e(f"s_waitcnt vmcnt(0)")
    e(f"P_ov{k}:")
    e(f"s_mov_b64 exec, s[50:51]")
e("P_copy:")
e("s_mov_b64 exec, -1")
e(f"v_lshrrev_b32 v{TM+2}, 3, v0")
e(f"v_mul_u32_u24 v{TM+2}, {SLOTB}, v{TM+2}")
e(f"v_and_b32 v{TM+3}, 7, v0")
e(f"v_lshl_add_u32 v{TM+2}, v{TM+3}, 4, v{TM+2}")
e(f"s_lshl_b32 s{sT0}, s2, 7")
e(f"s_add_u32 s{sT1}, s{sT0}, {128*SLOTB}")
e(f"s_waitcnt lgkmcnt(0)")
e("s_barrier")
stamp(2)
e(f"s_cmp_ge_u32 s2, {G1}")
e("s_cbranch_scc1 P_nost")
e(f"s_cmp_lg_u32 s{sW}, 0")
e("s_cbranch_scc1 P_nord")
e("v_mov_b32 v111, 0")
e("buffer_load_dword v110, v111, s[28:31], 0 offen sc1")
e("P_nord:")
e(f"ds_read_b128 {v(40,4)}, v3 offset:{L_IMG}")
e(f"ds_read_b128 {v(44,4)}, v3 offset:{L_IMG+16384}")
e(f"ds_read_b32 v48, v{TM+5} offset:1020")
e(f"ds_read_b64 {v(50,2)}, v{TM+5} offset:1024")
e("s_waitcnt lgkmcnt(3)")
e(f"buffer_store_dwordx4 {v(40,4)}, v{TM+2}, s[24:27], s{sT0} offen sc1")
e("s_waitcnt lgkmcnt(2)")
e(f"buffer_store_dwordx4 {v(44,4)}, v{TM+2}, s[24:27], s{sT1} offen sc1")
e("v_cmp_eq_u32 vcc, 0, v0")
e("s_and_saveexec_b64 s[50:51], vcc")
e("s_cbranch_execz P_st2")
srd(36, 18, 0x20000, XO_OFF)
e(f"s_lshl_b32 s{sT0}, s2, 3")
e(f"s_lshl_b32 s{sT1}, s2, 2")
e(f"s_add_u32 s{sT1}, s{sT1}, {OC_OFF-XO_OFF}")
e("v_mov_b32 v49, 0")
e("s_waitcnt lgkmcnt(0)")
e("v_max_u32 v48, 2, v48")
e("v_subrev_u32 v48, 2, v48")
e(f"buffer_store_dwordx2 {v(50,2)}, v49, s[36:39], s{sT0} offen sc1")
e(f"buffer_store_dword v48, v49, s[36:39], s{sT1} offen sc1")
e("P_st2:")
e("s_mov_b64 exec, -1")
e("P_nost:")
e(f"s_lshl_b32 s{sBUFB}, s{sW}, 13")
e(f"v_lshlrev_b32 v{VQT}, 7, v{TM+1}")
e(f"v_add_u32 v{VQT}, {L_T}, v{VQT}")
e(f"v_and_b32 v{TM+4}, 7, v1")
e(f"v_lshlrev_b32 v{TM+5}, 1, v{TM+1}")
e(f"v_xor_b32 v{VLO}, v{TM+4}, v{TM+5}")
e(f"v_lshlrev_b32 v{VLO}, 4, v{VLO}")
e(f"v_and_b32 v{TM+4}, 6, v{TM}")
e(f"v_xor_b32 v{TM+4}, v{TM+4}, v{TM+1}")
e(f"v_lshlrev_b32 v{TM+4}, 4, v{TM+4}")
e(f"v_lshl_add_u32 v{AA}, v{TM}, 7, v{TM+4}")
e(f"v_add_u32 v{AA}, s{sBUFB}, v{AA}")
e(f"v_xor_b32 v{AA+1}, 64, v{AA}")
e(f"v_lshrrev_b32 v{TM+4}, 2, v1")
e(f"v_lshlrev_b32 v{TM+4}, 7, v{TM+4}")
e(f"v_and_b32 v{TM+5}, 3, v1")
e(f"v_lshl_add_u32 v{TM+4}, v{TM+5}, 3, v{TM+4}")
e(f"v_bfe_u32 v{TM+5}, v1, 3, 2")
e(f"v_lshl_add_u32 v{AT}, v{TM+5}, 5, v{TM+4}")
e(f"v_add_u32 v{AT}, s{sBUFB}, v{AT}")
for t in range(1,4): e(f"v_xor_b32 v{AT+t}, {t*32}, v{AT}")
e("s_waitcnt vmcnt(0)")
e("s_barrier")
stamp(3)
e(f"s_mov_b32 s3, 0x40000")
e(f"s_cmp_lg_u32 s{sW}, 0")
e("s_cbranch_scc1 P_wx")
e(f"s_cmp_ge_u32 s2, {G1}")
e("s_cbranch_scc1 P_wx")
e("s_mov_b64 exec, 1")
e(f"v_mov_b32 v{TM+4}, 0")
e(f"v_cmp_eq_u32 vcc, 1, v110")
e("s_cbranch_vccnz P_arr")
e("P_rpoll:")
e(f"buffer_load_dword v{TM+5}, v{TM+4}, s[28:31], 0 offen sc1")
e(f"s_sub_u32 s3, s3, 1")
e("s_cbranch_scc1 P_arr")
e("s_waitcnt vmcnt(0)")
e(f"v_cmp_eq_u32 vcc, 1, v{TM+5}")
e("s_cbranch_vccz P_rpoll")
e("P_arr:")
e("s_mov_b64 exec, 0xff")
e(f"v_lshlrev_b32 v{TM+4}, 10, v1")
e(f"buffer_store_dword v2, v{TM+4}, s[44:47], s{sGO} offen sc1")
e("s_mov_b64 exec, -1")
e("P_wx:")
e(f"v_lshlrev_b32 v{TM+2}, 7, v{TM}")
e(f"v_lshl_add_u32 v{TM+2}, v{TM+1}, 4, v{TM+2}")
for k in range(8): e(f"v_mov_b32 v{72+k}, 0")
e(f"v_cmp_gt_u32 vcc, {GS}, v{TM}")
e("s_mov_b64 exec, vcc")
e(f"buffer_load_dwordx4 {v(72,4)}, v{TM+2}, s[20:23], s{sNODE} offen")
e(f"buffer_load_dwordx4 {v(76,4)}, v{TM+2}, s[20:23], s{sNODE} offen offset:64")
e("s_mov_b64 exec, -1")
def qblock():
    e("v_lshrrev_b32 v109, 4, v1")
    e(f"v_bfe_u32 v110, v1, 2, 2")
    e(f"v_lshl_add_u32 v110, v109, 3, v110")
    e(f"v_lshlrev_b32 v110, 7, v110")
    e(f"v_and_b32 v111, 3, v1")
    e(f"v_lshl_add_u32 v110, v111, 4, v110")
    WQ=[56,64,84,100]
    TM4=110
    for mt in range(4):
        for s in range(2):
            for h in range(2):
                e(f"ds_read_b64_tr_b16 {v(WQ[mt]+s*4+h*2,2)}, v110 offset:{s*4096+h*512+(mt//2)*64+(mt%2)*8}")
    for mt in range(4):
        e(f"s_waitcnt lgkmcnt({12-4*mt})")
        e(f"v_mfma_f32_16x16x32_bf16 {v(ACC+mt*4,4)}, {v(WQ[mt],4)}, {v(72,4)}, 0")
        e(f"v_mfma_f32_16x16x32_bf16 {v(ACC+mt*4,4)}, {v(WQ[mt]+4,4)}, {v(76,4)}, {v(ACC+mt*4,4)}")
    e("s_nop 7")
    if FOLD:
        for i in range(16): e(f"v_mul_f32 v{ACC+i}, s{sC}, v{ACC+i}")
    for mt in range(4):
        e(f"v_cvt_pk_bf16_f32 v{QB+mt*2}, v{ACC+mt*4}, v{ACC+mt*4+1}")
        e(f"v_cvt_pk_bf16_f32 v{QB+mt*2+1}, v{ACC+mt*4+2}, v{ACC+mt*4+3}")
    for i in range(16): e(f"v_mov_b32 v{ACC+i}, 0")
if ORDER==2:
    e("s_waitcnt vmcnt(0)")
    qblock()
e(f"s_mov_b32 s{sT1}, 0x40000")
e(f"s_cmp_lg_u32 s{sW}, 0")
e("s_cbranch_scc1 P_nopoll")
e(f"v_lshlrev_b32 v{TM+4}, 4, v1")
e(f"s_lshr_b32 s{sT0}, s2, {RSH}")
e(f"s_and_b32 s{sT0}, s{sT0}, 7")
e(f"s_lshl_b32 s{sT0}, s{sT0}, 10")
e(f"v_cmp_le_u32 s[48:49], {G1//4}, v1")
e("P_poll:")
e(f"buffer_load_dwordx4 v[40:43], v{TM+4}, s[44:47], s{sT0} offen sc1")
e(f"s_sub_u32 s{sT1}, s{sT1}, 1")
e("s_cbranch_scc1 P_pdone")
e("s_waitcnt vmcnt(0)")
e("v_and_b32 v40, v40, v41")
e("v_and_b32 v42, v42, v43")
e("v_and_b32 v40, v40, v42")
e("v_cmp_eq_u32 vcc, 1, v40")
e("s_or_b64 vcc, vcc, s[48:49]")
e("s_cmp_eq_u64 vcc, -1")
e("s_cbranch_scc1 P_pdone")
if SLEEP: e(f"s_sleep {SLEEP}")
e("s_branch P_poll")
e("P_pdone:")
e("s_mov_b64 exec, -1")
e("P_nopoll:")
NPF2=0
if PF0 and PFPOS==1: prefetch(); NPF2=1
srd(36, 18, 0x20000, XO_OFF)
e(f"s_mul_i32 s{sT0}, s2, {SLOTB}")
e(f"s_add_u32 s{sT1}, s{sT0}, 16384")
e("s_waitcnt vmcnt(0)")
e("s_barrier")
delay("b")
stamp(4)
e(f"buffer_load_dwordx4 {v(Ee,4)}, v3, s[24:27], s{sT0} offen sc1")
e(f"s_cmp_ge_u32 s{sW}, 14")
e("s_cbranch_scc1 G_xo")
e(f"buffer_load_dwordx4 {v(Ee+4,4)}, v3, s[24:27], s{sT1} offen sc1")
e("s_branch G_q")
e("G_xo:")
e(f"v_subrev_u32 v{TM}, {896*16}, v3")
e(f"buffer_load_dwordx4 {v(Rr,4)}, v{TM}, s[36:39], 0 offen sc1")
e("G_q:")
if ORDER==1: qblock()
e(f"v_mov_b32 v3, {L_HIST}")
e(f"s_cmp_lt_u32 s{sW}, 14")
e("s_waitcnt vmcnt(0)")
e("s_cbranch_scc1 G_batch")
e(f"s_movk_i32 s{sT1}, {G1*2}")
e(f"v_lshrrev_b32 v{TM}, 2, v{TM}")
for k in range(4): rawconv(v(Rr+k), v(Ee+4+k), sT1, v(TM), k)
e("G_batch:")
for k in range(8):
    e(f"v_cmp_gt_i32 s[{52+2*k}:{53+2*k}], 0, v{Ee+k}")
    e(f"v_lshrrev_b32 v{Bb+k}, 22, v{Ee+k}")
    e(f"v_and_or_b32 v{Bb+k}, v{Bb+k}, s{sM1FC}, v3")
for k in range(8):
    e(f"s_mov_b64 exec, s[{52+2*k}:{53+2*k}]")
    e(f"ds_add_rtn_u32 v{Rr+k}, v{Bb+k}, v2")
e("s_mov_b64 exec, -1")
e(f"v_lshl_add_u32 v{TM}, v1, 3, v3")
e(f"s_cmp_lg_u32 s{sSTATE}, 0")
e("s_cbranch_scc1 G_nooc")
e(f"v_lshlrev_b32 v{TM+1}, 4, v1")
e(f"s_mov_b32 s{sT0}, {OC_OFF-XO_OFF}")
e(f"buffer_load_dwordx4 {v(OC4,4)}, v{TM+1}, s[36:39], s{sT0} offen sc1")
if PF0 and PFPOS==2:
    srd(28, 4, PF0*128)
    e(f"s_lshr_b32 s{sT0}, s2, 3")
    e(f"s_lshl_b32 s{sT0}, s{sT0}, 17")
    e(f"v_lshlrev_b32 v{PFV}, 7, v0")
    e(f"buffer_load_dword v{PFV+1}, v{PFV}, s[28:31], s{sT0} offen")
e("G_nooc:")
e(f"s_waitcnt lgkmcnt(0)")
e("s_barrier")
stamp(5)
c0,c1,s_,tot,vv,inc = P,P+1,P+2,P+3,TM+1,TM+2
e(f"ds_read_b64 {v(c0,2)}, v{TM}")
e(f"v_and_b32 v{TM+3}, 3, v1")
e(f"v_cmp_eq_u32 vcc, 3, v{TM+3}")
e("s_waitcnt lgkmcnt(0)")
e(f"v_add_u32 v{s_}, v{c0}, v{c1}")
e("s_nop 1")
e(f"v_add_u32_dpp v{tot}, v{s_}, v{s_} quad_perm:[1,0,3,2] row_mask:0xf bank_mask:0xf")
e("s_nop 1")
e(f"v_add_u32_dpp v{tot}, v{tot}, v{tot} quad_perm:[2,3,0,1] row_mask:0xf bank_mask:0xf")
e(f"v_sub_u32 v{TM+3}, 0, v{tot}")
e(f"v_and_b32 v{TM+3}, 31, v{TM+3}")
e(f"v_cndmask_b32 v{TM+3}, 0, v{TM+3}, vcc")
e(f"v_add_u32 v{vv}, v{s_}, v{TM+3}")
e(f"v_mov_b32 v{inc}, v{vv}")
for sh in (1,2,4,8):
    e("s_nop 1")
    e(f"v_add_u32_dpp v{inc}, v{inc}, v{inc} row_shr:{sh} row_mask:0xf bank_mask:0xf bound_ctrl:0")
e("s_nop 1")
e(f"v_add_u32_dpp v{inc}, v{inc}, v{inc} row_bcast:15 row_mask:0xa bank_mask:0xf")
e("s_nop 1")
e(f"v_add_u32_dpp v{inc}, v{inc}, v{inc} row_bcast:31 row_mask:0xc bank_mask:0xf")
e(f"s_lshl_b32 s{sT1}, s{sW}, 2")
e(f"v_sub_u32 v{vv}, v{inc}, v{vv}")
e(f"v_readlane_b32 s{sT0}, v{inc}, 63")
e(f"v_readlane_b32 s{sCNT}, v{tot}, s{sT1}")
e(f"v_readlane_b32 s{sST}, v{vv}, s{sT1}")
e(f"v_add_u32 v{c1}, v{vv}, v{c0}")
e(f"v_mov_b32 v{TM+3}, {L_LIST}")
e(f"v_lshl_add_u32 v{c0}, v{vv}, 2, v{TM+3}")
e(f"v_lshl_add_u32 v{c1}, v{c1}, 2, v{TM+3}")
e(f"s_cmp_gt_u32 s{sT0}, {CAP}")
e("s_cbranch_scc1 G_split")
e(f"ds_write_b64 v{TM}, {v(c0,2)} offset:512")
e(f"s_add_u32 s{sT0}, s{sST}, s{sCNT}")
e(f"s_add_u32 s{sREM}, s{sCNT}, 31")
e(f"s_lshr_b32 s{sREM}, s{sREM}, 5")
e(f"s_lshl_b32 s{sT1}, s{sREM}, 5")
e(f"s_sub_u32 s{sT1}, s{sT1}, s{sCNT}")
e(f"v_add_u32 v{TM+4}, s{sT0}, v1")
e(f"v_lshl_add_u32 v{TM+4}, v{TM+4}, 2, v{TM+3}")
e(f"v_mov_b32 v{TM+5}, {0x7ffff8 if OOBPAD else 0x78}")
e(f"v_cmp_gt_u32 vcc, s{sT1}, v1")
e("s_and_saveexec_b64 s[84:85], vcc")
e(f"ds_write_b32 v{TM+4}, v{TM+5}")
e("s_mov_b64 exec, -1")
e("s_waitcnt lgkmcnt(0)")
for k in range(8): e(f"ds_read_b32 v{Aa+k}, v{Bb+k} offset:512")
e(f"s_lshl_b32 s{sT0}, s{sST}, 2")
e(f"s_add_u32 s{sT0}, s{sT0}, {L_LIST}")
e(f"v_lshrrev_b32 v{VEN}, 3, v1")
e(f"v_lshlrev_b32 v{VEN}, 4, v{VEN}")
e(f"v_add_u32 v{VEN}, s{sT0}, v{VEN}")
e(f"v_and_b32 v{VED}, 7, v1")
e(f"v_bfe_u32 v{TM+4}, v1, 3, 1")
e(f"v_lshl_add_u32 v{VED}, v{VED}, 2, v{TM+4}")
e(f"v_lshlrev_b32 v{VED}, 2, v{VED}")
e(f"v_add_u32 v{VED}, s{sT0}, v{VED}")
for k in range(8):
    e(f"s_waitcnt lgkmcnt({7 if k else 7})" if False else f"s_waitcnt lgkmcnt(7)")
    e(f"v_lshl_add_u32 v{Aa+k}, v{Rr+k}, 2, v{Aa+k}")
    e(f"s_mov_b64 exec, s[{52+2*k}:{53+2*k}]")
    e(f"ds_write_b32 v{Aa+k}, v{Ee+k}")
    e("s_mov_b64 exec, -1")
e("s_waitcnt lgkmcnt(0)")
e("s_barrier")
stamp(6)
def dma(buf, en):
    e(f"s_add_u32 m0, s{sBUFB}, {buf*4096}")
    for i in range(4):
        e(f"v_and_or_b32 v{TM+i}, v{en+i}, s{sMSRC}, v{VLO}")
        e(f"buffer_load_dwordx4 v{TM+i}, s[20:23], 0 offen {GF} lds")
        if i<3: e("s_add_u32 m0, m0, 1024")
e(f"s_cmp_eq_u32 s{sREM}, 0")
e("s_cbranch_scc1 G_next")
if PRIO: e("s_setprio 3")
e(f"ds_read_b128 {v(EN,4)}, v{VEN}")
e(f"ds_read_b128 {v(P,4)}, v{VEN} offset:128")
e(f"ds_read2_b32 {v(ED,2)}, v{VED} offset0:0 offset1:2")
e("s_waitcnt lgkmcnt(2)")
dma(0,EN)
e(f"s_cmp_lt_u32 s{sREM}, 2")
e("s_waitcnt lgkmcnt(0)")
e("s_cbranch_scc1 G_loop")
dma(1,P)
e("G_loop:")
def tile(buf):
    L=f"G_t{buf}"
    if PRIO:
        for j,(th,p) in enumerate(((5,2),(3,1),(1,0)) if PRIO==1 else ((6,2),(4,1),(2,0))):
            e(f"s_cmp_lg_u32 s{sREM}, {th}")
            e(f"s_cbranch_scc1 {L}p{j}")
            e(f"s_setprio {p}")
            e(f"{L}p{j}:")
    e(f"v_and_or_b32 v{TM+4}, v{ED}, s{sM78}, v{VQT}")
    e(f"v_and_or_b32 v{TM+5}, v{ED+1}, s{sM78}, v{VQT}")
    e(f"ds_read_b64 {v(OH,2)}, v{TM+4}")
    e(f"ds_read_b64 {v(OH+2,2)}, v{TM+5}")
    e(f"ds_read_b128 {v(EN,4)}, v{VEN} offset:{256+buf*128}")
    e(f"ds_read2_b32 {v(ED,2)}, v{VED} offset0:{32+buf*32} offset1:{34+buf*32}")
    e(f"s_cmp_lg_u32 s{sREM}, 1")
    e("s_waitcnt lgkmcnt(2)")
    e(f"v_mfma_f32_16x16x16_bf16 {v(LG,4)}, {v(OH,2)}, {v(MB,2)}, 0")
    e(f"v_mfma_f32_16x16x16_bf16 {v(LG+4,4)}, {v(OH+2,2)}, {v(MB,2)}, 0")
    e("s_waitcnt vmcnt(4)")
    e(f"s_cbranch_scc1 {L}a")
    e("s_waitcnt vmcnt(0)")
    e(f"{L}a:")
    for T in range(2):
        for s in range(2):
            e(f"ds_read_b128 {v(XA+T*8+s*4,4)}, v{AA+s} offset:{buf*4096+T*2048}")
    for t in range(4):
        for h in range(2):
            e(f"ds_read_b64_tr_b16 {v(XT+t*4+h*2,2)}, v{AT+t} offset:{buf*4096+h*2048}")
    e("s_waitcnt lgkmcnt(11)")
    e(f"v_mfma_f32_16x16x32_bf16 {v(LG,4)}, {v(XA,4)}, {v(QB,4)}, {v(LG,4)}")
    e("s_waitcnt lgkmcnt(10)")
    e(f"v_mfma_f32_16x16x32_bf16 {v(LG,4)}, {v(XA+4,4)}, {v(QB+4,4)}, {v(LG,4)}")
    e("s_waitcnt lgkmcnt(9)")
    e(f"v_mfma_f32_16x16x32_bf16 {v(LG+4,4)}, {v(XA+8,4)}, {v(QB,4)}, {v(LG+4,4)}")
    e("s_waitcnt lgkmcnt(8)")
    e(f"v_mfma_f32_16x16x32_bf16 {v(LG+4,4)}, {v(XA+12,4)}, {v(QB+4,4)}, {v(LG+4,4)}")
    e(f"s_cmp_lt_u32 s{sREM}, 3")
    e("s_waitcnt lgkmcnt(0)")
    e(f"s_cbranch_scc1 {L}b")
    dma(buf,EN)
    e(f"{L}b:")
    e("s_nop 5")
    if not FOLD:
      for i in range(8): e(f"v_mul_f32 v{LG+i}, s{sC}, v{LG+i}")
    else: e("s_nop 3")
    if not EXP&2:
      for i in range(8): e(f"v_exp_f32 v{LG+i}, v{LG+i}")
      for i in range(8): e(f"v_add_f32 v{LG+i}, 1.0, v{LG+i}")
      for i in range(8): e(f"v_rcp_f32 v{LG+i}, v{LG+i}")
    if buf==1:
        e(f"v_add_u32 v{VEN}, 256, v{VEN}")
        e(f"v_add_u32 v{VED}, 256, v{VED}")
    else: e("s_nop 0")
    for i in range(4): e(f"v_cvt_pk_bf16_f32 v{P+i}, v{LG+2*i}, v{LG+2*i+1}")
    e(f"s_sub_u32 s{sREM}, s{sREM}, 1")
    e(f"s_cmp_eq_u32 s{sREM}, 0")
    for t in range(4):
        e(f"v_mfma_f32_16x16x32_bf16 {v(ACC+t*4,4)}, {v(XT+t*4,4)}, {v(P,4)}, {v(ACC+t*4,4)}")
tile(0)
e("s_cbranch_scc1 G_next")
tile(1)
e("s_cbranch_scc0 G_loop")
e("G_next:")
stamp(7)
e(f"s_cmp_eq_u32 s{sSTATE}, 1")
e("s_cbranch_scc1 G_half2")
e(f"s_cmp_eq_u32 s{sSTATE}, 3")
e("s_cbranch_scc1 G_have")
e(f"s_mov_b32 s{sSTATE}, 3")
e(f"v_cmp_gt_u32 s[84:85], {G1//4}, v1")
e("s_waitcnt vmcnt(0)")
for k in range(4): e(f"v_cmp_ne_u32 s[{44+2*k}:{45+2*k}], 0, v{OC4+k}")
for k in range(4): e(f"s_and_b64 s[{44+2*k}:{45+2*k}], s[{44+2*k}:{45+2*k}], s[84:85]")
e("G_have:")
for k in range(4):
    e(f"s_ff1_i32_b64 s{sOW}, s[{44+2*k}:{45+2*k}]")
    e(f"s_cmp_lg_i32 s{sOW}, -1")
    e(f"s_cbranch_scc1 G_f{k}")
e("s_branch G_epi")
for k in range(4):
    e(f"G_f{k}:")
    e(f"s_bitset0_b64 s[{44+2*k}:{45+2*k}], s{sOW}")
    e(f"v_readlane_b32 s{sOW+4}, v{OC4+k}, s{sOW}")
    e(f"s_lshl_b32 s{sOW}, s{sOW}, 2")
    e(f"s_add_u32 s{sOW}, s{sOW}, {k}")
    e("s_branch G_ovl")
e("G_ovl:")
e(f"s_mul_i32 s{sT0}, s{sOW}, {CH*4}")
e(f"v_lshlrev_b32 v{TM}, 4, v0")
e(f"buffer_load_dwordx4 {v(Rr,4)}, v{TM}, s[40:43], s{sT0} offen sc1")
e(f"v_lshlrev_b32 v{TM}, 2, v0")
e("s_waitcnt vmcnt(0)")
for k in range(4): rawconv(v(Rr+k), v(Ee+k), sOW+4, v(TM), k)
for k in range(4): e(f"v_mov_b32 v{Ee+4+k}, 0")
e("s_branch G_again")
e("G_half2:")
for k in range(4):
    e(f"v_mov_b32 v{Ee+k}, v{SV+k}")
    e(f"v_mov_b32 v{Ee+4+k}, 0")
e(f"s_mov_b32 s{sSTATE}, 2")
e("s_branch G_again")
e("G_split:")
for k in range(4):
    e(f"v_mov_b32 v{SV+k}, v{Ee+4+k}")
    e(f"v_mov_b32 v{Ee+4+k}, 0")
e(f"s_mov_b32 s{sSTATE}, 1")
e("G_again:")
e("s_waitcnt lgkmcnt(0)")
e("s_barrier")
e(f"v_mov_b32 v{P}, 0\nv_mov_b32 v{P+1}, 0")
e(f"v_lshl_add_u32 v{TM}, v1, 3, v3")
e(f"ds_write_b64 v{TM}, {v(P,2)}")
e("s_waitcnt lgkmcnt(0)")
e("s_barrier")
e("s_branch G_batch")
e("G_epi:")
WV=40; BH=72; BL=80; DO=88
e(f"v_lshrrev_b32 v{DO}, 2, v1")
e(f"v_lshlrev_b32 v{DO}, 7, v{DO}")
e(f"v_and_b32 v{DO+1}, 3, v1")
e(f"v_lshl_add_u32 v{DO}, v{DO+1}, 5, v{DO}")
e(f"v_add_u32 v{DO}, {L_WV}, v{DO}")
for mt in range(4):
    for u in range(4):
        e(f"ds_read_b64_tr_b16 {v(WV+mt*8+u*2,2)}, v{DO} offset:{u*2048+mt*8}")
for i in range(8):
    e(f"v_cvt_pk_bf16_f32 v{BH+i}, v{ACC+2*i}, v{ACC+2*i+1}")
    e(f"v_lshlrev_b32 v{QB}, 16, v{BH+i}")
    e(f"v_and_b32 v{QB+1}, 0xffff0000, v{BH+i}")
    e(f"v_sub_f32 v{QB}, v{ACC+2*i}, v{QB}")
    e(f"v_sub_f32 v{QB+1}, v{ACC+2*i+1}, v{QB+1}")
    e(f"v_cvt_pk_bf16_f32 v{BL+i}, v{QB}, v{QB+1}")
e(f"v_and_b32 v{QB+2}, 15, v1")
e(f"v_lshrrev_b32 v{QB+3}, 4, v1")
e(f"v_lshlrev_b32 v{QB+4}, 7, v{QB+2}")
e(f"v_lshl_add_u32 v{QB+4}, v{QB+3}, 5, v{QB+4}")
e(f"v_cmp_gt_u32 vcc, {GS}, v{QB+2}")
e("s_waitcnt lgkmcnt(0)")
for B,h,z in ((BL,0,1),(BL+4,4,0),(BH,0,0),(BH+4,4,0)):
    for mt in range(4):
        e(f"v_mfma_f32_16x16x32_bf16 {v(DO+mt*4,4)}, {v(WV+mt*8+h,4)}, {v(B,4)}, {'0' if z else v(DO+mt*4,4)}")
e("s_nop 7")
for i in range(8): e(f"v_cvt_pk_bf16_f32 v{ACC+i}, v{DO+2*i}, v{DO+2*i+1}")
e("s_and_saveexec_b64 s[84:85], vcc")
e(f"buffer_store_dwordx4 {v(ACC,4)}, v{QB+4}, s[32:35], s{sNODE} offen {OST}")
e(f"buffer_store_dwordx4 {v(ACC+4,4)}, v{QB+4}, s[32:35], s{sNODE} offen offset:16 {OST}")
delay("c")
abs_end()
stamp_out()
e("G_end:")
e("s_endpgm")
e('.section .rodata,"a"')
e(f""".p2align 6
.amdhsa_kernel {KN}
  .amdhsa_next_free_vgpr 112
  .amdhsa_next_free_sgpr 100
  .amdhsa_accum_offset 112
  .amdhsa_group_segment_fixed_size 0
  .amdhsa_kernarg_size 64
  .amdhsa_user_sgpr_count 2
  .amdhsa_user_sgpr_kernarg_segment_ptr 1
  .amdhsa_system_sgpr_workgroup_id_x 1
.end_amdhsa_kernel""")
dst = sys.argv[1] if len(sys.argv)>1 else 'gather_scatter__kernel_systems_refs_featgraph__graph.s'
open(dst,'w').write('\n'.join(out)+'\n')
```

```python
import sys, os
N=50000; E=800000
G1=240; CH=3336
GS=13; NB=241
SLOTB=G1*128; SLOT_BYTES=NB*SLOTB
GO_OFF=0x7d0000; ARR=0x8000
XO_OFF=0x7f0000
OC_OFF=0x800000
OV_OFF=0x810000
L_LIST=131072; CAP=5760
L_HIST=L_LIST+CAP*4; L_BASE=L_HIST+512; L_T=L_BASE+512; L_WV=L_T+512
L_FLG=L_HIST-4
L_IMG=32768; L_CNT=65536
assert L_HIST%512==0 and L_T%128==0 and L_WV+8192==163840
STAMP=int(os.environ.get('STAMP','0')); ST_OFF=0x1000000
PF0=int(os.environ.get('PF0','0')); PFPOS=int(os.environ.get('PFPOS','0'))
OOBPAD=int(os.environ.get('OOBPAD','0')); PRIO=int(os.environ.get('PRIO','0'))
EXP=int(os.environ.get('EXP','0'))
CPF=int(os.environ.get('CPF','0'))
DLY=os.environ.get('DLY','')
FOLD=int(os.environ.get('FOLD','0')); MP=int(os.environ.get('MP','1'))
ORDER=int(os.environ.get('ORDER','1'))
OST=os.environ.get('OST','')
GF=os.environ.get('GF','')
RSH=int(os.environ.get('RSH','0'))
SLEEP=int(os.environ.get('SLEEP','4'))
KN="gather_scatter__kernel_systems_refs_featgraph__graph_kernel"
out=[]
def e(s): out.append(s)
def v(i,n=1): return f"v{i}" if n==1 else f"v[{i}:{i+n-1}]"
def stamp(k):
    if not STAMP: return
    e("s_memrealtime s[96:97]")
    e("s_waitcnt lgkmcnt(0)")
    if k==0:
        for j in range(1,8): e(f"s_mov_b32 s{88+j}, 0")
        e(f"s_mov_b32 s{88+k}, s96")
    else:
        e(f"s_cmp_eq_u32 s{88+k}, 0")
        e(f"s_cselect_b32 s{88+k}, s96, s{88+k}")
def delay(tag):
    if tag not in DLY: return
    e("s_memrealtime s[96:97]")
    e("s_waitcnt lgkmcnt(0)")
    e("s_add_u32 s98, s96, 500")
    e(f"D_{tag}:")
    e("s_sleep 2")
    e("s_memrealtime s[96:97]")
    e("s_waitcnt lgkmcnt(0)")
    e("s_sub_u32 s99, s96, s98")
    e("s_cmp_lt_i32 s99, 0")
    e(f"s_cbranch_scc1 D_{tag}")
def abs_start():
    if 'z' not in DLY: return
    e("s_memrealtime s[96:97]")
    e("s_waitcnt lgkmcnt(0)")
    e("s_add_u32 s98, s96, 4000")
def abs_end():
    if 'z' not in DLY: return
    e("D_z:")
    e("s_sleep 2")
    e("s_memrealtime s[96:97]")
    e("s_waitcnt lgkmcnt(0)")
    e("s_sub_u32 s99, s96, s98")
    e("s_cmp_lt_i32 s99, 0")
    e(f"s_cbranch_scc1 D_z")
def stamp_out():
    if not STAMP: return
    if STAMP==3:
        e("s_waitcnt vmcnt(0)")
        e("s_memrealtime s[96:97]")
        e("s_mov_b64 exec, 1")
        srd(28, 16, 256)
        e("v_mov_b32 v2, 0")
        e(f"s_lshl_b32 s3, s2, 4")
        e(f"s_add_u32 s3, s3, s{sW}")
        for k in range(8): e(f"v_mov_b32 v{4+k}, s{88+k}")
        e("s_waitcnt lgkmcnt(0)")
        e("v_mov_b32 v12, s96")
        e(f"s_cmp_eq_u32 s3, {100*16+15}")
        e("s_cbranch_scc0 S_a")
        e("buffer_store_dwordx4 v[4:7], v2, s[28:31], 0 offen offset:8")
        e("buffer_store_dwordx4 v[8:11], v2, s[28:31], 0 offen offset:24")
        e("buffer_store_dword v12, v2, s[28:31], 0 offen offset:40")
        e("S_a:")
        e(f"s_cmp_eq_u32 s3, {240*16}")
        e("s_cbranch_scc0 S_b")
        e("buffer_store_dwordx2 v[7:8], v2, s[28:31], 0 offen offset:44" if 0 else "v_mov_b32 v14, v7\nv_mov_b32 v15, v8\nbuffer_store_dwordx2 v[14:15], v2, s[28:31], 0 offen offset:44")
        e("S_b:")
        e(f"s_cmp_eq_u32 s3, {37*16+0}")
        e("s_cbranch_scc0 S_c")
        e("v_mov_b32 v14, v4\nv_mov_b32 v15, v11\nv_mov_b32 v16, v12\nbuffer_store_dwordx3 v[14:16], v2, s[28:31], 0 offen offset:52")
        e("S_c:")
        return
    if STAMP==2:
        e("s_waitcnt vmcnt(0)")
        e("s_memrealtime s[96:97]")
        e("s_mov_b64 exec, 1")
        srd(28, 16, 256)
        e("v_mov_b32 v2, 0")
        e("s_not_b32 s3, s88")
        e("v_mov_b32 v3, s3")
        e("buffer_atomic_umax v3, v2, s[28:31], 0 offen offset:8")
        e("s_not_b32 s3, s92")
        e("v_mov_b32 v12, s3")
        e("buffer_atomic_umax v12, v2, s[28:31], 0 offen offset:12")
        for k in range(8):
            e(f"v_mov_b32 v{4+k}, s{88+k}")
            e(f"buffer_atomic_umax v{4+k}, v2, s[28:31], 0 offen offset:{16+4*k}")
        e("s_waitcnt lgkmcnt(0)")
        e("v_mov_b32 v13, s96")
        e("buffer_atomic_umax v13, v2, s[28:31], 0 offen offset:48")
        return
    e("s_mov_b64 exec, 1")
    e(f"s_add_u32 s96, s18, {ST_OFF}")
    e("s_addc_u32 s97, s19, 0")
    e("s_mov_b32 s98, 0x100000\ns_mov_b32 s99, 0x00020000")
    e("v_lshrrev_b32 v2, 6, v0")
    e("s_lshl_b32 s3, s2, 4")
    e("v_add_u32 v2, s3, v2")
    e("v_lshlrev_b32 v2, 5, v2")
    for k in range(8): e(f"v_mov_b32 v{4+k}, s{88+k}")
    e("buffer_store_dwordx4 v[4:7], v2, s[96:99], 0 offen")
    e("buffer_store_dwordx4 v[8:11], v2, s[96:99], 0 offen offset:16")
def srd(d, lo, size, off=0):
    if off:
        e(f"s_add_u32 s{d}, s{lo}, {off}"); e(f"s_addc_u32 s{d+1}, s{lo+1}, 0")
    else:
        e(f"s_mov_b32 s{d}, s{lo}"); e(f"s_mov_b32 s{d+1}, s{lo+1}")
    e(f"s_mov_b32 s{d+2}, {size}"); e(f"s_mov_b32 s{d+3}, 0x00020000")
def entry(dst, src, ent, gg, t1, t2):
    e(f"v_mul_u32_u24 {gg}, 40330, {dst}")
    e(f"v_lshrrev_b32 {gg}, 19, {gg}")
    e(f"v_mad_i32_i24 {t1}, {gg}, -13, {dst}")
    e(f"v_lshl_or_b32 {ent}, {src}, 7, s{sSIGN}")
    e(f"v_lshl_or_b32 {ent}, {t1}, 3, {ent}")
    e(f"v_lshrrev_b32 {t1}, 13, {src}")
    e(f"v_and_b32 {t2}, 15, {gg}")
    e(f"v_lshl_or_b32 {t1}, {t2}, 3, {t1}")
    e(f"v_lshl_or_b32 {ent}, {t1}, 24, {ent}")
def rawconv(raw, ent, cnt_s=None, idx=None, k=0):
    e(f"v_lshrrev_b32 v{TM+1}, 16, {raw}")
    e(f"v_and_b32 v{TM+2}, 0xffff, {raw}")
    entry(f"v{TM+1}", f"v{TM+2}", ent, f"v{TM+3}", f"v{TM+4}", f"v{TM+5}")
    e(f"v_lshrrev_b32 v{TM+3}, 4, v{TM+3}")
    e(f"v_cmp_eq_u32 vcc, s2, v{TM+3}")
    if cnt_s is not None:
        e(f"v_add_u32 v{TM+4}, {k}, {idx}")
        e(f"v_cmp_gt_u32 s[84:85], s{cnt_s}, v{TM+4}")
        e("s_and_b64 vcc, vcc, s[84:85]")
    e("s_nop 1")
    e(f"v_cndmask_b32 {ent}, 0, {ent}, vcc")

for l in open('gather_scatter__kernel_systems_refs_featgraph__graph.s.ref').read().split('\n'):
    if l.startswith('; @launch'): continue
    if l.startswith(';'): e(l)
    else: break
e(f"; @launch grid=({NB},1,1) block=(1024,1,1) lds=163840")
e('.amdgcn_target "amdgcn-amd-amdhsa--gfx950"\n.text')
BG=0x7000 if FOLD else 0xf000
BIGP=BG*0x10001; BIGH=BG<<16; BIGL=BG
ACC=4; QB=20; MB=28; AT=30; AA=34; VLO=36; VQT=37; VEN=38; VED=39
XA=40; XT=56; OH=72; LG=76; P=84; EN=88; ED=92; TM=94; SV=100; OC4=104; PFV=108
Ee=40; Rr=48; Bb=56; Aa=64
sW=68; sST=69; sCNT=70; sREM=71; sSTATE=72; sMSRC=73; sM78=74; sC=75; sT0=76; sT1=77; sBUFB=78; sSIGN=79; sM1FC=80; sNODE=81; sOW=82; sEOFF=83; sGO=87
e(f".globl {KN}\n.p2align 8\n.type {KN},@function\n{KN}:")
e(f"s_cmp_ge_u32 s2, {NB}")
e("s_cbranch_scc1 G_end")
if CPF:
    e("s_getpc_b64 s[4:5]")
    e("v_lshlrev_b32 v1, 6, v0")
    e(f"v_min_u32 v1, G_end-{KN}-16, v1")
    e("v_cmp_gt_u32 vcc, 0x80, v0")
    e("s_and_saveexec_b64 s[6:7], vcc")
    e("s_cbranch_execz G_nocpf")
    e("global_load_dword v110, v1, s[4:5]")
    e("G_nocpf:")
    e("s_mov_b64 exec, -1")
delay("a")
abs_start()
stamp(0)
e("s_load_dwordx16 s[4:19], s[0:1], 0")
e("v_lshrrev_b32 v2, 6, v0")
e("v_and_b32 v1, 63, v0")
e(f"v_readfirstlane_b32 s{sW}, v2")
e(f"s_mov_b32 s{sMSRC}, {0x1ff80 if EXP&1 else 0x7fff80}")
e(f"s_movk_i32 s{sM78}, 0x78")
e(f"s_mov_b32 s{sC}, 0xbe38aa3b")
e(f"s_mov_b32 s{sSIGN}, 0x80000000")
e(f"s_movk_i32 s{sM1FC}, 0x1fc")
e(f"s_mov_b32 s{sSTATE}, 0")
e(f"v_lshlrev_b32 v2, 4, v1")
e(f"v_lshlrev_b32 v3, 4, v0")
e(f"s_mul_i32 s{sEOFF}, s2, {CH*4}")
e(f"s_sub_u32 s{sT0}, {E*4}, s{sEOFF}")
e(f"s_max_i32 s{sT0}, s{sT0}, 0")
e(f"s_min_u32 s{sT0}, s{sT0}, {CH*4}")
e(f"v_cmp_gt_u32 s[52:53], s{sT0}, v3")
for k in range(4): e(f"v_mov_b32 v{P+k}, 0")
e("s_waitcnt lgkmcnt(0)")
srd(28, 6, E*4); srd(36, 8, E*4)
D_=40; S_=44; EN_=48; BK=52; RK=56
e("s_mov_b64 exec, s[52:53]")
e("s_cbranch_execz P_noload")
e(f"buffer_load_dwordx4 {v(D_,4)}, v3, s[36:39], s{sEOFF} offen")
e(f"buffer_load_dwordx4 {v(S_,4)}, v3, s[28:31], s{sEOFF} offen")
e("P_noload:")
e("s_mov_b64 exec, -1")
srd(44, 18, 8192, GO_OFF)
e(f"s_lshl_b32 s3, s2, 4")
e(f"s_add_u32 s3, s3, s{sW}")
e(f"s_cmp_lg_u32 s3, 15")
e("s_cbranch_scc1 P_nors")
for k in range(8):
    e(f"s_movk_i32 s{sT0}, {k*1024}")
    e(f"buffer_store_dwordx4 {v(P,4)}, v2, s[44:47], s{sT0} offen sc1")
e("P_nors:")
e(f"ds_write_b128 v3, {v(P,4)} offset:{L_IMG}")
e(f"ds_write_b128 v3, {v(P,4)} offset:{L_IMG+16384}")
e(f"v_lshlrev_b32 v{TM+3}, 3, v1")
e(f"v_and_b32 v{TM}, 15, v1")
e(f"v_lshrrev_b32 v{TM+1}, 4, v1")
e(f"s_cmp_eq_u32 s{sW}, 0")
e("s_cbranch_scc0 G_i1")
e(f"v_add_u32 v{TM+4}, {L_HIST}, v{TM+3}")
e(f"ds_write_b64 v{TM+4}, {v(P,2)}")
e(f"v_add_u32 v{TM+4}, {L_CNT}, v2")
e(f"ds_write_b128 v{TM+4}, {v(P,4)}")
e(f"v_mov_b32 v{TM+4}, {L_CNT+1024}")
e(f"v_mov_b32 v{EN}, -1\nv_mov_b32 v{EN+1}, -1")
e(f"ds_write_b64 v{TM+4}, {v(EN,2)}")
e("G_i1:")
e(f"v_lshlrev_b32 v{TM+4}, 2, v{TM+1}")
e(f"v_sub_u32 v{TM+4}, v{TM}, v{TM+4}")
e(f"v_mov_b32 v{P+2}, 0x3f80\nv_mov_b32 v{P+3}, 0x3f800000")
for r,(d0,d1) in enumerate([(0,1),(2,3)]):
    e(f"v_cmp_eq_u32 vcc, {d0}, v{TM+4}")
    e(f"v_cmp_eq_u32 s[50:51], {d1}, v{TM+4}")
    e(f"v_mov_b32 v{MB+r}, {BIGP}")
    e(f"v_mov_b32 v{TM+5}, {BIGH}")
    e(f"v_cndmask_b32 v{P+r}, 0, v{P+2}, vcc")
    e(f"v_cndmask_b32 v{P+r}, v{P+r}, v{P+3}, s[50:51]")
    e(f"v_cndmask_b32 v{MB+r}, v{MB+r}, v{TM+5}, vcc")
    e(f"v_mov_b32 v{TM+5}, {BIGL}")
    e(f"v_cndmask_b32 v{MB+r}, v{MB+r}, v{TM+5}, s[50:51]")
e(f"s_cmp_eq_u32 s{sW}, 1")
e("s_cbranch_scc0 G_i2")
e(f"v_add_u32 v{TM+4}, {L_T}, v{TM+3}")
e(f"ds_write_b64 v{TM+4}, {v(P,2)}")
e("G_i2:")
srd(20, 4, N*128); srd(24, 18, SLOT_BYTES); srd(40, 18, G1*CH*4, OV_OFF); srd(32, 14, N*128)
e("s_waitcnt lgkmcnt(0)")
e("s_barrier")
stamp(1)
srd(28, 16, 256)
e(f"s_lshl_b32 s{sGO}, s2, 2")
e(f"s_cmp_lg_u32 s3, 15")
e("s_cbranch_scc1 P_nopub")
e(f"v_mov_b32 v104, 1")
e(f"v_mov_b32 v105, 0")
e("s_mov_b64 exec, 1")
e("s_waitcnt vmcnt(0)")
e(f"buffer_store_dword v104, v105, s[28:31], 0 offen sc1")
e("s_mov_b64 exec, -1")
e("P_nopub:")
e(f"s_cmp_ge_u32 s{sW}, 8")
e("s_cselect_b32 s36, s12, s10")
e("s_cselect_b32 s37, s13, s11")
e("s_mov_b32 s38, 8192\ns_mov_b32 s39, 0x00020000")
e(f"s_cselect_b32 s{sT0}, {L_WV}, 0")
e(f"s_and_b32 s{sT1}, s{sW}, 7")
e(f"s_lshl_b32 s{sT1}, s{sT1}, 10")
e(f"s_add_u32 m0, s{sT0}, s{sT1}")
e(f"v_lshlrev_b32 v{TM+3}, 4, v1")
e(f"buffer_load_dwordx4 v{TM+3}, s[36:39], s{sT1} offen lds")
e(f"s_lshl_b32 s{sNODE}, s2, 4")
e(f"s_add_u32 s{sNODE}, s{sNODE}, s{sW}")
e(f"s_mul_i32 s{sNODE}, s{sNODE}, {GS*128}")
def prefetch():
    srd(36, 4, PF0*128)
    e(f"s_lshr_b32 s{sT0}, s2, 3")
    e(f"s_lshl_b32 s{sT0}, s{sT0}, 17")
    e(f"v_lshlrev_b32 v{PFV}, 7, v0")
    e(f"buffer_load_dword v{PFV+1}, v{PFV}, s[36:39], s{sT0} offen")
NPF=0
if PF0 and PFPOS==0: prefetch(); NPF=1
e(f"v_mov_b32 v2, 1")
e(f"v_mov_b32 v{TM+5}, {L_CNT}")
e("s_mov_b64 exec, s[52:53]")
e("s_cbranch_execz P_copy")
e(f"s_waitcnt vmcnt(1)")
for k in range(4):
    entry(v(D_+k), v(S_+k), v(EN_+k), v(BK+k), v(TM+2), v(TM+3))
    e(f"v_lshrrev_b32 v{BK+k}, 4, v{BK+k}")
    e(f"v_lshl_add_u32 v{TM+2}, v{BK+k}, 2, v{TM+5}")
    e(f"ds_add_rtn_u32 v{RK+k}, v{TM+2}, v2")
for k in range(4):
    e(f"s_waitcnt lgkmcnt({3-k})")
    e(f"v_add_u32 v{TM+2}, v{RK+k}, v{BK+k}")
    e(f"v_and_b32 v{TM+2}, 31, v{TM+2}")
    e(f"v_lshlrev_b32 v{TM+2}, 2, v{TM+2}")
    e(f"v_lshl_or_b32 v{TM+2}, v{BK+k}, 7, v{TM+2}")
    e(f"v_cmp_gt_u32 vcc, 32, v{RK+k}")
    e(f"s_and_saveexec_b64 s[50:51], vcc")
    e(f"ds_write_b32 v{TM+2}, v{EN_+k} offset:{L_IMG}")
    e(f"s_mov_b64 exec, s[50:51]")
e(f"v_max3_u32 v{TM+2}, v{RK}, v{RK+1}, v{RK+2}")
e(f"v_max_u32 v{TM+2}, v{TM+2}, v{RK+3}")
e(f"v_cmp_lt_u32 vcc, 31, v{TM+2}")
e("s_cbranch_vccz P_copy")
for k in range(4):
    e(f"v_cmp_lt_u32 vcc, 31, v{RK+k}")
    e(f"s_and_saveexec_b64 s[50:51], vcc")
    e(f"s_cbranch_execz P_ov{k}")
    e(f"ds_add_rtn_u32 v{TM+2}, v{TM+5}, v2 offset:1020")
    e(f"v_lshl_or_b32 v{TM+3}, v{D_+k}, 16, v{S_+k}")
    e(f"s_waitcnt lgkmcnt(0)")
    e(f"v_lshlrev_b32 v{TM+2}, 2, v{TM+2}")
    e(f"v_cmp_gt_u32 vcc, 8, v{TM+2}")
    e(f"v_add_u32 v{TM+4}, v{TM+5}, v{TM+2}")
    e(f"s_and_saveexec_b64 s[48:49], vcc")
    e(f"ds_write_b32 v{TM+4}, v{TM+3} offset:1024")
    e(f"s_andn2_b64 exec, s[48:49], exec")
    e(f"s_cbranch_execz P_ov{k}")
    e(f"v_subrev_u32 v{TM+2}, 8, v{TM+2}")
    e(f"buffer_store_dword v{TM+3}, v{TM+2}, s[40:43], s{sEOFF} offen sc1")
    e(f"s_waitcnt vmcnt(0)")
    e(f"P_ov{k}:")
    e(f"s_mov_b64 exec, s[50:51]")
e("P_copy:")
e("s_mov_b64 exec, -1")
e(f"v_lshrrev_b32 v{TM+2}, 3, v0")
e(f"v_mul_u32_u24 v{TM+2}, {SLOTB}, v{TM+2}")
e(f"v_and_b32 v{TM+3}, 7, v0")
e(f"v_lshl_add_u32 v{TM+2}, v{TM+3}, 4, v{TM+2}")
e(f"s_lshl_b32 s{sT0}, s2, 7")
e(f"s_add_u32 s{sT1}, s{sT0}, {128*SLOTB}")
e(f"s_waitcnt lgkmcnt(0)")
e("s_barrier")
stamp(2)
e(f"s_cmp_ge_u32 s2, {G1}")
e("s_cbranch_scc1 P_nost")
e(f"s_cmp_lg_u32 s{sW}, 0")
e("s_cbranch_scc1 P_nord")
e("v_mov_b32 v111, 0")
e("buffer_load_dword v110, v111, s[28:31], 0 offen sc1")
e("P_nord:")
e(f"ds_read_b128 {v(40,4)}, v3 offset:{L_IMG}")
e(f"ds_read_b128 {v(44,4)}, v3 offset:{L_IMG+16384}")
e(f"ds_read_b32 v48, v{TM+5} offset:1020")
e(f"ds_read_b64 {v(50,2)}, v{TM+5} offset:1024")
e("s_waitcnt lgkmcnt(3)")
e(f"buffer_store_dwordx4 {v(40,4)}, v{TM+2}, s[24:27], s{sT0} offen sc1")
e("s_waitcnt lgkmcnt(2)")
e(f"buffer_store_dwordx4 {v(44,4)}, v{TM+2}, s[24:27], s{sT1} offen sc1")
e("v_cmp_eq_u32 vcc, 0, v0")
e("s_and_saveexec_b64 s[50:51], vcc")
e("s_cbranch_execz P_st2")
srd(36, 18, 0x20000, XO_OFF)
e(f"s_lshl_b32 s{sT0}, s2, 3")
e(f"s_lshl_b32 s{sT1}, s2, 2")
e(f"s_add_u32 s{sT1}, s{sT1}, {OC_OFF-XO_OFF}")
e("v_mov_b32 v49, 0")
e("s_waitcnt lgkmcnt(0)")
e("v_max_u32 v48, 2, v48")
e("v_subrev_u32 v48, 2, v48")
e(f"buffer_store_dwordx2 {v(50,2)}, v49, s[36:39], s{sT0} offen sc1")
e(f"buffer_store_dword v48, v49, s[36:39], s{sT1} offen sc1")
e("P_st2:")
e("s_mov_b64 exec, -1")
e("P_nost:")
e(f"s_lshl_b32 s{sBUFB}, s{sW}, 13")
e(f"v_lshlrev_b32 v{VQT}, 7, v{TM+1}")
e(f"v_add_u32 v{VQT}, {L_T}, v{VQT}")
e(f"v_and_b32 v{TM+4}, 7, v1")
e(f"v_lshlrev_b32 v{TM+5}, 1, v{TM+1}")
e(f"v_xor_b32 v{VLO}, v{TM+4}, v{TM+5}")
e(f"v_lshlrev_b32 v{VLO}, 4, v{VLO}")
e(f"v_and_b32 v{TM+4}, 6, v{TM}")
e(f"v_xor_b32 v{TM+4}, v{TM+4}, v{TM+1}")
e(f"v_lshlrev_b32 v{TM+4}, 4, v{TM+4}")
e(f"v_lshl_add_u32 v{AA}, v{TM}, 7, v{TM+4}")
e(f"v_add_u32 v{AA}, s{sBUFB}, v{AA}")
e(f"v_xor_b32 v{AA+1}, 64, v{AA}")
e(f"v_lshrrev_b32 v{TM+4}, 2, v1")
e(f"v_lshlrev_b32 v{TM+4}, 7, v{TM+4}")
e(f"v_and_b32 v{TM+5}, 3, v1")
e(f"v_lshl_add_u32 v{TM+4}, v{TM+5}, 3, v{TM+4}")
e(f"v_bfe_u32 v{TM+5}, v1, 3, 2")
e(f"v_lshl_add_u32 v{AT}, v{TM+5}, 5, v{TM+4}")
e(f"v_add_u32 v{AT}, s{sBUFB}, v{AT}")
for t in range(1,4): e(f"v_xor_b32 v{AT+t}, {t*32}, v{AT}")
e("s_waitcnt vmcnt(0)")
e("s_barrier")
stamp(3)
e(f"s_mov_b32 s3, 0x40000")
e(f"s_cmp_lg_u32 s{sW}, 0")
e("s_cbranch_scc1 P_wx")
e(f"s_cmp_ge_u32 s2, {G1}")
e("s_cbranch_scc1 P_wx")
e("s_mov_b64 exec, 1")
e(f"v_mov_b32 v{TM+4}, 0")
e(f"v_cmp_eq_u32 vcc, 1, v110")
e("s_cbranch_vccnz P_arr")
e("P_rpoll:")
e("s_sleep 8")
e(f"buffer_load_dword v{TM+5}, v{TM+4}, s[28:31], 0 offen sc1")
e(f"s_sub_u32 s3, s3, 1")
e("s_cbranch_scc1 P_arr")
e("s_waitcnt vmcnt(0)")
e(f"v_cmp_eq_u32 vcc, 1, v{TM+5}")
e("s_cbranch_vccz P_rpoll")
e("P_arr:")
e("s_mov_b64 exec, 0xff")
e(f"v_lshlrev_b32 v{TM+4}, 10, v1")
e(f"buffer_store_dword v2, v{TM+4}, s[44:47], s{sGO} offen sc1")
e("s_mov_b64 exec, -1")
e("P_wx:")
e(f"v_lshlrev_b32 v{TM+2}, 7, v{TM}")
e(f"v_lshl_add_u32 v{TM+2}, v{TM+1}, 4, v{TM+2}")
for k in range(8): e(f"v_mov_b32 v{72+k}, 0")
e(f"v_cmp_gt_u32 vcc, {GS}, v{TM}")
e("s_mov_b64 exec, vcc")
e(f"buffer_load_dwordx4 {v(72,4)}, v{TM+2}, s[20:23], s{sNODE} offen")
e(f"buffer_load_dwordx4 {v(76,4)}, v{TM+2}, s[20:23], s{sNODE} offen offset:64")
e("s_mov_b64 exec, -1")
def qblock():
    e("v_lshrrev_b32 v109, 4, v1")
    e(f"v_bfe_u32 v110, v1, 2, 2")
    e(f"v_lshl_add_u32 v110, v109, 3, v110")
    e(f"v_lshlrev_b32 v110, 7, v110")
    e(f"v_and_b32 v111, 3, v1")
    e(f"v_lshl_add_u32 v110, v111, 4, v110")
    WQ=[56,64,84,100]
    TM4=110
    for mt in range(4):
        for s in range(2):
            for h in range(2):
                e(f"ds_read_b64_tr_b16 {v(WQ[mt]+s*4+h*2,2)}, v110 offset:{s*4096+h*512+(mt//2)*64+(mt%2)*8}")
    for mt in range(4):
        e(f"s_waitcnt lgkmcnt({12-4*mt})")
        e(f"v_mfma_f32_16x16x32_bf16 {v(ACC+mt*4,4)}, {v(WQ[mt],4)}, {v(72,4)}, 0")
        e(f"v_mfma_f32_16x16x32_bf16 {v(ACC+mt*4,4)}, {v(WQ[mt]+4,4)}, {v(76,4)}, {v(ACC+mt*4,4)}")
    e("s_nop 7")
    if FOLD:
        for i in range(16): e(f"v_mul_f32 v{ACC+i}, s{sC}, v{ACC+i}")
    for mt in range(4):
        e(f"v_cvt_pk_bf16_f32 v{QB+mt*2}, v{ACC+mt*4}, v{ACC+mt*4+1}")
        e(f"v_cvt_pk_bf16_f32 v{QB+mt*2+1}, v{ACC+mt*4+2}, v{ACC+mt*4+3}")
    for i in range(16): e(f"v_mov_b32 v{ACC+i}, 0")
if ORDER==2:
    e("s_waitcnt vmcnt(0)")
    qblock()
e(f"s_mov_b32 s{sT1}, 0x40000")
e(f"s_cmp_lg_u32 s{sW}, 0")
e("s_cbranch_scc1 P_nopoll")
e(f"v_lshlrev_b32 v{TM+4}, 4, v1")
e(f"s_lshr_b32 s{sT0}, s2, {RSH}")
e(f"s_and_b32 s{sT0}, s{sT0}, 7")
e(f"s_lshl_b32 s{sT0}, s{sT0}, 10")
e(f"v_cmp_le_u32 s[48:49], {G1//4}, v1")
e("P_poll:")
e(f"buffer_load_dwordx4 v[40:43], v{TM+4}, s[44:47], s{sT0} offen sc1")
e(f"s_sub_u32 s{sT1}, s{sT1}, 1")
e("s_cbranch_scc1 P_pdone")
e("s_waitcnt vmcnt(0)")
e("v_and_b32 v40, v40, v41")
e("v_and_b32 v42, v42, v43")
e("v_and_b32 v40, v40, v42")
e("v_cmp_eq_u32 vcc, 1, v40")
e("s_or_b64 vcc, vcc, s[48:49]")
e("s_cmp_eq_u64 vcc, -1")
e("s_cbranch_scc1 P_pdone")
if SLEEP: e(f"s_sleep {SLEEP}")
e("s_branch P_poll")
e("P_pdone:")
e("s_mov_b64 exec, -1")
e("P_nopoll:")
NPF2=0
if PF0 and PFPOS==1: prefetch(); NPF2=1
srd(36, 18, 0x20000, XO_OFF)
e(f"s_mul_i32 s{sT0}, s2, {SLOTB}")
e(f"s_add_u32 s{sT1}, s{sT0}, 16384")
e("s_waitcnt vmcnt(0)")
e("s_barrier")
delay("b")
stamp(4)
e(f"buffer_load_dwordx4 {v(Ee,4)}, v3, s[24:27], s{sT0} offen sc1")
e(f"s_cmp_ge_u32 s{sW}, 14")
e("s_cbranch_scc1 G_xo")
e(f"buffer_load_dwordx4 {v(Ee+4,4)}, v3, s[24:27], s{sT1} offen sc1")
e("s_branch G_q")
e("G_xo:")
e(f"v_subrev_u32 v{TM}, {896*16}, v3")
e(f"buffer_load_dwordx4 {v(Rr,4)}, v{TM}, s[36:39], 0 offen sc1")
e("G_q:")
if ORDER==1: qblock()
e(f"v_mov_b32 v3, {L_HIST}")
e(f"s_cmp_lt_u32 s{sW}, 14")
e("s_waitcnt vmcnt(0)")
e("s_cbranch_scc1 G_batch")
e(f"s_movk_i32 s{sT1}, {G1*2}")
e(f"v_lshrrev_b32 v{TM}, 2, v{TM}")
for k in range(4): rawconv(v(Rr+k), v(Ee+4+k), sT1, v(TM), k)
e("G_batch:")
for k in range(8):
    e(f"v_cmp_gt_i32 s[{52+2*k}:{53+2*k}], 0, v{Ee+k}")
    e(f"v_lshrrev_b32 v{Bb+k}, 22, v{Ee+k}")
    e(f"v_and_or_b32 v{Bb+k}, v{Bb+k}, s{sM1FC}, v3")
for k in range(8):
    e(f"s_mov_b64 exec, s[{52+2*k}:{53+2*k}]")
    e(f"ds_add_rtn_u32 v{Rr+k}, v{Bb+k}, v2")
e("s_mov_b64 exec, -1")
e(f"v_lshl_add_u32 v{TM}, v1, 3, v3")
e(f"s_or_b32 s{sT0}, s{sSTATE}, s{sW}")
e("s_cbranch_scc1 G_nooc")
e(f"v_lshlrev_b32 v{TM+1}, 4, v1")
e(f"s_mov_b32 s{sT0}, {OC_OFF-XO_OFF}")
e(f"buffer_load_dwordx4 {v(OC4,4)}, v{TM+1}, s[36:39], s{sT0} offen sc1")
if PF0 and PFPOS==2:
    srd(28, 4, PF0*128)
    e(f"s_lshr_b32 s{sT0}, s2, 3")
    e(f"s_lshl_b32 s{sT0}, s{sT0}, 17")
    e(f"v_lshlrev_b32 v{PFV}, 7, v0")
    e(f"buffer_load_dword v{PFV+1}, v{PFV}, s[28:31], s{sT0} offen")
e("G_nooc:")
e(f"s_waitcnt lgkmcnt(0)")
e("s_barrier")
stamp(5)
c0,c1,s_,tot,vv,inc = P,P+1,P+2,P+3,TM+1,TM+2
e(f"ds_read_b64 {v(c0,2)}, v{TM}")
e(f"v_and_b32 v{TM+3}, 3, v1")
e(f"v_cmp_eq_u32 vcc, 3, v{TM+3}")
e("s_waitcnt lgkmcnt(0)")
e(f"v_add_u32 v{s_}, v{c0}, v{c1}")
e("s_nop 1")
e(f"v_add_u32_dpp v{tot}, v{s_}, v{s_} quad_perm:[1,0,3,2] row_mask:0xf bank_mask:0xf")
e("s_nop 1")
e(f"v_add_u32_dpp v{tot}, v{tot}, v{tot} quad_perm:[2,3,0,1] row_mask:0xf bank_mask:0xf")
e(f"v_sub_u32 v{TM+3}, 0, v{tot}")
e(f"v_and_b32 v{TM+3}, 31, v{TM+3}")
e(f"v_cndmask_b32 v{TM+3}, 0, v{TM+3}, vcc")
e(f"v_add_u32 v{vv}, v{s_}, v{TM+3}")
e(f"v_mov_b32 v{inc}, v{vv}")
for sh in (1,2,4,8):
    e("s_nop 1")
    e(f"v_add_u32_dpp v{inc}, v{inc}, v{inc} row_shr:{sh} row_mask:0xf bank_mask:0xf bound_ctrl:0")
e("s_nop 1")
e(f"v_add_u32_dpp v{inc}, v{inc}, v{inc} row_bcast:15 row_mask:0xa bank_mask:0xf")
e("s_nop 1")
e(f"v_add_u32_dpp v{inc}, v{inc}, v{inc} row_bcast:31 row_mask:0xc bank_mask:0xf")
e(f"s_lshl_b32 s{sT1}, s{sW}, 2")
e(f"v_sub_u32 v{vv}, v{inc}, v{vv}")
e(f"v_readlane_b32 s{sT0}, v{inc}, 63")
e(f"v_readlane_b32 s{sCNT}, v{tot}, s{sT1}")
e(f"v_readlane_b32 s{sST}, v{vv}, s{sT1}")
e(f"v_add_u32 v{c1}, v{vv}, v{c0}")
e(f"v_mov_b32 v{TM+3}, {L_LIST}")
e(f"v_lshl_add_u32 v{c0}, v{vv}, 2, v{TM+3}")
e(f"v_lshl_add_u32 v{c1}, v{c1}, 2, v{TM+3}")
e(f"s_cmp_gt_u32 s{sT0}, {CAP-32}")
e("s_cbranch_scc1 G_split")
e(f"ds_write_b64 v{TM}, {v(c0,2)} offset:512")
e(f"s_add_u32 s{sT0}, s{sST}, s{sCNT}")
e(f"s_add_u32 s{sREM}, s{sCNT}, 31")
e(f"s_lshr_b32 s{sREM}, s{sREM}, 5")
e(f"s_lshl_b32 s{sT1}, s{sREM}, 5")
e(f"s_sub_u32 s{sT1}, s{sT1}, s{sCNT}")
e(f"v_add_u32 v{TM+4}, s{sT0}, v1")
e(f"v_lshl_add_u32 v{TM+4}, v{TM+4}, 2, v{TM+3}")
e(f"v_mov_b32 v{TM+5}, {0x7ffff8 if OOBPAD else 0x78}")
e(f"v_cmp_gt_u32 vcc, s{sT1}, v1")
e("s_and_saveexec_b64 s[84:85], vcc")
e(f"ds_write_b32 v{TM+4}, v{TM+5}")
e("s_mov_b64 exec, -1")
e("s_waitcnt lgkmcnt(0)")
for k in range(8): e(f"ds_read_b32 v{Aa+k}, v{Bb+k} offset:512")
e(f"s_lshl_b32 s{sT0}, s{sST}, 2")
e(f"s_add_u32 s{sT0}, s{sT0}, {L_LIST}")
e(f"v_lshrrev_b32 v{VEN}, 3, v1")
e(f"v_lshlrev_b32 v{VEN}, 4, v{VEN}")
e(f"v_add_u32 v{VEN}, s{sT0}, v{VEN}")
e(f"v_and_b32 v{VED}, 7, v1")
e(f"v_bfe_u32 v{TM+4}, v1, 3, 1")
e(f"v_lshl_add_u32 v{VED}, v{VED}, 2, v{TM+4}")
e(f"v_lshlrev_b32 v{VED}, 2, v{VED}")
e(f"v_add_u32 v{VED}, s{sT0}, v{VED}")
for k in range(8):
    e(f"s_waitcnt lgkmcnt({7-k})")
    e(f"v_lshl_add_u32 v{Aa+k}, v{Rr+k}, 2, v{Aa+k}")
for k in range(8):
    e(f"s_mov_b64 exec, s[{52+2*k}:{53+2*k}]")
    e(f"ds_write_b32 v{Aa+k}, v{Ee+k}")
e("s_mov_b64 exec, -1")
e(f"s_cmp_lg_u32 s{sW}, 0")
e("s_cbranch_scc1 G_nofl")
e(f"s_cmp_eq_u32 s{sSTATE}, 3")
e("s_cbranch_scc1 G_nofl")
e(f"v_cmp_gt_u32 s[84:85], {G1//4}, v1")
e("s_waitcnt vmcnt(0)")
e(f"v_or_b32 v{TM+4}, v{OC4}, v{OC4+1}")
e(f"v_or3_b32 v{TM+4}, v{TM+4}, v{OC4+2}, v{OC4+3}")
e(f"v_cmp_ne_u32 vcc, 0, v{TM+4}")
e("s_and_b64 vcc, vcc, s[84:85]")
e("s_or_b32 vcc_lo, vcc_lo, vcc_hi")
e(f"v_mov_b32 v{TM+4}, {L_FLG}")
e(f"v_mov_b32 v{TM+5}, vcc_lo")
e(f"ds_write_b32 v{TM+4}, v{TM+5}")
e("G_nofl:")
e("s_waitcnt lgkmcnt(0)")
e("s_barrier")
stamp(6)
def dma(buf, en):
    e(f"s_add_u32 m0, s{sBUFB}, {buf*4096}")
    for i in range(4):
        e(f"v_and_or_b32 v{TM+i}, v{en+i}, s{sMSRC}, v{VLO}")
        e(f"buffer_load_dwordx4 v{TM+i}, s[20:23], 0 offen {GF} lds")
        if i<3: e("s_add_u32 m0, m0, 1024")
e(f"s_cmp_eq_u32 s{sREM}, 0")
e("s_cbranch_scc1 G_next")
if PRIO: e("s_setprio 3")
e(f"ds_read_b128 {v(EN,4)}, v{VEN}")
e(f"ds_read_b128 {v(P,4)}, v{VEN} offset:128")
e(f"ds_read2_b32 {v(ED,2)}, v{VED} offset0:0 offset1:2")
e("s_waitcnt lgkmcnt(2)")
dma(0,EN)
e(f"s_cmp_lt_u32 s{sREM}, 2")
e("s_waitcnt lgkmcnt(0)")
e("s_cbranch_scc1 G_loop")
dma(1,P)
e("G_loop:")
def tile(buf):
    L=f"G_t{buf}"
    if PRIO:
        for j,(th,p) in enumerate(((5,2),(3,1),(1,0)) if PRIO==1 else ((6,2),(4,1),(2,0))):
            e(f"s_cmp_lg_u32 s{sREM}, {th}")
            e(f"s_cbranch_scc1 {L}p{j}")
            e(f"s_setprio {p}")
            e(f"{L}p{j}:")
    e(f"v_and_or_b32 v{TM+4}, v{ED}, s{sM78}, v{VQT}")
    e(f"v_and_or_b32 v{TM+5}, v{ED+1}, s{sM78}, v{VQT}")
    e(f"ds_read_b64 {v(OH,2)}, v{TM+4}")
    e(f"ds_read_b64 {v(OH+2,2)}, v{TM+5}")
    e(f"ds_read_b128 {v(EN,4)}, v{VEN} offset:{256+buf*128}")
    e(f"ds_read2_b32 {v(ED,2)}, v{VED} offset0:{32+buf*32} offset1:{34+buf*32}")
    e(f"s_cmp_lg_u32 s{sREM}, 1")
    e("s_waitcnt lgkmcnt(2)")
    e(f"v_mfma_f32_16x16x16_bf16 {v(LG,4)}, {v(OH,2)}, {v(MB,2)}, 0")
    e(f"v_mfma_f32_16x16x16_bf16 {v(LG+4,4)}, {v(OH+2,2)}, {v(MB,2)}, 0")
    e("s_waitcnt vmcnt(4)")
    e(f"s_cbranch_scc1 {L}a")
    e("s_waitcnt vmcnt(0)")
    e(f"{L}a:")
    for T in range(2):
        for s in range(2):
            e(f"ds_read_b128 {v(XA+T*8+s*4,4)}, v{AA+s} offset:{buf*4096+T*2048}")
    for t in range(4):
        for h in range(2):
            e(f"ds_read_b64_tr_b16 {v(XT+t*4+h*2,2)}, v{AT+t} offset:{buf*4096+h*2048}")
    e("s_waitcnt lgkmcnt(11)")
    e(f"v_mfma_f32_16x16x32_bf16 {v(LG,4)}, {v(XA,4)}, {v(QB,4)}, {v(LG,4)}")
    e("s_waitcnt lgkmcnt(10)")
    e(f"v_mfma_f32_16x16x32_bf16 {v(LG,4)}, {v(XA+4,4)}, {v(QB+4,4)}, {v(LG,4)}")
    e("s_waitcnt lgkmcnt(9)")
    e(f"v_mfma_f32_16x16x32_bf16 {v(LG+4,4)}, {v(XA+8,4)}, {v(QB,4)}, {v(LG+4,4)}")
    e("s_waitcnt lgkmcnt(8)")
    e(f"v_mfma_f32_16x16x32_bf16 {v(LG+4,4)}, {v(XA+12,4)}, {v(QB+4,4)}, {v(LG+4,4)}")
    e(f"s_cmp_lt_u32 s{sREM}, 3")
    e("s_waitcnt lgkmcnt(0)")
    e(f"s_cbranch_scc1 {L}b")
    dma(buf,EN)
    e(f"{L}b:")
    e("s_nop 5")
    if not FOLD:
      for i in range(8): e(f"v_mul_f32 v{LG+i}, s{sC}, v{LG+i}")
    else: e("s_nop 3")
    if not EXP&2:
      for i in range(8): e(f"v_exp_f32 v{LG+i}, v{LG+i}")
      for i in range(8): e(f"v_add_f32 v{LG+i}, 1.0, v{LG+i}")
      for i in range(8): e(f"v_rcp_f32 v{LG+i}, v{LG+i}")
    if buf==1:
        e(f"v_add_u32 v{VEN}, 256, v{VEN}")
        e(f"v_add_u32 v{VED}, 256, v{VED}")
    else: e("s_nop 0")
    for i in range(4): e(f"v_cvt_pk_bf16_f32 v{P+i}, v{LG+2*i}, v{LG+2*i+1}")
    e(f"s_sub_u32 s{sREM}, s{sREM}, 1")
    e(f"s_cmp_eq_u32 s{sREM}, 0")
    for t in range(4):
        e(f"v_mfma_f32_16x16x32_bf16 {v(ACC+t*4,4)}, {v(XT+t*4,4)}, {v(P,4)}, {v(ACC+t*4,4)}")
tile(0)
e("s_cbranch_scc1 G_next")
tile(1)
e("s_cbranch_scc0 G_loop")
e("G_next:")
stamp(7)
e(f"s_cmp_eq_u32 s{sSTATE}, 1")
e("s_cbranch_scc1 G_half2")
e(f"s_cmp_eq_u32 s{sSTATE}, 3")
e("s_cbranch_scc1 G_have")
e(f"v_mov_b32 v{TM+4}, {L_FLG}")
e(f"ds_read_b32 v{TM+5}, v{TM+4}")
e("s_waitcnt lgkmcnt(0)")
e(f"v_cmp_ne_u32 vcc, 0, v{TM+5}")
e("s_cbranch_vccz G_epi")
e(f"s_mov_b32 s{sSTATE}, 3")
e(f"v_lshlrev_b32 v{TM+1}, 4, v1")
e(f"s_mov_b32 s{sT0}, {OC_OFF-XO_OFF}")
e(f"buffer_load_dwordx4 {v(OC4,4)}, v{TM+1}, s[36:39], s{sT0} offen sc1")
e(f"v_cmp_gt_u32 s[84:85], {G1//4}, v1")
e("s_waitcnt vmcnt(0)")
for k in range(4): e(f"v_cmp_ne_u32 s[{44+2*k}:{45+2*k}], 0, v{OC4+k}")
for k in range(4): e(f"s_and_b64 s[{44+2*k}:{45+2*k}], s[{44+2*k}:{45+2*k}], s[84:85]")
e("G_have:")
for k in range(4):
    e(f"s_ff1_i32_b64 s{sOW}, s[{44+2*k}:{45+2*k}]")
    e(f"s_cmp_lg_i32 s{sOW}, -1")
    e(f"s_cbranch_scc1 G_f{k}")
e("s_branch G_epi")
for k in range(4):
    e(f"G_f{k}:")
    e(f"s_bitset0_b64 s[{44+2*k}:{45+2*k}], s{sOW}")
    e(f"v_readlane_b32 s{sOW+4}, v{OC4+k}, s{sOW}")
    e(f"s_lshl_b32 s{sOW}, s{sOW}, 2")
    e(f"s_add_u32 s{sOW}, s{sOW}, {k}")
    e("s_branch G_ovl")
e("G_ovl:")
e(f"s_mul_i32 s{sT0}, s{sOW}, {CH*4}")
e(f"v_lshlrev_b32 v{TM}, 4, v0")
e(f"buffer_load_dwordx4 {v(Rr,4)}, v{TM}, s[40:43], s{sT0} offen sc1")
e(f"v_lshlrev_b32 v{TM}, 2, v0")
e("s_waitcnt vmcnt(0)")
for k in range(4): rawconv(v(Rr+k), v(Ee+k), sOW+4, v(TM), k)
for k in range(4): e(f"v_mov_b32 v{Ee+4+k}, 0")
e("s_branch G_again")
e("G_half2:")
for k in range(4):
    e(f"v_mov_b32 v{Ee+k}, v{SV+k}")
    e(f"v_mov_b32 v{Ee+4+k}, 0")
e(f"s_mov_b32 s{sSTATE}, 2")
e("s_branch G_again")
e("G_split:")
for k in range(4):
    e(f"v_mov_b32 v{SV+k}, v{Ee+4+k}")
    e(f"v_mov_b32 v{Ee+4+k}, 0")
e(f"s_mov_b32 s{sSTATE}, 1")
e("G_again:")
e("s_waitcnt lgkmcnt(0)")
e("s_barrier")
e(f"v_mov_b32 v{P}, 0\nv_mov_b32 v{P+1}, 0")
e(f"v_lshl_add_u32 v{TM}, v1, 3, v3")
e(f"ds_write_b64 v{TM}, {v(P,2)}")
e("s_waitcnt lgkmcnt(0)")
e("s_barrier")
e("s_branch G_batch")
e("G_epi:")
WV=40; BH=72; BL=80; DO=88
e(f"v_lshrrev_b32 v{DO}, 2, v1")
e(f"v_lshlrev_b32 v{DO}, 7, v{DO}")
e(f"v_and_b32 v{DO+1}, 3, v1")
e(f"v_lshl_add_u32 v{DO}, v{DO+1}, 5, v{DO}")
e(f"v_add_u32 v{DO}, {L_WV}, v{DO}")
for mt in range(4):
    for u in range(4):
        e(f"ds_read_b64_tr_b16 {v(WV+mt*8+u*2,2)}, v{DO} offset:{u*2048+mt*8}")
for i in range(8):
    e(f"v_cvt_pk_bf16_f32 v{BH+i}, v{ACC+2*i}, v{ACC+2*i+1}")
    e(f"v_lshlrev_b32 v{QB}, 16, v{BH+i}")
    e(f"v_and_b32 v{QB+1}, 0xffff0000, v{BH+i}")
    e(f"v_sub_f32 v{QB}, v{ACC+2*i}, v{QB}")
    e(f"v_sub_f32 v{QB+1}, v{ACC+2*i+1}, v{QB+1}")
    e(f"v_cvt_pk_bf16_f32 v{BL+i}, v{QB}, v{QB+1}")
e(f"v_and_b32 v{QB+2}, 15, v1")
e(f"v_lshrrev_b32 v{QB+3}, 4, v1")
e(f"v_lshlrev_b32 v{QB+4}, 7, v{QB+2}")
e(f"v_lshl_add_u32 v{QB+4}, v{QB+3}, 5, v{QB+4}")
e(f"v_cmp_gt_u32 vcc, {GS}, v{QB+2}")
e("s_waitcnt lgkmcnt(0)")
for B,h,z in ((BL,0,1),(BL+4,4,0),(BH,0,0),(BH+4,4,0)):
    for mt in range(4):
        e(f"v_mfma_f32_16x16x32_bf16 {v(DO+mt*4,4)}, {v(WV+mt*8+h,4)}, {v(B,4)}, {'0' if z else v(DO+mt*4,4)}")
e("s_nop 7")
for i in range(8): e(f"v_cvt_pk_bf16_f32 v{ACC+i}, v{DO+2*i}, v{DO+2*i+1}")
e("s_and_saveexec_b64 s[84:85], vcc")
e(f"buffer_store_dwordx4 {v(ACC,4)}, v{QB+4}, s[32:35], s{sNODE} offen {OST}")
e(f"buffer_store_dwordx4 {v(ACC+4,4)}, v{QB+4}, s[32:35], s{sNODE} offen offset:16 {OST}")
delay("c")
abs_end()
stamp_out()
e("G_end:")
e("s_endpgm")
e('.section .rodata,"a"')
e(f""".p2align 6
.amdhsa_kernel {KN}
  .amdhsa_next_free_vgpr 112
  .amdhsa_next_free_sgpr 100
  .amdhsa_accum_offset 112
  .amdhsa_group_segment_fixed_size 0
  .amdhsa_kernarg_size 64
  .amdhsa_user_sgpr_count 2
  .amdhsa_user_sgpr_kernarg_segment_ptr 1
  .amdhsa_system_sgpr_workgroup_id_x 1
.end_amdhsa_kernel""")
dst = sys.argv[1] if len(sys.argv)>1 else 'gather_scatter__kernel_systems_refs_featgraph__graph.s'
open(dst,'w').write('\n'.join(out)+'\n')
```

```python
import sys, os
N=50000; E=800000
G1=240; CH=3336
GS=13; NB=241
SLOTB=G1*128; SLOT_BYTES=NB*SLOTB
GO_OFF=0x7d0000; ARR=0x8000
XO_OFF=0x7f0000
OC_OFF=0x800000
OV_OFF=0x810000
L_LIST=131072; CAP=5760
L_HIST=L_LIST+CAP*4; L_BASE=L_HIST+512; L_T=L_BASE+512; L_WV=L_T+512
L_FLG=L_HIST-4
L_IMG=32768; L_CNT=65536
assert L_HIST%512==0 and L_T%128==0 and L_WV+8192==163840
STAMP=int(os.environ.get('STAMP','0')); ST_OFF=0x1000000
PF0=int(os.environ.get('PF0','0')); PFPOS=int(os.environ.get('PFPOS','0'))
OOBPAD=int(os.environ.get('OOBPAD','0')); PRIO=int(os.environ.get('PRIO','0'))
EXP=int(os.environ.get('EXP','0'))
CPF=int(os.environ.get('CPF','0'))
DLY=os.environ.get('DLY','')
FOLD=int(os.environ.get('FOLD','0')); MP=int(os.environ.get('MP','1'))
ORDER=int(os.environ.get('ORDER','1'))
OST=os.environ.get('OST','')
GF=os.environ.get('GF','')
RSH=int(os.environ.get('RSH','0'))
SLEEP=int(os.environ.get('SLEEP','4'))
KN="gather_scatter__kernel_systems_refs_featgraph__graph_kernel"
out=[]
def e(s): out.append(s)
def v(i,n=1): return f"v{i}" if n==1 else f"v[{i}:{i+n-1}]"
def stamp(k):
    if not STAMP: return
    e("s_memrealtime s[96:97]")
    e("s_waitcnt lgkmcnt(0)")
    if k==0:
        for j in range(1,8): e(f"s_mov_b32 s{88+j}, 0")
        e(f"s_mov_b32 s{88+k}, s96")
    else:
        e(f"s_cmp_eq_u32 s{88+k}, 0")
        e(f"s_cselect_b32 s{88+k}, s96, s{88+k}")
def delay(tag):
    if tag not in DLY: return
    e("s_memrealtime s[96:97]")
    e("s_waitcnt lgkmcnt(0)")
    e("s_add_u32 s98, s96, 500")
    e(f"D_{tag}:")
    e("s_sleep 2")
    e("s_memrealtime s[96:97]")
    e("s_waitcnt lgkmcnt(0)")
    e("s_sub_u32 s99, s96, s98")
    e("s_cmp_lt_i32 s99, 0")
    e(f"s_cbranch_scc1 D_{tag}")
def abs_start():
    if 'z' not in DLY: return
    e("s_memrealtime s[96:97]")
    e("s_waitcnt lgkmcnt(0)")
    e("s_add_u32 s98, s96, 4000")
def abs_end():
    if 'z' not in DLY: return
    e("D_z:")
    e("s_sleep 2")
    e("s_memrealtime s[96:97]")
    e("s_waitcnt lgkmcnt(0)")
    e("s_sub_u32 s99, s96, s98")
    e("s_cmp_lt_i32 s99, 0")
    e(f"s_cbranch_scc1 D_z")
def stamp_out():
    if not STAMP: return
    if STAMP==3:
        e("s_waitcnt vmcnt(0)")
        e("s_memrealtime s[96:97]")
        e("s_mov_b64 exec, 1")
        srd(28, 16, 256)
        e("v_mov_b32 v2, 0")
        e(f"s_lshl_b32 s3, s2, 4")
        e(f"s_add_u32 s3, s3, s{sW}")
        for k in range(8): e(f"v_mov_b32 v{4+k}, s{88+k}")
        e("s_waitcnt lgkmcnt(0)")
        e("v_mov_b32 v12, s96")
        e(f"s_cmp_eq_u32 s3, {100*16+15}")
        e("s_cbranch_scc0 S_a")
        e("buffer_store_dwordx4 v[4:7], v2, s[28:31], 0 offen offset:8")
        e("buffer_store_dwordx4 v[8:11], v2, s[28:31], 0 offen offset:24")
        e("buffer_store_dword v12, v2, s[28:31], 0 offen offset:40")
        e("S_a:")
        e(f"s_cmp_eq_u32 s3, {240*16}")
        e("s_cbranch_scc0 S_b")
        e("buffer_store_dwordx2 v[7:8], v2, s[28:31], 0 offen offset:44" if 0 else "v_mov_b32 v14, v7\nv_mov_b32 v15, v8\nbuffer_store_dwordx2 v[14:15], v2, s[28:31], 0 offen offset:44")
        e("S_b:")
        e(f"s_cmp_eq_u32 s3, {37*16+0}")
        e("s_cbranch_scc0 S_c")
        e("v_mov_b32 v14, v4\nv_mov_b32 v15, v11\nv_mov_b32 v16, v12\nbuffer_store_dwordx3 v[14:16], v2, s[28:31], 0 offen offset:52")
        e("S_c:")
        return
    if STAMP==2:
        e("s_waitcnt vmcnt(0)")
        e("s_memrealtime s[96:97]")
        e("s_mov_b64 exec, 1")
        srd(28, 16, 256)
        e("v_mov_b32 v2, 0")
        e("s_not_b32 s3, s88")
        e("v_mov_b32 v3, s3")
        e("buffer_atomic_umax v3, v2, s[28:31], 0 offen offset:8")
        e("s_not_b32 s3, s92")
        e("v_mov_b32 v12, s3")
        e("buffer_atomic_umax v12, v2, s[28:31], 0 offen offset:12")
        for k in range(8):
            e(f"v_mov_b32 v{4+k}, s{88+k}")
            e(f"buffer_atomic_umax v{4+k}, v2, s[28:31], 0 offen offset:{16+4*k}")
        e("s_waitcnt lgkmcnt(0)")
        e("v_mov_b32 v13, s96")
        e("buffer_atomic_umax v13, v2, s[28:31], 0 offen offset:48")
        return
    e("s_mov_b64 exec, 1")
    e(f"s_add_u32 s96, s18, {ST_OFF}")
    e("s_addc_u32 s97, s19, 0")
    e("s_mov_b32 s98, 0x100000\ns_mov_b32 s99, 0x00020000")
    e("v_lshrrev_b32 v2, 6, v0")
    e("s_lshl_b32 s3, s2, 4")
    e("v_add_u32 v2, s3, v2")
    e("v_lshlrev_b32 v2, 5, v2")
    for k in range(8): e(f"v_mov_b32 v{4+k}, s{88+k}")
    e("buffer_store_dwordx4 v[4:7], v2, s[96:99], 0 offen")
    e("buffer_store_dwordx4 v[8:11], v2, s[96:99], 0 offen offset:16")
def srd(d, lo, size, off=0):
    if off:
        e(f"s_add_u32 s{d}, s{lo}, {off}"); e(f"s_addc_u32 s{d+1}, s{lo+1}, 0")
    else:
        e(f"s_mov_b32 s{d}, s{lo}"); e(f"s_mov_b32 s{d+1}, s{lo+1}")
    e(f"s_mov_b32 s{d+2}, {size}"); e(f"s_mov_b32 s{d+3}, 0x00020000")
def entry(dst, src, ent, gg, t1, t2):
    e(f"v_mul_u32_u24 {gg}, 40330, {dst}")
    e(f"v_lshrrev_b32 {gg}, 19, {gg}")
    e(f"v_mad_i32_i24 {t1}, {gg}, -13, {dst}")
    e(f"v_lshl_or_b32 {ent}, {src}, 7, s{sSIGN}")
    e(f"v_lshl_or_b32 {ent}, {t1}, 3, {ent}")
    e(f"v_lshrrev_b32 {t1}, 13, {src}")
    e(f"v_and_b32 {t2}, 15, {gg}")
    e(f"v_lshl_or_b32 {t1}, {t2}, 3, {t1}")
    e(f"v_lshl_or_b32 {ent}, {t1}, 24, {ent}")
def rawconv(raw, ent, cnt_s=None, idx=None, k=0):
    e(f"v_lshrrev_b32 v{TM+1}, 16, {raw}")
    e(f"v_and_b32 v{TM+2}, 0xffff, {raw}")
    entry(f"v{TM+1}", f"v{TM+2}", ent, f"v{TM+3}", f"v{TM+4}", f"v{TM+5}")
    e(f"v_lshrrev_b32 v{TM+3}, 4, v{TM+3}")
    e(f"v_cmp_eq_u32 vcc, s2, v{TM+3}")
    if cnt_s is not None:
        e(f"v_add_u32 v{TM+4}, {k}, {idx}")
        e(f"v_cmp_gt_u32 s[84:85], s{cnt_s}, v{TM+4}")
        e("s_and_b64 vcc, vcc, s[84:85]")
    e("s_nop 1")
    e(f"v_cndmask_b32 {ent}, 0, {ent}, vcc")

for l in open('gather_scatter__kernel_systems_refs_featgraph__graph.s.ref').read().split('\n'):
    if l.startswith('; @launch'): continue
    if l.startswith(';'): e(l)
    else: break
e(f"; @launch grid=({NB},1,1) block=(1024,1,1) lds=163840")
e('.amdgcn_target "amdgcn-amd-amdhsa--gfx950"\n.text')
BG=0x7000 if FOLD else 0xf000
BIGP=BG*0x10001; BIGH=BG<<16; BIGL=BG
ACC=4; QB=20; MB=28; AT=30; AA=34; VLO=36; VQT=37; VEN=38; VED=39
XA=40; XT=56; OH=72; LG=76; P=84; EN=88; ED=92; TM=94; SV=100; OC4=104; PFV=108
Ee=40; Rr=48; Bb=56; Aa=64
sW=68; sST=69; sCNT=70; sREM=71; sSTATE=72; sMSRC=73; sM78=74; sC=75; sT0=76; sT1=77; sBUFB=78; sSIGN=79; sM1FC=80; sNODE=81; sOW=82; sEOFF=83; sGO=87
e(f".globl {KN}\n.p2align 8\n.type {KN},@function\n{KN}:")
e(f"s_cmp_ge_u32 s2, {NB}")
e("s_cbranch_scc1 G_end")
if CPF:
    e("s_getpc_b64 s[4:5]")
    e("v_lshlrev_b32 v1, 6, v0")
    e(f"v_min_u32 v1, G_end-{KN}-16, v1")
    e("v_cmp_gt_u32 vcc, 0x80, v0")
    e("s_and_saveexec_b64 s[6:7], vcc")
    e("s_cbranch_execz G_nocpf")
    e("global_load_dword v110, v1, s[4:5]")
    e("G_nocpf:")
    e("s_mov_b64 exec, -1")
delay("a")
abs_start()
stamp(0)
e("s_load_dwordx16 s[4:19], s[0:1], 0")
e("v_lshrrev_b32 v2, 6, v0")
e("v_and_b32 v1, 63, v0")
e(f"v_readfirstlane_b32 s{sW}, v2")
e(f"s_mov_b32 s{sMSRC}, {0x1ff80 if EXP&1 else 0x7fff80}")
e(f"s_movk_i32 s{sM78}, 0x78")
e(f"s_mov_b32 s{sC}, 0xbe38aa3b")
e(f"s_mov_b32 s{sSIGN}, 0x80000000")
e(f"s_movk_i32 s{sM1FC}, 0x1fc")
e(f"s_mov_b32 s{sSTATE}, 0")
e(f"v_lshlrev_b32 v2, 4, v1")
e(f"v_lshlrev_b32 v3, 4, v0")
e(f"s_mul_i32 s{sEOFF}, s2, {CH*4}")
e(f"s_sub_u32 s{sT0}, {E*4}, s{sEOFF}")
e(f"s_max_i32 s{sT0}, s{sT0}, 0")
e(f"s_min_u32 s{sT0}, s{sT0}, {CH*4}")
e(f"v_cmp_gt_u32 s[52:53], s{sT0}, v3")
for k in range(4): e(f"v_mov_b32 v{P+k}, 0")
e("s_waitcnt lgkmcnt(0)")
srd(28, 6, E*4); srd(36, 8, E*4)
D_=40; S_=44; EN_=48; BK=52; RK=56
e("s_mov_b64 exec, s[52:53]")
e("s_cbranch_execz P_noload")
e(f"buffer_load_dwordx4 {v(D_,4)}, v3, s[36:39], s{sEOFF} offen")
e(f"buffer_load_dwordx4 {v(S_,4)}, v3, s[28:31], s{sEOFF} offen")
e("P_noload:")
e("s_mov_b64 exec, -1")
srd(44, 18, 8192, GO_OFF)
e(f"s_lshl_b32 s3, s2, 4")
e(f"s_add_u32 s3, s3, s{sW}")
e(f"s_cmp_lg_u32 s3, {G1*16+1}")
e("s_cbranch_scc1 P_nors")
for k in range(8):
    e(f"s_movk_i32 s{sT0}, {k*1024}")
    e(f"buffer_store_dwordx4 {v(P,4)}, v2, s[44:47], s{sT0} offen sc1")
e("P_nors:")
e(f"ds_write_b128 v3, {v(P,4)} offset:{L_IMG}")
e(f"ds_write_b128 v3, {v(P,4)} offset:{L_IMG+16384}")
e(f"v_lshlrev_b32 v{TM+3}, 3, v1")
e(f"v_and_b32 v{TM}, 15, v1")
e(f"v_lshrrev_b32 v{TM+1}, 4, v1")
e(f"s_cmp_eq_u32 s{sW}, 0")
e("s_cbranch_scc0 G_i1")
e(f"v_add_u32 v{TM+4}, {L_HIST}, v{TM+3}")
e(f"ds_write_b64 v{TM+4}, {v(P,2)}")
e(f"v_add_u32 v{TM+4}, {L_CNT}, v2")
e(f"ds_write_b128 v{TM+4}, {v(P,4)}")
e(f"v_mov_b32 v{TM+4}, {L_CNT+1024}")
e(f"v_mov_b32 v{EN}, -1\nv_mov_b32 v{EN+1}, -1")
e(f"ds_write_b64 v{TM+4}, {v(EN,2)}")
e("G_i1:")
e(f"v_lshlrev_b32 v{TM+4}, 2, v{TM+1}")
e(f"v_sub_u32 v{TM+4}, v{TM}, v{TM+4}")
e(f"v_mov_b32 v{P+2}, 0x3f80\nv_mov_b32 v{P+3}, 0x3f800000")
for r,(d0,d1) in enumerate([(0,1),(2,3)]):
    e(f"v_cmp_eq_u32 vcc, {d0}, v{TM+4}")
    e(f"v_cmp_eq_u32 s[50:51], {d1}, v{TM+4}")
    e(f"v_mov_b32 v{MB+r}, {BIGP}")
    e(f"v_mov_b32 v{TM+5}, {BIGH}")
    e(f"v_cndmask_b32 v{P+r}, 0, v{P+2}, vcc")
    e(f"v_cndmask_b32 v{P+r}, v{P+r}, v{P+3}, s[50:51]")
    e(f"v_cndmask_b32 v{MB+r}, v{MB+r}, v{TM+5}, vcc")
    e(f"v_mov_b32 v{TM+5}, {BIGL}")
    e(f"v_cndmask_b32 v{MB+r}, v{MB+r}, v{TM+5}, s[50:51]")
e(f"s_cmp_eq_u32 s{sW}, 1")
e("s_cbranch_scc0 G_i2")
e(f"v_add_u32 v{TM+4}, {L_T}, v{TM+3}")
e(f"ds_write_b64 v{TM+4}, {v(P,2)}")
e("G_i2:")
srd(20, 4, N*128); srd(24, 18, SLOT_BYTES); srd(40, 18, G1*CH*4, OV_OFF); srd(32, 14, N*128)
e("s_waitcnt lgkmcnt(0)")
e("s_barrier")
stamp(1)
srd(28, 16, 256)
e(f"s_lshl_b32 s{sGO}, s2, 2")
e(f"s_cmp_lg_u32 s3, {G1*16+1}")
e("s_cbranch_scc1 P_nopub")
e(f"v_mov_b32 v104, 1")
e(f"v_mov_b32 v105, 0")
e("s_mov_b64 exec, 1")
e("s_waitcnt vmcnt(0)")
e(f"buffer_store_dword v104, v105, s[28:31], 0 offen sc1")
e("s_mov_b64 exec, -1")
e("P_nopub:")
e(f"s_cmp_ge_u32 s{sW}, 8")
e("s_cselect_b32 s36, s12, s10")
e("s_cselect_b32 s37, s13, s11")
e("s_mov_b32 s38, 8192\ns_mov_b32 s39, 0x00020000")
e(f"s_cselect_b32 s{sT0}, {L_WV}, 0")
e(f"s_and_b32 s{sT1}, s{sW}, 7")
e(f"s_lshl_b32 s{sT1}, s{sT1}, 10")
e(f"s_add_u32 m0, s{sT0}, s{sT1}")
e(f"v_lshlrev_b32 v{TM+3}, 4, v1")
e(f"buffer_load_dwordx4 v{TM+3}, s[36:39], s{sT1} offen lds")
e(f"s_lshl_b32 s{sNODE}, s2, 4")
e(f"s_add_u32 s{sNODE}, s{sNODE}, s{sW}")
e(f"s_mul_i32 s{sNODE}, s{sNODE}, {GS*128}")
def prefetch():
    srd(36, 4, PF0*128)
    e(f"s_lshr_b32 s{sT0}, s2, 3")
    e(f"s_lshl_b32 s{sT0}, s{sT0}, 17")
    e(f"v_lshlrev_b32 v{PFV}, 7, v0")
    e(f"buffer_load_dword v{PFV+1}, v{PFV}, s[36:39], s{sT0} offen")
NPF=0
if PF0 and PFPOS==0: prefetch(); NPF=1
e(f"v_mov_b32 v2, 1")
e(f"v_mov_b32 v{TM+5}, {L_CNT}")
e("s_mov_b64 exec, s[52:53]")
e("s_cbranch_execz P_copy")
e(f"s_waitcnt vmcnt(1)")
for k in range(4):
    entry(v(D_+k), v(S_+k), v(EN_+k), v(BK+k), v(TM+2), v(TM+3))
    e(f"v_lshrrev_b32 v{BK+k}, 4, v{BK+k}")
    e(f"v_lshl_add_u32 v{TM+2}, v{BK+k}, 2, v{TM+5}")
    e(f"ds_add_rtn_u32 v{RK+k}, v{TM+2}, v2")
for k in range(4):
    e(f"s_waitcnt lgkmcnt({3-k})")
    e(f"v_add_u32 v{TM+2}, v{RK+k}, v{BK+k}")
    e(f"v_and_b32 v{TM+2}, 31, v{TM+2}")
    e(f"v_lshlrev_b32 v{TM+2}, 2, v{TM+2}")
    e(f"v_lshl_or_b32 v{TM+2}, v{BK+k}, 7, v{TM+2}")
    e(f"v_cmp_gt_u32 vcc, 32, v{RK+k}")
    e(f"s_and_saveexec_b64 s[50:51], vcc")
    e(f"ds_write_b32 v{TM+2}, v{EN_+k} offset:{L_IMG}")
    e(f"s_mov_b64 exec, s[50:51]")
e(f"v_max3_u32 v{TM+2}, v{RK}, v{RK+1}, v{RK+2}")
e(f"v_max_u32 v{TM+2}, v{TM+2}, v{RK+3}")
e(f"v_cmp_lt_u32 vcc, 31, v{TM+2}")
e("s_cbranch_vccz P_copy")
for k in range(4):
    e(f"v_cmp_lt_u32 vcc, 31, v{RK+k}")
    e(f"s_and_saveexec_b64 s[50:51], vcc")
    e(f"s_cbranch_execz P_ov{k}")
    e(f"ds_add_rtn_u32 v{TM+2}, v{TM+5}, v2 offset:1020")
    e(f"v_lshl_or_b32 v{TM+3}, v{D_+k}, 16, v{S_+k}")
    e(f"s_waitcnt lgkmcnt(0)")
    e(f"v_lshlrev_b32 v{TM+2}, 2, v{TM+2}")
    e(f"v_cmp_gt_u32 vcc, 8, v{TM+2}")
    e(f"v_add_u32 v{TM+4}, v{TM+5}, v{TM+2}")
    e(f"s_and_saveexec_b64 s[48:49], vcc")
    e(f"ds_write_b32 v{TM+4}, v{TM+3} offset:1024")
    e(f"s_andn2_b64 exec, s[48:49], exec")
    e(f"s_cbranch_execz P_ov{k}")
    e(f"v_subrev_u32 v{TM+2}, 8, v{TM+2}")
    e(f"buffer_store_dword v{TM+3}, v{TM+2}, s[40:43], s{sEOFF} offen sc1")
    e(f"s_waitcnt vmcnt(0)")
    e(f"P_ov{k}:")
    e(f"s_mov_b64 exec, s[50:51]")
e("P_copy:")
e("s_mov_b64 exec, -1")
e(f"v_lshrrev_b32 v{TM+2}, 3, v0")
e(f"v_mul_u32_u24 v{TM+2}, {SLOTB}, v{TM+2}")
e(f"v_and_b32 v{TM+3}, 7, v0")
e(f"v_lshl_add_u32 v{TM+2}, v{TM+3}, 4, v{TM+2}")
e(f"s_lshl_b32 s{sT0}, s2, 7")
e(f"s_add_u32 s{sT1}, s{sT0}, {128*SLOTB}")
e(f"s_waitcnt lgkmcnt(0)")
e("s_barrier")
stamp(2)
e(f"s_cmp_ge_u32 s2, {G1}")
e("s_cbranch_scc1 P_nost")
e(f"ds_read_b128 {v(40,4)}, v3 offset:{L_IMG}")
e(f"ds_read_b128 {v(44,4)}, v3 offset:{L_IMG+16384}")
e(f"ds_read_b32 v48, v{TM+5} offset:1020")
e(f"ds_read_b64 {v(50,2)}, v{TM+5} offset:1024")
e("s_waitcnt lgkmcnt(3)")
e(f"buffer_store_dwordx4 {v(40,4)}, v{TM+2}, s[24:27], s{sT0} offen sc1")
e("s_waitcnt lgkmcnt(2)")
e(f"buffer_store_dwordx4 {v(44,4)}, v{TM+2}, s[24:27], s{sT1} offen sc1")
e("v_cmp_eq_u32 vcc, 0, v0")
e("s_and_saveexec_b64 s[50:51], vcc")
e("s_cbranch_execz P_st2")
srd(36, 18, 0x20000, XO_OFF)
e(f"s_lshl_b32 s{sT0}, s2, 3")
e(f"s_lshl_b32 s{sT1}, s2, 2")
e(f"s_add_u32 s{sT1}, s{sT1}, {OC_OFF-XO_OFF}")
e("v_mov_b32 v49, 0")
e("s_waitcnt lgkmcnt(0)")
e("v_max_u32 v48, 2, v48")
e("v_subrev_u32 v48, 2, v48")
e(f"buffer_store_dwordx2 {v(50,2)}, v49, s[36:39], s{sT0} offen sc1")
e(f"buffer_store_dword v48, v49, s[36:39], s{sT1} offen sc1")
e("P_st2:")
e("s_mov_b64 exec, -1")
e(f"s_cmp_lg_u32 s{sW}, 0")
e("s_cbranch_scc1 P_nord")
e("v_mov_b32 v111, 0")
e("buffer_load_dword v110, v111, s[28:31], 0 offen sc1")
e("P_nord:")
e("P_nost:")
e(f"s_lshl_b32 s{sBUFB}, s{sW}, 13")
e(f"v_lshlrev_b32 v{VQT}, 7, v{TM+1}")
e(f"v_add_u32 v{VQT}, {L_T}, v{VQT}")
e(f"v_and_b32 v{TM+4}, 7, v1")
e(f"v_lshlrev_b32 v{TM+5}, 1, v{TM+1}")
e(f"v_xor_b32 v{VLO}, v{TM+4}, v{TM+5}")
e(f"v_lshlrev_b32 v{VLO}, 4, v{VLO}")
e(f"v_and_b32 v{TM+4}, 6, v{TM}")
e(f"v_xor_b32 v{TM+4}, v{TM+4}, v{TM+1}")
e(f"v_lshlrev_b32 v{TM+4}, 4, v{TM+4}")
e(f"v_lshl_add_u32 v{AA}, v{TM}, 7, v{TM+4}")
e(f"v_add_u32 v{AA}, s{sBUFB}, v{AA}")
e(f"v_xor_b32 v{AA+1}, 64, v{AA}")
e(f"v_lshrrev_b32 v{TM+4}, 2, v1")
e(f"v_lshlrev_b32 v{TM+4}, 7, v{TM+4}")
e(f"v_and_b32 v{TM+5}, 3, v1")
e(f"v_lshl_add_u32 v{TM+4}, v{TM+5}, 3, v{TM+4}")
e(f"v_bfe_u32 v{TM+5}, v1, 3, 2")
e(f"v_lshl_add_u32 v{AT}, v{TM+5}, 5, v{TM+4}")
e(f"v_add_u32 v{AT}, s{sBUFB}, v{AT}")
for t in range(1,4): e(f"v_xor_b32 v{AT+t}, {t*32}, v{AT}")
e("s_waitcnt vmcnt(0)")
e("s_barrier")
stamp(3)
e(f"s_mov_b32 s3, 0x40000")
e(f"s_cmp_lg_u32 s{sW}, 0")
e("s_cbranch_scc1 P_wx")
e(f"s_cmp_ge_u32 s2, {G1}")
e("s_cbranch_scc1 P_wx")
e("s_mov_b64 exec, 1")
e(f"v_mov_b32 v{TM+4}, 0")
e(f"v_cmp_eq_u32 vcc, 1, v110")
e("s_cbranch_vccnz P_arr")
e("P_rpoll:")
e("s_sleep 8")
e(f"buffer_load_dword v{TM+5}, v{TM+4}, s[28:31], 0 offen sc1")
e(f"s_sub_u32 s3, s3, 1")
e("s_cbranch_scc1 P_arr")
e("s_waitcnt vmcnt(0)")
e(f"v_cmp_eq_u32 vcc, 1, v{TM+5}")
e("s_cbranch_vccz P_rpoll")
e("P_arr:")
e("s_mov_b64 exec, 0xff")
e(f"v_lshlrev_b32 v{TM+4}, 10, v1")
e(f"buffer_store_dword v2, v{TM+4}, s[44:47], s{sGO} offen sc1")
e("s_mov_b64 exec, -1")
e("P_wx:")
e(f"v_lshlrev_b32 v{TM+2}, 7, v{TM}")
e(f"v_lshl_add_u32 v{TM+2}, v{TM+1}, 4, v{TM+2}")
for k in range(8): e(f"v_mov_b32 v{72+k}, 0")
e(f"v_cmp_gt_u32 vcc, {GS}, v{TM}")
e("s_mov_b64 exec, vcc")
e(f"buffer_load_dwordx4 {v(72,4)}, v{TM+2}, s[20:23], s{sNODE} offen")
e(f"buffer_load_dwordx4 {v(76,4)}, v{TM+2}, s[20:23], s{sNODE} offen offset:64")
e("s_mov_b64 exec, -1")
def qblock():
    e("v_lshrrev_b32 v109, 4, v1")
    e(f"v_bfe_u32 v110, v1, 2, 2")
    e(f"v_lshl_add_u32 v110, v109, 3, v110")
    e(f"v_lshlrev_b32 v110, 7, v110")
    e(f"v_and_b32 v111, 3, v1")
    e(f"v_lshl_add_u32 v110, v111, 4, v110")
    WQ=[56,64,84,100]
    TM4=110
    for mt in range(4):
        for s in range(2):
            for h in range(2):
                e(f"ds_read_b64_tr_b16 {v(WQ[mt]+s*4+h*2,2)}, v110 offset:{s*4096+h*512+(mt//2)*64+(mt%2)*8}")
    for mt in range(4):
        e(f"s_waitcnt lgkmcnt({12-4*mt})")
        e(f"v_mfma_f32_16x16x32_bf16 {v(ACC+mt*4,4)}, {v(WQ[mt],4)}, {v(72,4)}, 0")
        e(f"v_mfma_f32_16x16x32_bf16 {v(ACC+mt*4,4)}, {v(WQ[mt]+4,4)}, {v(76,4)}, {v(ACC+mt*4,4)}")
    e("s_nop 7")
    if FOLD:
        for i in range(16): e(f"v_mul_f32 v{ACC+i}, s{sC}, v{ACC+i}")
    for mt in range(4):
        e(f"v_cvt_pk_bf16_f32 v{QB+mt*2}, v{ACC+mt*4}, v{ACC+mt*4+1}")
        e(f"v_cvt_pk_bf16_f32 v{QB+mt*2+1}, v{ACC+mt*4+2}, v{ACC+mt*4+3}")
    for i in range(16): e(f"v_mov_b32 v{ACC+i}, 0")
if ORDER==2:
    e("s_waitcnt vmcnt(0)")
    qblock()
e(f"s_mov_b32 s{sT1}, 0x40000")
e(f"s_cmp_lg_u32 s{sW}, 0")
e("s_cbranch_scc1 P_nopoll")
e(f"v_lshlrev_b32 v{TM+4}, 4, v1")
e(f"s_lshr_b32 s{sT0}, s2, {RSH}")
e(f"s_and_b32 s{sT0}, s{sT0}, 7")
e(f"s_lshl_b32 s{sT0}, s{sT0}, 10")
e(f"v_cmp_le_u32 s[48:49], {G1//4}, v1")
e("P_poll:")
e(f"buffer_load_dwordx4 v[40:43], v{TM+4}, s[44:47], s{sT0} offen sc1")
e(f"s_sub_u32 s{sT1}, s{sT1}, 1")
e("s_cbranch_scc1 P_pdone")
e("s_waitcnt vmcnt(0)")
e("v_and_b32 v40, v40, v41")
e("v_and_b32 v42, v42, v43")
e("v_and_b32 v40, v40, v42")
e("v_cmp_eq_u32 vcc, 1, v40")
e("s_or_b64 vcc, vcc, s[48:49]")
e("s_cmp_eq_u64 vcc, -1")
e("s_cbranch_scc1 P_pdone")
if SLEEP: e(f"s_sleep {SLEEP}")
e("s_branch P_poll")
e("P_pdone:")
e("s_mov_b64 exec, -1")
e("P_nopoll:")
NPF2=0
if PF0 and PFPOS==1: prefetch(); NPF2=1
srd(36, 18, 0x20000, XO_OFF)
e(f"s_mul_i32 s{sT0}, s2, {SLOTB}")
e(f"s_add_u32 s{sT1}, s{sT0}, 16384")
e("s_waitcnt vmcnt(0)")
e("s_barrier")
delay("b")
stamp(4)
e(f"buffer_load_dwordx4 {v(Ee,4)}, v3, s[24:27], s{sT0} offen sc1")
e(f"s_cmp_ge_u32 s{sW}, 14")
e("s_cbranch_scc1 G_xo")
e(f"buffer_load_dwordx4 {v(Ee+4,4)}, v3, s[24:27], s{sT1} offen sc1")
e("s_branch G_q")
e("G_xo:")
e(f"v_subrev_u32 v{TM}, {896*16}, v3")
e(f"buffer_load_dwordx4 {v(Rr,4)}, v{TM}, s[36:39], 0 offen sc1")
e("G_q:")
if ORDER==1: qblock()
e(f"v_mov_b32 v3, {L_HIST}")
e(f"s_cmp_lt_u32 s{sW}, 14")
e("s_waitcnt vmcnt(0)")
e("s_cbranch_scc1 G_batch")
e(f"s_movk_i32 s{sT1}, {G1*2}")
e(f"v_lshrrev_b32 v{TM}, 2, v{TM}")
for k in range(4): rawconv(v(Rr+k), v(Ee+4+k), sT1, v(TM), k)
e("G_batch:")
for k in range(8):
    e(f"v_cmp_gt_i32 s[{52+2*k}:{53+2*k}], 0, v{Ee+k}")
    e(f"v_lshrrev_b32 v{Bb+k}, 22, v{Ee+k}")
    e(f"v_and_or_b32 v{Bb+k}, v{Bb+k}, s{sM1FC}, v3")
for k in range(8):
    e(f"s_mov_b64 exec, s[{52+2*k}:{53+2*k}]")
    e(f"ds_add_rtn_u32 v{Rr+k}, v{Bb+k}, v2")
e("s_mov_b64 exec, -1")
e(f"v_lshl_add_u32 v{TM}, v1, 3, v3")
e(f"s_or_b32 s{sT0}, s{sSTATE}, s{sW}")
e("s_cbranch_scc1 G_nooc")
e(f"v_lshlrev_b32 v{TM+1}, 4, v1")
e(f"s_mov_b32 s{sT0}, {OC_OFF-XO_OFF}")
e(f"buffer_load_dwordx4 {v(OC4,4)}, v{TM+1}, s[36:39], s{sT0} offen sc1")
if PF0 and PFPOS==2:
    srd(28, 4, PF0*128)
    e(f"s_lshr_b32 s{sT0}, s2, 3")
    e(f"s_lshl_b32 s{sT0}, s{sT0}, 17")
    e(f"v_lshlrev_b32 v{PFV}, 7, v0")
    e(f"buffer_load_dword v{PFV+1}, v{PFV}, s[28:31], s{sT0} offen")
e("G_nooc:")
e(f"s_waitcnt lgkmcnt(0)")
e("s_barrier")
stamp(5)
c0,c1,s_,tot,vv,inc = P,P+1,P+2,P+3,TM+1,TM+2
e(f"ds_read_b64 {v(c0,2)}, v{TM}")
e(f"v_and_b32 v{TM+3}, 3, v1")
e(f"v_cmp_eq_u32 vcc, 3, v{TM+3}")
e("s_waitcnt lgkmcnt(0)")
e(f"v_add_u32 v{s_}, v{c0}, v{c1}")
e("s_nop 1")
e(f"v_add_u32_dpp v{tot}, v{s_}, v{s_} quad_perm:[1,0,3,2] row_mask:0xf bank_mask:0xf")
e("s_nop 1")
e(f"v_add_u32_dpp v{tot}, v{tot}, v{tot} quad_perm:[2,3,0,1] row_mask:0xf bank_mask:0xf")
e(f"v_sub_u32 v{TM+3}, 0, v{tot}")
e(f"v_and_b32 v{TM+3}, 31, v{TM+3}")
e(f"v_cndmask_b32 v{TM+3}, 0, v{TM+3}, vcc")
e(f"v_add_u32 v{vv}, v{s_}, v{TM+3}")
e(f"v_mov_b32 v{inc}, v{vv}")
for sh in (1,2,4,8):
    e("s_nop 1")
    e(f"v_add_u32_dpp v{inc}, v{inc}, v{inc} row_shr:{sh} row_mask:0xf bank_mask:0xf bound_ctrl:0")
e("s_nop 1")
e(f"v_add_u32_dpp v{inc}, v{inc}, v{inc} row_bcast:15 row_mask:0xa bank_mask:0xf")
e("s_nop 1")
e(f"v_add_u32_dpp v{inc}, v{inc}, v{inc} row_bcast:31 row_mask:0xc bank_mask:0xf")
e(f"s_lshl_b32 s{sT1}, s{sW}, 2")
e(f"v_sub_u32 v{vv}, v{inc}, v{vv}")
e(f"v_readlane_b32 s{sT0}, v{inc}, 63")
e(f"v_readlane_b32 s{sCNT}, v{tot}, s{sT1}")
e(f"v_readlane_b32 s{sST}, v{vv}, s{sT1}")
e(f"v_add_u32 v{c1}, v{vv}, v{c0}")
e(f"v_mov_b32 v{TM+3}, {L_LIST}")
e(f"v_lshl_add_u32 v{c0}, v{vv}, 2, v{TM+3}")
e(f"v_lshl_add_u32 v{c1}, v{c1}, 2, v{TM+3}")
e(f"s_cmp_gt_u32 s{sT0}, {CAP-32}")
e("s_cbranch_scc1 G_split")
e(f"ds_write_b64 v{TM}, {v(c0,2)} offset:512")
e(f"s_add_u32 s{sT0}, s{sST}, s{sCNT}")
e(f"s_add_u32 s{sREM}, s{sCNT}, 31")
e(f"s_lshr_b32 s{sREM}, s{sREM}, 5")
e(f"s_lshl_b32 s{sT1}, s{sREM}, 5")
e(f"s_sub_u32 s{sT1}, s{sT1}, s{sCNT}")
e(f"v_add_u32 v{TM+4}, s{sT0}, v1")
e(f"v_lshl_add_u32 v{TM+4}, v{TM+4}, 2, v{TM+3}")
e(f"v_mov_b32 v{TM+5}, {0x7ffff8 if OOBPAD else 0x78}")
e(f"v_cmp_gt_u32 vcc, s{sT1}, v1")
e("s_and_saveexec_b64 s[84:85], vcc")
e(f"ds_write_b32 v{TM+4}, v{TM+5}")
e("s_mov_b64 exec, -1")
e("s_waitcnt lgkmcnt(0)")
for k in range(8): e(f"ds_read_b32 v{Aa+k}, v{Bb+k} offset:512")
e(f"s_lshl_b32 s{sT0}, s{sST}, 2")
e(f"s_add_u32 s{sT0}, s{sT0}, {L_LIST}")
e(f"v_lshrrev_b32 v{VEN}, 3, v1")
e(f"v_lshlrev_b32 v{VEN}, 4, v{VEN}")
e(f"v_add_u32 v{VEN}, s{sT0}, v{VEN}")
e(f"v_and_b32 v{VED}, 7, v1")
e(f"v_bfe_u32 v{TM+4}, v1, 3, 1")
e(f"v_lshl_add_u32 v{VED}, v{VED}, 2, v{TM+4}")
e(f"v_lshlrev_b32 v{VED}, 2, v{VED}")
e(f"v_add_u32 v{VED}, s{sT0}, v{VED}")
for k in range(8):
    e(f"s_waitcnt lgkmcnt({7-k})")
    e(f"v_lshl_add_u32 v{Aa+k}, v{Rr+k}, 2, v{Aa+k}")
for k in range(8):
    e(f"s_mov_b64 exec, s[{52+2*k}:{53+2*k}]")
    e(f"ds_write_b32 v{Aa+k}, v{Ee+k}")
e("s_mov_b64 exec, -1")
e(f"s_cmp_lg_u32 s{sW}, 0")
e("s_cbranch_scc1 G_nofl")
e(f"s_cmp_eq_u32 s{sSTATE}, 3")
e("s_cbranch_scc1 G_nofl")
e(f"v_cmp_gt_u32 s[84:85], {G1//4}, v1")
e("s_waitcnt vmcnt(0)")
e(f"v_or_b32 v{TM+4}, v{OC4}, v{OC4+1}")
e(f"v_or3_b32 v{TM+4}, v{TM+4}, v{OC4+2}, v{OC4+3}")
e(f"v_cmp_ne_u32 vcc, 0, v{TM+4}")
e("s_and_b64 vcc, vcc, s[84:85]")
e("s_or_b32 vcc_lo, vcc_lo, vcc_hi")
e(f"v_mov_b32 v{TM+4}, {L_FLG}")
e(f"v_mov_b32 v{TM+5}, vcc_lo")
e(f"ds_write_b32 v{TM+4}, v{TM+5}")
e("G_nofl:")
e("s_waitcnt lgkmcnt(0)")
e("s_barrier")
stamp(6)
def dma(buf, en):
    e(f"s_add_u32 m0, s{sBUFB}, {buf*4096}")
    for i in range(4):
        e(f"v_and_or_b32 v{TM+i}, v{en+i}, s{sMSRC}, v{VLO}")
        e(f"buffer_load_dwordx4 v{TM+i}, s[20:23], 0 offen {GF} lds")
        if i<3: e("s_add_u32 m0, m0, 1024")
e(f"s_cmp_eq_u32 s{sREM}, 0")
e("s_cbranch_scc1 G_next")
if PRIO: e("s_setprio 3")
e(f"ds_read_b128 {v(EN,4)}, v{VEN}")
e(f"ds_read_b128 {v(P,4)}, v{VEN} offset:128")
e(f"ds_read2_b32 {v(ED,2)}, v{VED} offset0:0 offset1:2")
e("s_waitcnt lgkmcnt(2)")
dma(0,EN)
e(f"s_cmp_lt_u32 s{sREM}, 2")
e("s_waitcnt lgkmcnt(0)")
e("s_cbranch_scc1 G_loop")
dma(1,P)
e("G_loop:")
def tile(buf):
    L=f"G_t{buf}"
    if PRIO:
        for j,(th,p) in enumerate(((5,2),(3,1),(1,0)) if PRIO==1 else ((6,2),(4,1),(2,0))):
            e(f"s_cmp_lg_u32 s{sREM}, {th}")
            e(f"s_cbranch_scc1 {L}p{j}")
            e(f"s_setprio {p}")
            e(f"{L}p{j}:")
    e(f"v_and_or_b32 v{TM+4}, v{ED}, s{sM78}, v{VQT}")
    e(f"v_and_or_b32 v{TM+5}, v{ED+1}, s{sM78}, v{VQT}")
    e(f"ds_read_b64 {v(OH,2)}, v{TM+4}")
    e(f"ds_read_b64 {v(OH+2,2)}, v{TM+5}")
    e(f"ds_read_b128 {v(EN,4)}, v{VEN} offset:{256+buf*128}")
    e(f"ds_read2_b32 {v(ED,2)}, v{VED} offset0:{32+buf*32} offset1:{34+buf*32}")
    e(f"s_cmp_lg_u32 s{sREM}, 1")
    e("s_waitcnt lgkmcnt(2)")
    e(f"v_mfma_f32_16x16x16_bf16 {v(LG,4)}, {v(OH,2)}, {v(MB,2)}, 0")
    e(f"v_mfma_f32_16x16x16_bf16 {v(LG+4,4)}, {v(OH+2,2)}, {v(MB,2)}, 0")
    e("s_waitcnt vmcnt(4)")
    e(f"s_cbranch_scc1 {L}a")
    e("s_waitcnt vmcnt(0)")
    e(f"{L}a:")
    for T in range(2):
        for s in range(2):
            e(f"ds_read_b128 {v(XA+T*8+s*4,4)}, v{AA+s} offset:{buf*4096+T*2048}")
    for t in range(4):
        for h in range(2):
            e(f"ds_read_b64_tr_b16 {v(XT+t*4+h*2,2)}, v{AT+t} offset:{buf*4096+h*2048}")
    e("s_waitcnt lgkmcnt(11)")
    e(f"v_mfma_f32_16x16x32_bf16 {v(LG,4)}, {v(XA,4)}, {v(QB,4)}, {v(LG,4)}")
    e("s_waitcnt lgkmcnt(10)")
    e(f"v_mfma_f32_16x16x32_bf16 {v(LG,4)}, {v(XA+4,4)}, {v(QB+4,4)}, {v(LG,4)}")
    e("s_waitcnt lgkmcnt(9)")
    e(f"v_mfma_f32_16x16x32_bf16 {v(LG+4,4)}, {v(XA+8,4)}, {v(QB,4)}, {v(LG+4,4)}")
    e("s_waitcnt lgkmcnt(8)")
    e(f"v_mfma_f32_16x16x32_bf16 {v(LG+4,4)}, {v(XA+12,4)}, {v(QB+4,4)}, {v(LG+4,4)}")
    e(f"s_cmp_lt_u32 s{sREM}, 3")
    e("s_waitcnt lgkmcnt(0)")
    e(f"s_cbranch_scc1 {L}b")
    dma(buf,EN)
    e(f"{L}b:")
    e("s_nop 5")
    if not FOLD:
      for i in range(8): e(f"v_mul_f32 v{LG+i}, s{sC}, v{LG+i}")
    else: e("s_nop 3")
    if not EXP&2:
      for i in range(8): e(f"v_exp_f32 v{LG+i}, v{LG+i}")
      for i in range(8): e(f"v_add_f32 v{LG+i}, 1.0, v{LG+i}")
      for i in range(8): e(f"v_rcp_f32 v{LG+i}, v{LG+i}")
    if buf==1:
        e(f"v_add_u32 v{VEN}, 256, v{VEN}")
        e(f"v_add_u32 v{VED}, 256, v{VED}")
    else: e("s_nop 0")
    for i in range(4): e(f"v_cvt_pk_bf16_f32 v{P+i}, v{LG+2*i}, v{LG+2*i+1}")
    e(f"s_sub_u32 s{sREM}, s{sREM}, 1")
    e(f"s_cmp_eq_u32 s{sREM}, 0")
    for t in range(4):
        e(f"v_mfma_f32_16x16x32_bf16 {v(ACC+t*4,4)}, {v(XT+t*4,4)}, {v(P,4)}, {v(ACC+t*4,4)}")
tile(0)
e("s_cbranch_scc1 G_next")
tile(1)
e("s_cbranch_scc0 G_loop")
e("G_next:")
stamp(7)
e(f"s_cmp_eq_u32 s{sSTATE}, 1")
e("s_cbranch_scc1 G_half2")
e(f"s_cmp_eq_u32 s{sSTATE}, 3")
e("s_cbranch_scc1 G_have")
e(f"v_mov_b32 v{TM+4}, {L_FLG}")
e(f"ds_read_b32 v{TM+5}, v{TM+4}")
e("s_waitcnt lgkmcnt(0)")
e(f"v_cmp_ne_u32 vcc, 0, v{TM+5}")
e("s_cbranch_vccz G_epi")
e(f"s_mov_b32 s{sSTATE}, 3")
e(f"v_lshlrev_b32 v{TM+1}, 4, v1")
e(f"s_mov_b32 s{sT0}, {OC_OFF-XO_OFF}")
e(f"buffer_load_dwordx4 {v(OC4,4)}, v{TM+1}, s[36:39], s{sT0} offen sc1")
e(f"v_cmp_gt_u32 s[84:85], {G1//4}, v1")
e("s_waitcnt vmcnt(0)")
for k in range(4): e(f"v_cmp_ne_u32 s[{44+2*k}:{45+2*k}], 0, v{OC4+k}")
for k in range(4): e(f"s_and_b64 s[{44+2*k}:{45+2*k}], s[{44+2*k}:{45+2*k}], s[84:85]")
e("G_have:")
for k in range(4):
    e(f"s_ff1_i32_b64 s{sOW}, s[{44+2*k}:{45+2*k}]")
    e(f"s_cmp_lg_i32 s{sOW}, -1")
    e(f"s_cbranch_scc1 G_f{k}")
e("s_branch G_epi")
for k in range(4):
    e(f"G_f{k}:")
    e(f"s_bitset0_b64 s[{44+2*k}:{45+2*k}], s{sOW}")
    e(f"v_readlane_b32 s{sOW+4}, v{OC4+k}, s{sOW}")
    e(f"s_lshl_b32 s{sOW}, s{sOW}, 2")
    e(f"s_add_u32 s{sOW}, s{sOW}, {k}")
    e("s_branch G_ovl")
e("G_ovl:")
e(f"s_mul_i32 s{sT0}, s{sOW}, {CH*4}")
e(f"v_lshlrev_b32 v{TM}, 4, v0")
e(f"buffer_load_dwordx4 {v(Rr,4)}, v{TM}, s[40:43], s{sT0} offen sc1")
e(f"v_lshlrev_b32 v{TM}, 2, v0")
e("s_waitcnt vmcnt(0)")
for k in range(4): rawconv(v(Rr+k), v(Ee+k), sOW+4, v(TM), k)
for k in range(4): e(f"v_mov_b32 v{Ee+4+k}, 0")
e("s_branch G_again")
e("G_half2:")
for k in range(4):
    e(f"v_mov_b32 v{Ee+k}, v{SV+k}")
    e(f"v_mov_b32 v{Ee+4+k}, 0")
e(f"s_mov_b32 s{sSTATE}, 2")
e("s_branch G_again")
e("G_split:")
for k in range(4):
    e(f"v_mov_b32 v{SV+k}, v{Ee+4+k}")
    e(f"v_mov_b32 v{Ee+4+k}, 0")
e(f"s_mov_b32 s{sSTATE}, 1")
e("G_again:")
e("s_waitcnt lgkmcnt(0)")
e("s_barrier")
e(f"v_mov_b32 v{P}, 0\nv_mov_b32 v{P+1}, 0")
e(f"v_lshl_add_u32 v{TM}, v1, 3, v3")
e(f"ds_write_b64 v{TM}, {v(P,2)}")
e("s_waitcnt lgkmcnt(0)")
e("s_barrier")
e("s_branch G_batch")
e("G_epi:")
WV=40; BH=72; BL=80; DO=88
e(f"v_lshrrev_b32 v{DO}, 2, v1")
e(f"v_lshlrev_b32 v{DO}, 7, v{DO}")
e(f"v_and_b32 v{DO+1}, 3, v1")
e(f"v_lshl_add_u32 v{DO}, v{DO+1}, 5, v{DO}")
e(f"v_add_u32 v{DO}, {L_WV}, v{DO}")
for mt in range(4):
    for u in range(4):
        e(f"ds_read_b64_tr_b16 {v(WV+mt*8+u*2,2)}, v{DO} offset:{u*2048+mt*8}")
for i in range(8):
    e(f"v_cvt_pk_bf16_f32 v{BH+i}, v{ACC+2*i}, v{ACC+2*i+1}")
    e(f"v_lshlrev_b32 v{QB}, 16, v{BH+i}")
    e(f"v_and_b32 v{QB+1}, 0xffff0000, v{BH+i}")
    e(f"v_sub_f32 v{QB}, v{ACC+2*i}, v{QB}")
    e(f"v_sub_f32 v{QB+1}, v{ACC+2*i+1}, v{QB+1}")
    e(f"v_cvt_pk_bf16_f32 v{BL+i}, v{QB}, v{QB+1}")
e(f"v_and_b32 v{QB+2}, 15, v1")
e(f"v_lshrrev_b32 v{QB+3}, 4, v1")
e(f"v_lshlrev_b32 v{QB+4}, 7, v{QB+2}")
e(f"v_lshl_add_u32 v{QB+4}, v{QB+3}, 5, v{QB+4}")
e(f"v_cmp_gt_u32 vcc, {GS}, v{QB+2}")
e("s_waitcnt lgkmcnt(0)")
for B,h,z in ((BL,0,1),(BL+4,4,0),(BH,0,0),(BH+4,4,0)):
    for mt in range(4):
        e(f"v_mfma_f32_16x16x32_bf16 {v(DO+mt*4,4)}, {v(WV+mt*8+h,4)}, {v(B,4)}, {'0' if z else v(DO+mt*4,4)}")
e("s_nop 7")
for i in range(8): e(f"v_cvt_pk_bf16_f32 v{ACC+i}, v{DO+2*i}, v{DO+2*i+1}")
e("s_and_saveexec_b64 s[84:85], vcc")
e(f"buffer_store_dwordx4 {v(ACC,4)}, v{QB+4}, s[32:35], s{sNODE} offen {OST}")
e(f"buffer_store_dwordx4 {v(ACC+4,4)}, v{QB+4}, s[32:35], s{sNODE} offen offset:16 {OST}")
delay("c")
abs_end()
stamp_out()
e("G_end:")
e("s_endpgm")
e('.section .rodata,"a"')
e(f""".p2align 6
.amdhsa_kernel {KN}
  .amdhsa_next_free_vgpr 112
  .amdhsa_next_free_sgpr 100
  .amdhsa_accum_offset 112
  .amdhsa_group_segment_fixed_size 0
  .amdhsa_kernarg_size 64
  .amdhsa_user_sgpr_count 2
  .amdhsa_user_sgpr_kernarg_segment_ptr 1
  .amdhsa_system_sgpr_workgroup_id_x 1
.end_amdhsa_kernel""")
dst = sys.argv[1] if len(sys.argv)>1 else 'gather_scatter__kernel_systems_refs_featgraph__graph.s'
open(dst,'w').write('\n'.join(out)+'\n')
```
